```python
import torch

def _softmax(x, axis=-1):
    return torch.softmax(x, dim=axis)
def _gelu(x):
    return torch.nn.functional.gelu(x, approximate="tanh")
def _silu(x):
    return torch.nn.functional.silu(x)
def _sigmoid(x):
    return torch.sigmoid(x)
def _layernorm(x, axis=-1, eps=1e-5):
    m = x.mean(dim=axis, keepdim=True)
    v = x.var(dim=axis, keepdim=True, unbiased=False)
    return (x - m) / torch.sqrt(v + eps)
def _scatter_add(tgt, idx, src, axis=0):
    return tgt.clone().index_add_(axis, idx, src)
def _segment_sum(src, seg, n):
    out = torch.zeros((n,) + src.shape[1:], dtype=src.dtype)
    return out.index_add_(0, seg, src)
def _pad(x, pw):
    flat = tuple(v for pair in reversed(pw) for v in pair)
    return torch.nn.functional.pad(x, flat)

kernel_name = 'concat_heads__grouped_kv_mqa__ssm_conv_s4d__prompt'

def setup_inputs():

    _w = (lambda a: (lambda t: t.to(torch.bfloat16) if t.is_floating_point() else t)(torch.as_tensor(a)))
    def _A_setup():
        B, S, D, H = 1, 2048, 640, 32
        Dh = D // H
        return {
            "x": _w((lambda *s: torch.randn(*s, dtype=torch.bfloat16) * 0.05)(B, S, D)),
            "wq": _w((lambda *s: torch.randn(*s, dtype=torch.bfloat16) * 0.8)(D, H * Dh)),
            "wk": _w((lambda *s: torch.randn(*s, dtype=torch.bfloat16) * 0.8)(D, Dh)),
            "wv": _w((lambda *s: torch.randn(*s, dtype=torch.bfloat16) * 0.05)(D, Dh)),
            "wo": _w((lambda *s: torch.randn(*s, dtype=torch.bfloat16) * 0.05)(H * Dh, D)),
        }
    _A_in = _A_setup()

    def _B_setup():
        Bsz, L, D, N = 1, 2048, 640, 128
        return {
            "u": _w((lambda *s: torch.randn(*s, dtype=torch.bfloat16) * 0.05)(Bsz, L, D)),
            "log_A_real": _w((lambda *s: torch.randn(*s, dtype=torch.bfloat16) * 6.4)(D, N) * 0.5),
            "A_imag": _w((lambda *s: torch.randn(*s, dtype=torch.bfloat16) * 0.05)(D, N) * 3.14),
            "C_real": _w((lambda *s: torch.randn(*s, dtype=torch.bfloat16) * 0.05)(D, N) / N ** 0.5),
            "C_imag": _w((lambda *s: torch.randn(*s, dtype=torch.bfloat16) * 0.05)(D, N) / N ** 0.5),
            "log_dt": _w((lambda *s: torch.randn(*s, dtype=torch.bfloat16) * 0.05)(D) * 0.5 - 4.0),
            "D_skip": _w((lambda *s: torch.randn(*s, dtype=torch.bfloat16) * 0.05)(D)),
        }
    _B_in = _B_setup()

    return {
        "A_x": _A_in["x"],
        "A_wq": _A_in["wq"],
        "A_wk": _A_in["wk"],
        "A_wv": _A_in["wv"],
        "A_wo": _A_in["wo"],
        "B_u": _B_in["u"],
        "B_log_A_real": _B_in["log_A_real"],
        "B_A_imag": _B_in["A_imag"],
        "B_C_real": _B_in["C_real"],
        "B_C_imag": _B_in["C_imag"],
        "B_log_dt": _B_in["log_dt"],
        "B_D_skip": _B_in["D_skip"],
    }

def reference(A_x, A_wq, A_wk, A_wv, A_wo, B_u, B_log_A_real, B_A_imag, B_C_real, B_C_imag, B_log_dt, B_D_skip):
    def _A_ref(x, wq, wk, wv, wo):
        B, S, D = x.shape
        H = 32
        Dh = D // H
        q = (lambda x, *d: x.permute(*d))((x @ wq).reshape(B, S, H, Dh), 0, 2, 1, 3)
        k = x @ wk
        v = x @ wv
        scores = torch.einsum("bhqd,bkd->bhqk", q, k) * (Dh ** -0.5)
        p = _softmax(scores, axis=-1)
        o = torch.einsum("bhqk,bkd->bhqd", p, v)
        return (lambda x, *d: x.permute(*d))(o, 0, 2, 1, 3).reshape(B, S, H * Dh) @ wo

    def _B_ref(u, log_A_real, A_imag, C_real, C_imag, log_dt, D_skip):
        L = u.shape[1]
        dt = torch.exp(log_dt)
        A = -torch.exp(log_A_real) + 1j * A_imag
        C = (C_real + 1j * C_imag) * dt[:, None]
        pos = (lambda x, dt: x.to(dt))(torch.arange(L), log_dt.dtype)
        P = torch.exp((A * dt[:, None])[:, :, None] * pos[None, None, :])
        K = 2.0 * torch.einsum("dn,dnl->dl", C, P).real
        L2 = 2 * L
        u_t = (lambda x, *d: x.permute(*d))(u, 0, 2, 1)
        Kf = (lambda x, *a, **k: torch.fft.rfft(x.float(), *a, **k))(K, L2)
        Uf = (lambda x, *a, **k: torch.fft.rfft(x.float(), *a, **k))(u_t, L2)
        y = (lambda x, *a, **k: torch.fft.irfft(x, *a, **k).to(torch.bfloat16))(Uf * Kf[None, :, :], L2)[:, :, :L]
        y = (lambda x, *d: x.permute(*d))(y, 0, 2, 1)
        return y + u * D_skip[None, None, :]

    a = _A_ref(A_x, A_wq, A_wk, A_wv, A_wo)
    b = _B_ref(B_u, B_log_A_real, B_A_imag, B_C_real, B_C_imag, B_log_dt, B_D_skip)
    return torch.concatenate([a, b], axis=-1)
```

```python
import re
class Asm:
    def __init__(s):
        s.lines = []
    def __call__(s, text):
        for l in text.split("\n"):
            l = l.strip()
            if l: s.lines.append(l)
    def label(s, name): s.lines.append(name + ":")
    def text(s): return "\n".join(("" if l.endswith(":") else "    ") + l for l in s.lines) + "\n"

def vr(b, n=1):
    return f"v{b}" if n == 1 else f"v[{b}:{b+n-1}]"
def sr(b, n=1):
    return f"s{b}" if n == 1 else f"s[{b}:{b+n-1}]"

_reg = re.compile(r"\b([vs])(\d+)\b|\b([vs])\[(\d+):(\d+)\]|\b(vcc|exec|m0)\b")
def regs_of(op):
    out = set()
    for m in _reg.finditer(op):
        if m.group(1): out.add((m.group(1), int(m.group(2))))
        elif m.group(3):
            for i in range(int(m.group(4)), int(m.group(5)) + 1): out.add((m.group(3), i))
        else: out.add((m.group(6), 0))
    return out
TRANS = ("v_exp_", "v_log_", "v_rcp_", "v_rsq_", "v_sqrt_", "v_sin_", "v_cos_")
def passes(mn):
    if "32x32x4bf16_1k" in mn: return 16
    if "32x32" in mn: return 8
    if "16x16" in mn: return 4
    raise ValueError(mn)
def parse(line):
    line = line.split(";")[0].strip()
    if not line or line.endswith(":") or line.startswith("."): return None
    p = line.split(None, 1)
    mn = p[0]; rest = p[1] if len(p) > 1 else ""
    ops = [o.strip() for o in re.split(r",(?![^\[]*\])", rest)]
    d = dict(mn=mn, ops=ops, w=set(), r=set(), kind="other", line=line)
    R = lambda i: regs_of(ops[i].split(" ")[0]) if i < len(ops) else set()
    allr = lambda a: set().union(*[R(i) for i in range(a, len(ops))]) if len(ops) > a else set()
    if mn.startswith("v_mfma") or mn.startswith("v_smfmac"):
        d["kind"] = "mfma"; d["w"] = R(0); d["A"] = R(1); d["B"] = R(2)
        d["C"] = R(0) if mn.startswith("v_smfmac") else R(3)
        d["r"] = d["A"] | d["B"] | d["C"] | (R(3) if mn.startswith("v_smfmac") else set()); d["passes"] = passes(mn)
    elif mn.startswith("v_cmp"):
        d["kind"] = "valu"; d["w"] = R(0); d["r"] = allr(1)
    elif mn.startswith("v_readfirstlane") or mn.startswith("v_readlane"):
        d["kind"] = "valu"; d["w"] = R(0); d["r"] = allr(1); d["rl"] = True
    elif mn.startswith("v_permlane"):
        d["kind"] = "valu"; d["w"] = R(0) | R(1); d["r"] = R(0) | R(1); d["perm"] = True
    elif mn.startswith("v_"):
        d["kind"] = "valu"; d["w"] = R(0); d["r"] = allr(1)
        if mn.startswith(("v_fmac", "v_pk_fmac")): d["r"] |= R(0)
        if mn.startswith("v_cndmask") and len(ops) == 4 and "vcc" in ops[3]: d["r"].add(("vcc", 0))
        if mn.startswith(("v_add_co", "v_sub_co", "v_addc_co")): d["w"] |= R(1)
        d["trans"] = mn.startswith(TRANS)
    elif mn.startswith("ds_"):
        d["kind"] = "ds"
        if "read" in mn: d["w"] = R(0); d["r"] = allr(1)
        else: d["r"] = allr(0)
    elif mn.startswith("buffer_") or mn.startswith("global_"):
        d["kind"] = "vmem"
        if "load" in mn and " lds" not in line: d["w"] = R(0); d["r"] = allr(1)
        else: d["r"] = allr(0)
        if " lds" in line: d["r"].add(("m0", 0)); d["dma"] = True
        if "store" in mn and ("x4" in mn or "x3" in mn): d["wide"] = R(0)
    elif mn.startswith("s_"):
        d["kind"] = "salu"
        if mn.startswith(("s_cmp", "s_cbranch", "s_branch", "s_waitcnt", "s_barrier", "s_nop", "s_endpgm", "s_sleep", "s_setprio")): d["r"] = allr(0)
        else: d["w"] = R(0); d["r"] = allr(1)
        if mn == "s_nop": d["nop"] = int(ops[0]) + 1
    return d
def check(lines, trans2=False):
    ins = []
    for n, l in enumerate(lines):
        d = parse(l)
        if d: d["n"] = n; d["phys"] = "PHYS" in l; ins.append(d)
    probs = []
    for i, c in enumerate(ins):
        dist = 0; distp = 0
        for j in range(i - 1, max(-1, i - 40), -1):
            p = ins[j]
            need = 0; why = ""; usep = False
            isv = lambda s: {x for x in s if x[0] == "v"}
            iss = lambda s: {x for x in s if x[0] != "v"}
            if p["kind"] == "valu":
                if c["kind"] == "mfma" and isv(p["w"]) & c["r"]: need, why = 2, "valu->mfma"
                if c.get("rl") and isv(p["w"]) & c["r"]: need, why = 1, "valu->readlane"
                if c.get("perm") and isv(p["w"]) & c["r"]: need, why = 2, "valu->permlane"
                if p.get("trans") and c["kind"] == "valu" and not c.get("trans") and p["w"] & c["r"]: need, why = max(need, 1), "trans->valu"
                if iss(p["w"]) & c["r"]:
                    if c["kind"] == "vmem": need, why = 5, "valu sgpr->vmem"
                    elif c["kind"] == "valu": need, why = max(need, 2), "valu sgpr->valu"
            if p["kind"] == "mfma":
                P = p["passes"]; tb = {4: (6, 8, 3), 8: (10, 12, 7), 16: (18, 20, 15)}[P]
                if c["kind"] == "mfma":
                    if p["w"] & (c["A"] | c["B"]): need, why = tb[1], "mfma D->A/B"
                    elif p["w"] & c["C"] and not (p["w"] == c["C"] and P == c["passes"]): need, why = tb[0], "mfma D->C partial"
                    elif p["w"] & c["w"] and not (p["w"] == c["C"]): need, why = tb[0], "mfma WAW"
                elif c["kind"] in ("valu", "ds", "vmem"):
                    if p["w"] & (c["r"] | c["w"]): need, why = tb[1], "mfma D->valu/mem"
                    elif c["kind"] == "valu" and p["C"] & c["w"]: need, why = tb[2], "mfma C WAR"
                usep = True
            if p.get("wide") and c["kind"] == "valu" and p["wide"] & c["w"]: need, why = 2, "wide store WAR"
            if p["kind"] == "salu" and ("m0", 0) in p["w"] and c.get("dma"): need, why = 1, "m0->dma"
            dd = distp if (usep and c["phys"]) else dist
            if need > dd: probs.append((c["n"], why, need, dd, p["line"], c["line"]))
            dist += p.get("nop", 1)
            distp += p.get("nop", 2 if p.get("trans") else 1)
            if dist > 24: break
    return probs
```

```python
import sys, struct, math
from asmlib import Asm, vr, sr, check
NAME = "concat_heads__grouped_kv_mqa__ssm_conv_s4d__prompt"
def f2u(x): return struct.unpack("<I", struct.pack("<f", x))[0]
def hx(x): return "0x%08x" % (x & 0xffffffff)

L_WQ = 0; L_WK = 102400; L_SCR = 128000; SCR_SZ = 4352; L_UST = 141056
L_CP = 102400; CP_CH = 16640; CP_C = 4160
L_TBL = 152320; TBL_SZ = 1552; L_QST = 152320
L_UT = 81920; UT_CH = 4608; L_PART = 95744; L_QX = 0
L_XCH = 102400; L_OT = 126976; OT_SZ = 1536; L_DEC = 139264; L_YT = 139520; L_YS = 149760
BLK = 5120
W_NONCE = 0; W_FU = 0x1000; W_FKV = 0x2000; W_FY = 0x4000; W_FO = 0x6000
W_KV = 0x10000; W_UT = 0x40000; W_YT = 0x2C0000; W_O = 0x540000; W_DBG = 0x800000; W_STAMP = 0xF00000; WS_SZ = 0x1000000
P_X, P_WQ, P_WK, P_WV, P_WO, P_U, P_LAR, P_AIM, P_CR, P_CI, P_LDT, P_DSK, P_OUT, P_DBG, P_WS = range(4, 34, 2)
SA, SB, SWS, SOUT = 36, 40, 44, 48
S_W, S_XCD, S_J, S_RB, S_HG, S_NONCE, S_CH0, S_NCH = 52, 53, 54, 55, 56, 57, 58, 59
VM = 60
T0, T1, T2, T3, T4, T5, T6, T7 = range(62, 70)
S_RT, S_KH, S_FB, S_IT = 70, 71, 72, 73
EX = 74
S_LDT = 76; S_D0 = 77
S_C1, S_C2, S_C3, S_C4 = 80, 81, 82, 83
ST0 = 84
SPIN_MAX = 100000

class Cfg:
    dbg = False; stamps = False; stop_after = None; nonce_update = True

def srd(a, base, ptr, size):
    a(f"s_mov_b32 s{base}, s{ptr}\ns_mov_b32 s{base+1}, s{ptr+1}\ns_mov_b32 s{base+2}, {size}\ns_mov_b32 s{base+3}, 0x00020000")

_stamp_n = [0]
def stamp(a, cfg, idx):
    if not cfg.stamps: return
    a(f"""s_memrealtime s[{ST0}:{ST0+1}]
s_lshl_b32 s86, s2, 3
s_add_u32 s86, s86, s{S_W}
s_lshl_b32 s86, s86, 7
s_add_u32 s86, s86, {W_STAMP + 4*idx}
s_waitcnt lgkmcnt(0)
v_mov_b32 v254, s{ST0}
v_mov_b32 v255, s86
s_mov_b64 s[88:89], exec
s_mov_b64 exec, 1
buffer_store_dword v254, v255, s[{SWS}:{SWS+3}], 0 offen
s_mov_b64 exec, s[88:89]""")

def dump_lds(a, cfg, tag, lo, n8):
    if not cfg.dbg: return
    a(f"""s_cmp_ge_u32 s2, 4
s_cbranch_scc1 L_dump_{tag}
s_lshl_b32 s86, s{S_W}, 10
s_mul_i32 s87, s2, {n8*8192}
s_add_u32 s87, s87, {W_DBG}
s_add_u32 s87, s87, s86
s_add_u32 s86, s86, {lo}
v_add_u32 v250, s86, v1
s_mov_b32 s88, 0""")
    a.label(f"L_dumpl_{tag}")
    a(f"""ds_read_b128 v[252:255], v250
s_waitcnt lgkmcnt(0)
buffer_store_dwordx4 v[252:255], v1, s[{SWS}:{SWS+3}], s87 offen
s_waitcnt vmcnt(0)
v_add_u32 v250, 8192, v250
s_add_u32 s87, s87, 8192
s_add_u32 s88, s88, 1
s_cmp_lt_u32 s88, {n8}
s_cbranch_scc1 L_dumpl_{tag}""")
    a.label(f"L_dump_{tag}")

def poll(a, tag, vaddr, nload, vt, lanes=64):
    sfx = {1: "dword", 2: "dwordx2", 4: "dwordx4"}[nload]
    if lanes < 64: a(f"s_mov_b32 exec_lo, {hx((1 << lanes) - 1)}\ns_mov_b32 exec_hi, 0")
    a(f"s_mov_b32 s{T7}, 0")
    a.label(f"L_poll_{tag}")
    a(f"buffer_load_{sfx} {vr(vt, nload)}, v{vaddr}, s[{SWS}:{SWS+3}], 0 offen sc1")
    a("s_waitcnt vmcnt(0)")
    for i in range(nload): a(f"v_xor_b32 v{vt+i}, s{S_NONCE}, v{vt+i}")
    if nload == 2: a(f"v_or_b32 v{vt}, v{vt}, v{vt+1}")
    if nload == 4: a(f"v_or_b32 v{vt}, v{vt}, v{vt+1}\nv_or3_b32 v{vt}, v{vt}, v{vt+2}, v{vt+3}")
    a(f"""v_cmp_ne_u32 vcc, 0, v{vt}
s_add_u32 s{T7}, s{T7}, 1
s_nop 2
s_cmp_eq_u64 vcc, 0
s_cbranch_scc1 L_polld_{tag}
s_cmp_lt_u32 s{T7}, {SPIN_MAX}
s_cbranch_scc1 L_poll_{tag}""")
    a.label(f"L_polld_{tag}")
    if lanes < 64: a("s_mov_b64 exec, -1")

def div10_offsets(a, vdst, cbase_s, cbase_imm, vt, perm):
    if cbase_s is not None: a(f"v_add_u32 v{vt}, s{cbase_s}, v0")
    else: a(f"v_add_u32 v{vt}, {cbase_imm}, v0")
    a(f"""v_mul_u32_u24 v{vt+1}, 6554, v{vt}
v_lshrrev_b32 v{vt+1}, 16, v{vt+1}
v_mul_u32_u24 v{vt+2}, 10, v{vt+1}
v_sub_u32 v{vt}, v{vt}, v{vt+2}""")
    if perm:
        a(f"""v_lshrrev_b32 v{vt+2}, 2, v{vt+1}
v_lshrrev_b32 v{vt+3}, 3, v{vt+1}
v_xor_b32 v{vt+2}, v{vt+2}, v{vt+3}
v_and_b32 v{vt+2}, 1, v{vt+2}
v_mul_u32_u24 v{vt+2}, 12, v{vt+2}
v_xor_b32 v{vt+1}, v{vt+1}, v{vt+2}""")
    a(f"""v_mul_u32_u24 v{vt+1}, 1280, v{vt+1}
v_lshl_add_u32 v{vdst}, v{vt}, 4, v{vt+1}""")

XF = 16

def prologue(a, cfg):
    a(f"""s_cmp_ge_u32 s2, 256
s_cbranch_scc1 L_end
s_load_dwordx16 s[4:19], s[0:1], 0
s_load_dwordx8 s[20:27], s[0:1], 64
s_load_dwordx4 s[28:31], s[0:1], 96
s_load_dwordx2 s[32:33], s[0:1], 112
v_lshrrev_b32 v1, 6, v0
v_and_b32 v0, 63, v0
s_and_b32 s{S_XCD}, s2, 7
v_readfirstlane_b32 s{S_W}, v1
s_lshr_b32 s{S_J}, s2, 3
s_lshr_b32 s{T0}, s{S_J}, 3
s_lshl_b32 s{S_RB}, s{S_XCD}, 2
s_add_u32 s{S_RB}, s{S_RB}, s{T0}
s_and_b32 s{S_HG}, s{S_J}, 7
s_mul_i32 s{T0}, s{S_J}, 3
s_lshl_b32 s{T1}, s{S_J}, 1
s_add_u32 s{T1}, s{T1}, 16
s_cmp_lt_u32 s{S_J}, 16
s_cselect_b32 s{T0}, s{T0}, s{T1}
s_cselect_b32 s{S_NCH}, 3, 2
s_mul_i32 s{S_CH0}, s{S_XCD}, 80
s_add_u32 s{S_CH0}, s{S_CH0}, s{T0}
s_lshr_b32 s{T0}, s{S_HG}, 1
s_add_u32 s{S_RT}, s{T0}, s{S_W}
s_and_b32 s{S_RT}, s{S_RT}, 3
s_lshr_b32 s{S_KH}, s{S_W}, 2
s_mov_b32 s{S_FB}, 0
s_mov_b32 s{VM}, 0x000fffff
s_mov_b32 s{VM+1}, 0x000fffff
v_lshlrev_b32 v1, 4, v0
s_waitcnt lgkmcnt(0)
s_load_dword s{S_NONCE}, s[{P_WS}:{P_WS+1}], {W_NONCE}""")
    srd(a, SWS, P_WS, WS_SZ)
    srd(a, SOUT, P_OUT, 2048*1280*2)
    a(f"""s_bitcmp1_b32 s{S_HG}, 0
s_cselect_b32 s{SB}, s{P_WV}, s{P_WK}
s_cselect_b32 s{SB+1}, s{P_WV+1}, s{P_WK+1}
s_mov_b32 s{SB+2}, 25600
s_mov_b32 s{SB+3}, 0x00020000""")
    stamp(a, cfg, 0)

def wk_dma(a):
    a(f"s_lshl_b32 s{T0}, s{S_W}, 10\ns_add_u32 m0, s{T0}, {L_WK}\ns_nop 0")
    for i in range(4):
        a(f"buffer_load_dwordx4 v1, s[{SB}:{SB+3}], s{T0} offen lds")
        if i < 3: a(f"s_add_u32 m0, m0, 8192\ns_add_u32 s{T0}, s{T0}, 8192")

def x_addr(a, v):
    a(f"""v_and_b32 v{v}, 15, v0
v_mul_u32_u24 v{v}, 1280, v{v}
v_lshrrev_b32 v{v+1}, 4, v0
v_lshl_add_u32 v{v}, v{v+1}, 4, v{v}
s_lshl_b32 s{T1}, s{S_RB}, 2
s_add_u32 s{T1}, s{T1}, s{S_RT}
s_mul_i32 s{T1}, s{T1}, {16*1280}
s_mul_i32 s{T2}, s{S_KH}, 640
s_add_u32 s{T1}, s{T1}, s{T2}""")
    srd(a, SA, P_X, 2048*1280)

def x_loads(a, v, n):
    for i in range(n):
        a(f"buffer_load_dwordx4 {vr(XF+4*i,4)}, v{v}, s[{SA}:{SA+3}], s{T1} offen offset:{64*i}")

def w_dma_typed(a, tag, ptr):
    a(f"s_sub_u32 s{T2}, s{S_W}, 1\ns_lshl_b32 s{T3}, s{T2}, 6")
    div10_offsets(a, 2, T3, None, 3, True)
    srd(a, SA, ptr, 640*1280)
    a(f"""s_mul_i32 s{T3}, s{S_HG}, 160
s_lshl_b32 m0, s{T2}, 10
s_mov_b32 s{T4}, 0""")
    a.label(f"L_wdma_{tag}")
    a(f"""buffer_load_dwordx4 v2, s[{SA}:{SA+3}], s{T3} offen lds
s_add_u32 s{T3}, s{T3}, 40960
s_add_u32 m0, m0, 5120
s_add_u32 s{T4}, s{T4}, 1
s_cmp_lt_u32 s{T4}, 20
s_cbranch_scc1 L_wdma_{tag}""")

def finish_nonce(a):
    a(f"s_waitcnt lgkmcnt(0)\ns_mul_i32 s{S_NONCE}, s{S_NONCE}, 0x9E3779B1\ns_add_u32 s{S_NONCE}, s{S_NONCE}, 0x7F4A7C15")

def kv_proj(a, cfg):
    WR = 96
    ACC = 124
    a(f"""v_lshrrev_b32 v2, 4, v0
v_lshlrev_b32 v2, 3, v2
v_bfe_u32 v3, v0, 2, 2
v_add_u32 v2, v2, v3
v_mul_u32_u24 v2, 40, v2
v_and_b32 v3, 3, v0
v_lshl_add_u32 v2, v3, 3, v2
v_add_u32 v2, {L_WK}, v2""")
    def reads(s):
        b = WR + 8*(s % 3)
        for ct in range(2):
            for hf in range(2):
                a(f"ds_read_b64_tr_b16 {vr(b+4*ct+2*hf,2)}, v2 offset:{1280*s + 160*hf + 32*ct}")
    a(f"s_bitcmp1_b32 s{S_HG}, 0\ns_cbranch_scc1 L_kv_v")
    for kind in range(2):
        if kind: a.label("L_kv_v")
        reads(0); reads(1)
        for s in range(20):
            if s + 2 < 20: reads(s + 2)
            n_after = 4*min(2, 19 - s)
            a(f"s_waitcnt vmcnt({19-s}) lgkmcnt({n_after})")
            b = WR + 8*(s % 3)
            for ct in range(2):
                c = "0" if s == 0 else vr(ACC+4*ct, 4)
                A, B = vr(b+4*ct, 4), vr(XF+4*s, 4)
                if kind: A, B = B, A
                a(f"v_mfma_f32_16x16x32_bf16 {vr(ACC+4*ct,4)}, {A}, {B}, {c}")
        a(f"""s_mul_i32 s{T0}, s{S_RB}, {BLK}
s_add_u32 s{T0}, s{T0}, {W_KV}
v_and_b32 v3, 15, v0
v_lshrrev_b32 v4, 4, v0""")
        if kind == 0:
            a(f"""s_lshr_b32 s{T1}, s{S_RT}, 1
s_lshl_b32 s{T1}, s{T1}, 10
s_and_b32 s{T2}, s{S_RT}, 1
s_lshl_b32 s{T2}, s{T2}, 8
s_add_u32 s{T1}, s{T1}, s{T2}
s_add_u32 s{T1}, s{T1}, s{T0}
v_lshrrev_b32 v5, 1, v4
v_lshlrev_b32 v5, 9, v5
v_lshl_add_u32 v5, v3, 4, v5
v_and_b32 v6, 1, v4
v_lshl_add_u32 v5, v6, 3, v5
s_lshl_b32 s{T2}, s{S_RT}, 7
s_add_u32 s{T2}, s{T2}, s{T0}
s_add_u32 s{T2}, s{T2}, 2048
v_lshlrev_b32 v6, 3, v3
v_cmp_gt_u32 vcc, 16, v0""")
        else:
            a(f"""s_mul_i32 s{T1}, s{S_RT}, 640
s_add_u32 s{T1}, s{T1}, s{T0}
s_add_u32 s{T1}, s{T1}, 2560
s_add_u32 s{T2}, s{T1}, 256
v_lshrrev_b32 v5, 1, v4
v_mul_u32_u24 v5, 320, v5
v_lshl_add_u32 v5, v3, 4, v5
v_and_b32 v6, 1, v4
v_lshl_add_u32 v5, v6, 3, v5
v_mov_b32 v6, v5
v_cmp_gt_u32 vcc, 4, v3""")
        a(f"""v_cvt_pk_bf16_f32 v8, v{ACC}, v{ACC+1}
v_cvt_pk_bf16_f32 v9, v{ACC+2}, v{ACC+3}
v_cvt_pk_bf16_f32 v10, v{ACC+4}, v{ACC+5}
v_cvt_pk_bf16_f32 v11, v{ACC+6}, v{ACC+7}
buffer_store_dwordx2 v[8:9], v5, s[{SWS}:{SWS+3}], s{T1} offen sc1
s_and_saveexec_b64 s[{EX}:{EX+1}], vcc
buffer_store_dwordx2 v[10:11], v6, s[{SWS}:{SWS+3}], s{T2} offen sc1
s_mov_b64 exec, s[{EX}:{EX+1}]""")
        if kind == 0: a("s_branch L_kv_done")
    a.label("L_kv_done")
    a(f"""v_lshlrev_b32 v2, 10, v0
s_lshl_b32 s{T0}, s2, 2
s_add_u32 s{T0}, s{T0}, {W_FKV}
v_mov_b32 v3, s{S_NONCE}
s_waitcnt vmcnt(0)
s_mov_b64 exec, 0xff
buffer_store_dword v3, v2, s[{SWS}:{SWS+3}], s{T0} offen sc1
s_mov_b64 exec, -1""")

def role_w0(a, cfg):
    wk_dma(a)
    x_addr(a, 2)
    x_loads(a, 2, 20)
    finish_nonce(a)
    a("s_waitcnt vmcnt(20)\ns_barrier")
    stamp(a, cfg, 1)
    kv_proj(a, cfg)
    stamp(a, cfg, 2)
    a("s_barrier")
    a("s_barrier")

def role_w123(a, cfg):
    wk_dma(a)
    w_dma_typed(a, "q1", P_WQ)
    x_addr(a, 2)
    x_loads(a, 2, 10)
    finish_nonce(a)
    a("s_waitcnt vmcnt(30)\ns_barrier")
    a("s_barrier")
    a("s_waitcnt vmcnt(10)\ns_barrier")

def cmul(a, d, x, y, t):
    a(f"v_pk_mul_f32 {vr(t,2)}, {vr(x,2)}, {vr(y,2)} op_sel:[0,0] op_sel_hi:[0,1]")
    return f"v_pk_fma_f32 {vr(d,2)}, {vr(x,2)}, {vr(y,2)}, {vr(t,2)} op_sel:[1,1,0] op_sel_hi:[1,0,1] neg_lo:[1,0,0]"
def cmul_multi(a, items, tmps):
    for k in range(0, len(items), len(tmps)):
        grp = items[k:k+len(tmps)]
        second = [cmul(a, d, x, y, t) for (d, x, y), t in zip(grp, tmps)]
        for s in second: a(s)

LOG2E = 1.4426950408889634
def acc_exp(a, d, x, t):
    a(f"""v_mul_f32 v{t}, s{S_C1}, {x}
v_fma_f32 v{t+1}, {x}, s{S_C1}, -v{t}
v_fma_f32 v{t+1}, {x}, s{S_C2}, v{t+1}
v_exp_f32 v{t}, v{t}
v_fma_f32 v{t+1}, v{t+1}, s{S_C3}, 1.0
v_mul_f32 v{d}, v{t}, v{t+1}""")

KP = 56
def kgen_loads(a):
    a(f"""s_sub_u32 s{T2}, s{S_W}, 4
s_add_u32 s{T2}, s{T2}, s{S_CH0}
s_min_u32 s{T2}, s{T2}, 639
s_lshl_b32 s{T3}, s{T2}, 8
v_lshlrev_b32 v2, 2, v0""")
    for i, p in enumerate((P_LAR, P_AIM, P_CR, P_CI)):
        srd(a, SA, p, 640*256)
        a(f"buffer_load_dword v{KP+i}, v2, s[{SA}:{SA+3}], s{T3} offen")
    a(f"""s_lshl_b32 s{T3}, s{T2}, 1
s_and_b32 s{T3}, s{T3}, 0xfffffffc
s_load_dword s{S_LDT}, s[{P_LDT}:{P_LDT+1}], s{T3}
s_mov_b32 s{T6}, s{T2}""")

def kgen(a, cfg):
    W1, W2, V8, V2, WW = 60, 62, 64, 66, 68
    G = 70
    FA, FB = 86, 88
    TM = [90, 92, 94, 96]
    PK = 98
    BF = 104
    AF = 120
    ACC = 136
    DT, ER, TH = 148, 149, 150
    AW, AR = 2, 3
    hi = f2u(LOG2E); lo = f2u(LOG2E - struct.unpack("<f", struct.pack("<I", hi))[0])
    a(f"""s_sub_u32 s{T2}, s{S_W}, 4
s_cmp_ge_u32 s{T2}, s{S_NCH}
s_cbranch_scc1 L_kgen_done
s_mov_b32 s{S_C1}, {hx(hi)}
s_mov_b32 s{S_C2}, {hx(lo)}
s_mov_b32 s{S_C3}, {hx(f2u(math.log(2)))}
s_mov_b32 s{S_C4}, {hx(f2u(1/(2*math.pi)))}
s_bitcmp1_b32 s{T6}, 0
s_cbranch_scc0 L_kg_lo
s_lshr_b32 s{S_LDT}, s{S_LDT}, 16""")
    a.label("L_kg_lo")
    a(f"""s_lshl_b32 s{S_LDT}, s{S_LDT}, 16
s_mul_i32 s{T3}, s{T2}, {SCR_SZ}
s_add_u32 s{T3}, s{T3}, {L_SCR}
v_lshl_add_u32 v{AW}, v0, 2, s{T3}
v_and_b32 v4, 15, v0
v_mul_u32_u24 v4, 272, v4
v_lshrrev_b32 v5, 4, v0
v_lshl_add_u32 v4, v5, 4, v4
v_add_u32 v{AR}, s{T3}, v4
v_mov_b32 v6, s{S_LDT}""")
    acc_exp(a, DT, "v6", 4)
    a(f"v_cvt_pk_bf16_f32 v{DT}, v{DT}, v{DT}\nv_lshlrev_b32 v{DT}, 16, v{DT}")
    for i in range(12): a(f"v_mov_b32 v{ACC+i}, 0")
    a(f"s_mov_b32 s{T4}, 0")
    a.label("L_kg_round")
    for i in range(4): a(f"v_lshlrev_b32 v{PK+i}, 16, v{KP+i}")
    acc_exp(a, ER, f"v{PK}", 4)
    a(f"""v_cvt_pk_bf16_f32 v{ER}, v{ER}, v{ER}
v_mul_f32 v{TH}, v{PK+1}, v{DT}
v_lshlrev_b32 v{ER}, 16, v{ER}
v_mul_f32 v{G}, v{PK+2}, v{DT}
v_mul_f32 v{ER}, v{ER}, v{DT}
v_mul_f32 v{G+1}, v{PK+3}, v{DT}
v_mul_f32 v{ER}, s{S_C1}, -v{ER}
v_mul_f32 v{TH}, s{S_C4}, v{TH}
v_add_f32 v{G}, v{G}, v{G}
v_add_f32 v{G+1}, v{G+1}, v{G+1}""")
    for k, (dst, p) in enumerate(((W1, 1.0), (V8, 8.0), (WW, 128.0))):
        t = TM[k]
        if p == 1.0:
            a(f"v_exp_f32 v{t}, v{ER}\nv_fract_f32 v{t+1}, v{TH}")
        else:
            a(f"v_mul_f32 v{t}, {hx(f2u(p))}, v{ER}\nv_mul_f32 v{t+1}, {hx(f2u(p))}, v{TH}\nv_exp_f32 v{t}, v{t}\nv_fract_f32 v{t+1}, v{t+1}")
        a(f"s_nop 0\nv_cos_f32 v{dst}, v{t+1}\nv_sin_f32 v{dst+1}, v{t+1}\ns_nop 0\nv_mul_f32 v{dst}, v{dst}, v{t}\nv_mul_f32 v{dst+1}, v{dst+1}, v{t}")
    pk = [0]
    def put(row, src, neg):
        r = PK + (pk[0] & 3); pk[0] += 1
        a(f"v_cvt_pk_bf16_f32 v{r}, v{src}, {'-' if neg else ''}v{src+1}\nds_write_b32 v{AW}, v{r} offset:{272*row}")
    a(f"v_mov_b32 v{PK}, 0x3f80\nds_write_b32 v{AW}, v{PK}")
    pk[0] = 1
    cmul_multi(a, [(W2, W1, W1), (V2, V8, V8), (G+2, G, W1)], TM)
    put(1, V8, True); put(2, V2, True)
    fa, fb = V8, V2
    for k in range(7):
        items = [(FA, fa, V2)]
        if k < 6: items.append((FB, fb, V2))
        if k < 3: items += [(G+4+4*k, G+4*k, W2), (G+6+4*k, G+2+4*k, W2)]
        cmul_multi(a, items, TM)
        put(3+2*k, FA, True)
        if k < 6: put(4+2*k, FB, True)
        fa, fb = FA, FB
    for ks in range(4): a(f"ds_read_b128 {vr(BF+4*ks,4)}, v{AR} offset:{64*ks}")
    def tile(T):
        for ks in range(4): a(f"ds_read_b128 {vr(AF+4*ks,4)}, v{AR} offset:{64*ks}")
    def mm(T):
        for ks in range(4):
            a(f"s_waitcnt lgkmcnt({3-ks})\nv_mfma_f32_16x16x32_bf16 {vr(ACC+4*T,4)}, {vr(AF+4*ks,4)}, {vr(BF+4*ks,4)}, {vr(ACC+4*T,4)}")
    for g in range(8): put(g, G+2*g, False)
    cmul_multi(a, [(G+2*g, G+2*g, WW) for g in range(8)], TM)
    for g in range(8): put(8+g, G+2*g, False)
    tile(0)
    ev = [0, 2, 4, 6]
    cmul_multi(a, [(G+2*g, G+2*g, WW) for g in ev], TM)
    mm(0)
    for i, g in enumerate(ev): put(i, G+2*g, False)
    cmul_multi(a, [(G+2*g, G+2*g, WW) for g in ev], TM)
    for i, g in enumerate(ev): put(4+i, G+2*g, False)
    for al in range(4):
        cmul_multi(a, [(G, G, WW), (G+8, G+8, WW)], TM)
        put(8+2*al, G, False); put(9+2*al, G+8, False)
    tile(1)
    cmul_multi(a, [(G, G, WW), (W2, WW, WW)], TM)
    mm(1)
    cmul_multi(a, [(G+2, G, WW)], TM)
    put(0, G, False); put(1, G+2, False)
    for k in range(1, 4):
        cmul_multi(a, [(G, G, W2), (G+2, G+2, W2)], TM)
        put(2*k, G, False); put(2*k+1, G+2, False)
    cmul_multi(a, [(G, G, W2)], TM)
    put(8, G, False)
    tile(2)
    mm(2)
    for i in range(4): a(f"v_lshrrev_b32 v{KP+i}, 16, v{KP+i}")
    a(f"""s_add_u32 s{T4}, s{T4}, 1
s_cmp_lt_u32 s{T4}, 2
s_cbranch_scc1 L_kg_round""")
    a(f"""s_mul_i32 s{T3}, s{T2}, {TBL_SZ}
s_add_u32 s{T3}, s{T3}, {L_TBL}
v_and_b32 v4, 15, v0
v_lshrrev_b32 v5, 4, v0
v_lshrrev_b32 v6, 1, v5
v_and_b32 v7, 1, v5
v_lshlrev_b32 v8, 8, v6
v_lshl_add_u32 v8, v7, 3, v8
v_lshl_add_u32 v8, v4, 4, v8
v_add_u32 v8, s{T3}, v8
v_lshlrev_b32 v9, 7, v5
v_lshl_add_u32 v9, v4, 3, v9
v_add_u32 v10, 4, v9
v_lshlrev_b32 v11, 7, v7
v_lshl_add_u32 v11, v4, 2, v11
v_add_u32 v11, 256, v11
v_add_u32 v12, 64, v11
v_cmp_lt_u32 vcc, 1, v5
v_lshlrev_b32 v13, 7, v5
v_lshl_add_u32 v13, v4, 1, v13
v_cndmask_b32 v9, v9, v11, vcc
v_cndmask_b32 v10, v10, v12, vcc
v_add_u32 v13, s{T3}, v13
v_add_u32 v9, s{T3}, v9
v_add_u32 v10, s{T3}, v10
v_mov_b32 v14, 0
v_mov_b32 v15, 0
v_mov_b32 v4, s{T3}""")
    for i in range(6): a(f"v_cvt_pk_bf16_f32 v{PK+i}, v{ACC+2*i}, v{ACC+2*i+1}")
    a(f"""ds_write_b64 v4, v[14:15]
ds_write_b64 v8, v[{PK}:{PK+1}] offset:8
ds_write_b32 v9, v{PK+2} offset:{8+512}
ds_write_b32 v10, v{PK+3} offset:{8+512}
ds_write_b16 v13, v{PK+4} offset:{8+1024}
ds_write_b16_d16_hi v13, v{PK+4} offset:{8+1024+32}
ds_write_b16 v13, v{PK+5} offset:{8+1024+64}
ds_write_b16_d16_hi v13, v{PK+5} offset:{8+1024+96}""")
    a.label("L_kgen_done")

def expand(a, cfg):
    AD = 60; E = 72; O = 80; LF = 86
    a(f"""s_sub_u32 s{T2}, s{S_W}, 4
s_lshl_b32 s{T3}, s{T2}, 9
s_sub_u32 s{T3}, 2048, s{T3}
v_lshlrev_b32 v4, 3, v0
v_sub_u32 v4, s{T3}, v4
v_cvt_f32_u32 v5, v4
s_mov_b32 s{T4}, {hx(L_TBL + 8 - 2*17024)}
s_mov_b32 s{T5}, {L_TBL + 8 + 256}
v_lshlrev_b32 v6, 1, v4
v_add_u32 v6, {L_TBL + 8}, v6""")
    for e in range(12):
        a(f"v_subrev_f32 v{LF+e}, {hx(f2u(float(e)))}, v5")
        if e >= 9: a(f"v_max_f32 v{LF+e}, 0, v{LF+e}")
    for k in range(6): a(f"v_cvt_pk_bf16_f32 v{E+k}, v{LF+2*k}, v{LF+2*k+1}")
    for e in range(12):
        a(f"v_mad_u32_u16 v{AD+e}, v{E+(e>>1)}, 2, s{T4} op_sel:[{e&1},0,0,0]")
        a(f"v_subrev_u32 v{LF+e}, {2*e}, v6")
    for e in range(12): a(f"v_med3_i32 v{AD+e}, v{AD+e}, v{LF+e}, s{T5}")
    a(f"""s_lshl_b32 s{T3}, s{T2}, 10
s_add_u32 s{T3}, s{T3}, {L_CP}
v_lshl_add_u32 v4, v0, 4, s{T3}""")
    for c in range(3):
        for e in range(12):
            a(f"ds_read_u16{'_d16_hi' if e & 1 else ''} v{(LF if e & 1 else E)+(e>>1)}, v{AD+e} offset:{c*TBL_SZ}")
        a(f"v_add_u32 v5, {c*CP_CH + 2*CP_C}, v4\nv_add_u32 v6, {c*CP_CH + 3*CP_C}, v4\ns_waitcnt lgkmcnt(0)")
        for k in range(6): a(f"v_or_b32 v{E+k}, v{E+k}, v{LF+k}")
        for k in range(5): a(f"v_alignbit_b32 v{O+k}, v{E+k+1}, v{E+k}, 16")
        a(f"""ds_write_b128 v4, {vr(E,4)} offset:{c*CP_CH}
ds_write2_b32 v5, v{E+1}, v{E+2} offset0:0 offset1:1
ds_write2_b32 v5, v{E+3}, v{E+4} offset0:2 offset1:3
ds_write_b128 v4, {vr(O,4)} offset:{c*CP_CH + CP_C}
ds_write2_b32 v6, v{O+1}, v{O+2} offset0:0 offset1:1
ds_write2_b32 v6, v{O+3}, v{O+4} offset0:2 offset1:3""")
    a(f"""s_cmp_lg_u32 s{S_W}, 7
s_cbranch_scc1 L_exp_done
v_lshrrev_b32 v5, 3, v0
v_mul_u32_u24 v6, {CP_CH}, v5
v_bfe_u32 v7, v0, 1, 2
v_mul_u32_u24 v7, {CP_C}, v7
v_and_b32 v8, 1, v0
v_lshl_add_u32 v7, v8, 4, v7
v_add_u32 v6, v6, v7
v_add_u32 v6, {L_CP + 4096}, v6
v_mov_b32 v8, 0
v_mov_b32 v9, 0
v_mov_b32 v10, 0
v_mov_b32 v11, 0
v_mul_u32_u24 v12, {TBL_SZ}, v0
v_add_u32 v12, {L_TBL + 8}, v12
v_mul_u32_u24 v13, {CP_CH}, v0
s_mov_b64 exec, 7
ds_read_u16 v12, v12
s_mov_b64 exec, 0xffffff
ds_write_b128 v6, v[8:11]
s_mov_b64 exec, 7
v_add_u32 v13, {L_CP + 4096}, v13
s_waitcnt lgkmcnt(0)
ds_write_b16 v13, v12
s_mov_b64 exec, -1""")
    a.label("L_exp_done")

def role_w456(a, cfg):
    wk_dma(a)
    kgen_loads(a)
    a(f"s_cmp_eq_u32 s{S_W}, 6\ns_cbranch_scc1 L_w6_nodma")
    w_dma_typed(a, "q4", P_WQ)
    x_addr(a, 2)
    x_loads(a, 2, 10)
    finish_nonce(a)
    a("s_waitcnt vmcnt(30)\ns_branch L_w456_b0")
    a.label("L_w6_nodma")
    x_addr(a, 2)
    x_loads(a, 2, 10)
    finish_nonce(a)
    a("s_waitcnt vmcnt(10)")
    a.label("L_w456_b0")
    a("s_barrier")
    stamp(a, cfg, 1)
    kgen(a, cfg)
    stamp(a, cfg, 2)
    a("s_waitcnt lgkmcnt(0)\ns_barrier")
    a("s_branch L_expand")

def role_w7(a, cfg):
    for i in range(5): div10_offsets(a, 8+i, None, 64*i, 2, False)
    srd(a, SA, P_U, 2048*1280)
    a(f"""s_mul_i32 s{T2}, s{S_J}, {64*1280}
s_mul_i32 s{T3}, s{S_XCD}, 160
s_add_u32 s{T2}, s{T2}, s{T3}
s_add_u32 s{T3}, s{T2}, 40960
s_mov_b32 m0, {L_UST}
s_nop 0""")
    for i in range(10):
        a(f"buffer_load_dwordx4 v{8+i%5}, s[{SA}:{SA+3}], s{T2 if i < 5 else T3} offen lds")
        a(f"s_add_u32 m0, m0, 1024\ns_nop 0")
    wk_dma(a)
    finish_nonce(a)
    a(f"""v_and_b32 v2, 3, v0
v_lshrrev_b32 v3, 4, v0
v_lshl_add_u32 v2, v3, 2, v2
v_and_b32 v3, 7, v2
v_lshrrev_b32 v4, 3, v2
v_bfe_u32 v5, v0, 2, 2
v_lshl_add_u32 v5, v3, 3, v5
v_mul_u32_u24 v5, 160, v5
v_lshl_add_u32 v5, v4, 3, v5
v_add_u32 v5, {L_UST}, v5
v_bfe_u32 v6, v0, 2, 2
v_lshrrev_b32 v7, 4, v0
v_lshl_add_u32 v6, v7, 2, v6
v_and_b32 v7, 7, v6
v_lshrrev_b32 v6, 3, v6
v_and_b32 v3, 3, v0
v_lshl_add_u32 v6, v6, 2, v3
v_lshlrev_b32 v6, 12, v6
v_lshl_add_u32 v6, v7, 4, v6
s_mul_i32 s{T2}, s{S_XCD}, {80*4096}
s_lshl_b32 s{T3}, s{S_J}, 7
s_add_u32 s{T2}, s{T2}, s{T3}
s_add_u32 s{T2}, s{T2}, {W_UT}
s_waitcnt vmcnt(0)
s_barrier""")
    stamp(a, cfg, 1)
    UR = 60
    for i in range(10):
        for hf in range(2):
            a(f"ds_read_b64_tr_b16 {vr(UR+4*i+2*hf,2)}, v5 offset:{16*i + 640*hf}")
        if i >= 5:
            k = i - 5
            a(f"s_waitcnt lgkmcnt(10)\nbuffer_store_dwordx4 {vr(UR+4*k,4)}, v6, s[{SWS}:{SWS+3}], s{T2} offen sc1\ns_add_u32 s{T2}, s{T2}, 32768")
    for k in range(5, 10):
        a(f"s_waitcnt lgkmcnt({2*(9-k)})\nbuffer_store_dwordx4 {vr(UR+4*k,4)}, v6, s[{SWS}:{SWS+3}], s{T2} offen sc1\ns_add_u32 s{T2}, s{T2}, 32768")
    x_addr(a, 2)
    x_loads(a, 2, 10)
    a(f"""s_lshl_b32 s{T0}, s{S_XCD}, 8
s_lshl_b32 s{T2}, s{S_J}, 2
s_add_u32 s{T0}, s{T0}, s{T2}
s_add_u32 s{T0}, s{T0}, {W_FU}
v_mov_b32 v3, s{S_NONCE}
v_mov_b32 v4, 0
s_waitcnt vmcnt(10)
s_mov_b64 exec, 1
buffer_store_dword v3, v4, s[{SWS}:{SWS+3}], s{T0} offen sc1
s_mov_b64 exec, -1""")
    stamp(a, cfg, 2)
    a("s_barrier")
    a.label("L_expand")
    expand(a, cfg)
    stamp(a, cfg, 3)
    a("s_waitcnt vmcnt(0) lgkmcnt(0)\ns_barrier")

UTR = 200
def qproj(a, cfg):
    WR = 96; ACC = 140
    stamp(a, cfg, 4)
    a(f"s_cmp_lg_u32 s{S_W}, 7\ns_cbranch_scc1 L_q_nou")
    a(f"""s_lshl_b32 s{T0}, s{S_XCD}, 8
s_add_u32 s{T0}, s{T0}, {W_FU}
v_lshl_add_u32 v2, v0, 2, s{T0}""")
    poll(a, "u", 2, 1, 3, lanes=32)
    a(f"""s_lshl_b32 s{T0}, s{S_CH0}, 12
s_add_u32 s{T0}, s{T0}, {W_UT}
v_lshlrev_b32 v2, 4, v0""")
    for c in range(3):
        if c == 2: a(f"s_cmp_lt_u32 s{S_NCH}, 3\ns_cbranch_scc1 L_q_nou")
        for i in range(4):
            a(f"buffer_load_dwordx4 {vr(UTR+16*c+4*i,4)}, v2, s[{SWS}:{SWS+3}], s{T0} offen offset:{1024*i} sc1")
        a(f"s_add_u32 s{T0}, s{T0}, 4096")
    a.label("L_q_nou")
    stamp(a, cfg, 5)
    a(f"""v_lshrrev_b32 v2, 5, v0
v_lshlrev_b32 v2, 4, v2
v_bfe_u32 v3, v0, 4, 1
v_lshl_add_u32 v2, v3, 2, v2
v_bfe_u32 v3, v0, 2, 2
v_add_u32 v2, v2, v3
v_mul_u32_u24 v2, 160, v2
v_and_b32 v3, 3, v0
v_lshl_add_u32 v2, v3, 3, v2
s_mul_i32 s{T0}, s{S_KH}, 51200
v_add_u32 v2, s{T0}, v2""")
    def reads(i):
        b = WR + 20*(i & 1)
        for ct in range(5):
            for hf in range(2):
                a(f"ds_read_b64_tr_b16 {vr(b+4*ct+2*hf,2)}, v2 offset:{L_WQ + 5120*i + 1280*hf + 32*ct}")
    reads(0)
    a(f"s_cmp_eq_u32 s{S_W}, 7\ns_cbranch_scc1 L_q_nowait\ns_waitcnt vmcnt(0)")
    a.label("L_q_nowait")
    for i in range(10):
        b = WR + 20*(i & 1)
        if i + 1 < 10:
            nb = WR + 20*((i+1) & 1)
            for ct in range(5):
                a(f"s_waitcnt lgkmcnt({8 if ct < 5 else 0})" if ct == 0 else f"s_waitcnt lgkmcnt(8)")
                c = "0" if i == 0 else vr(ACC+4*ct, 4)
                a(f"v_mfma_f32_16x16x32_bf16 {vr(ACC+4*ct,4)}, {vr(b+4*ct,4)}, {vr(XF+4*i,4)}, {c}")
                for hf in range(2):
                    a(f"ds_read_b64_tr_b16 {vr(nb+4*ct+2*hf,2)}, v2 offset:{L_WQ + 5120*(i+1) + 1280*hf + 32*ct}")
        else:
            for ct in range(5):
                a(f"s_waitcnt lgkmcnt({8-2*ct})")
                a(f"v_mfma_f32_16x16x32_bf16 {vr(ACC+4*ct,4)}, {vr(b+4*ct,4)}, {vr(XF+4*i,4)}, {vr(ACC+4*ct,4)}")
    stamp(a, cfg, 6)
    a(f"s_cmp_lg_u32 s{S_W}, 6\ns_cbranch_scc1 L_q_nokv")
    a(f"""s_lshl_b32 s{T0}, s{S_XCD}, 10
s_add_u32 s{T0}, s{T0}, {W_FKV}
v_lshl_add_u32 v3, v0, 4, s{T0}""")
    poll(a, "kv", 3, 4, 4)
    a.label("L_q_nokv")
    a(f"""s_and_b32 s{T0}, s{S_W}, 3
s_mul_i32 s{T1}, s{T0}, 5120
s_add_u32 s{T1}, s{T1}, {L_QX}
v_lshl_add_u32 v3, v0, 4, s{T1}
s_mul_i32 s{T1}, s{T0}, 2560
s_add_u32 s{T1}, s{T1}, {L_QST}
v_and_b32 v4, 15, v0
v_mul_u32_u24 v4, 160, v4
v_lshrrev_b32 v5, 4, v0
v_lshl_add_u32 v4, v5, 3, v4
v_add_u32 v4, s{T1}, v4
s_mov_b32 s{T2}, {hx(f2u(LOG2E/math.sqrt(20.0)))}
s_barrier""")
    stamp(a, cfg, 7)
    a(f"s_cmp_eq_u32 s{S_KH}, 0\ns_cbranch_scc0 L_qx_hi")
    for kh in range(2):
        if kh: a.label("L_qx_hi")
        send = [3, 4] if kh == 0 else [0, 1, 2]
        keep = [0, 1, 2] if kh == 0 else [3, 4]
        for ct in send: a(f"ds_write_b128 v3, {vr(ACC+4*ct,4)} offset:{1024*ct}")
        a("s_waitcnt lgkmcnt(0)\ns_barrier")
        for ct in keep: a(f"ds_read_b128 {vr(WR+4*ct,4)}, v3 offset:{1024*ct}")
        for n, ct in enumerate(keep):
            a(f"s_waitcnt lgkmcnt({len(keep)-1-n})")
            for j in range(4): a(f"v_add_f32 v{WR+4*ct+j}, v{WR+4*ct+j}, v{ACC+4*ct+j}")
            for j in range(4): a(f"v_mul_f32 v{WR+4*ct+j}, s{T2}, v{WR+4*ct+j}")
            a(f"v_cvt_pk_bf16_f32 v{ACC+4*ct}, v{WR+4*ct}, v{WR+4*ct+1}\nv_cvt_pk_bf16_f32 v{ACC+4*ct+1}, v{WR+4*ct+2}, v{WR+4*ct+3}")
        for ct in keep: a(f"ds_write_b64 v4, {vr(ACC+4*ct,2)} offset:{32*ct}")
        if kh == 0: a("s_branch L_qx_done")
    a.label("L_qx_done")
    a("s_waitcnt lgkmcnt(0)\ns_barrier")
    stamp(a, cfg, 8)

class AR: pass
AR.S = [8, 40]; AR.CZ = 72; AR.OA = 104; AR.OB = 120
AR.K16 = 136; AR.K4 = 140; AR.V0 = 144; AR.V1 = 148
AR.IDX = 152; AR.aK16 = 153; AR.aK4 = 154; AR.aV = 155
AR.QA = 156; AR.QB = 160; AR.Q4 = 164

def kv_dma(a, first, n):
    a(f"""s_lshl_b32 s{T0}, s{S_W}, 10
s_add_u32 s{T0}, s{T0}, {first*1024}
s_mov_b32 m0, s{T0}
s_add_u32 s{T0}, s{T0}, {W_KV}""")
    for i in range(n):
        a(f"buffer_load_dwordx4 v1, s[{SWS}:{SWS+3}], s{T0} offen sc1 lds")
        if i < n - 1: a(f"s_add_u32 m0, m0, 8192\ns_add_u32 s{T0}, s{T0}, 8192")

def post_q(a, cfg):
    kv_dma(a, 0, 10)
    a(f"""s_and_b32 s{T0}, s{S_W}, 3
s_mul_i32 s{T1}, s{T0}, 2560
s_add_u32 s{T1}, s{T1}, {L_QST}
v_and_b32 v2, 15, v0
v_mul_u32_u24 v2, 160, v2
v_bfe_u32 v3, v0, 4, 1
v_mul_u32_u24 v3, 40, v3
v_add3_u32 v2, v2, v3, s{T1}
v_lshrrev_b32 v3, 5, v0
v_lshl_add_u32 v4, v3, 4, v2
v_mul_u32_u24 v3, 80, v3
v_add_u32 v3, v2, v3
ds_read2_b64 {vr(AR.QA,4)}, v4 offset0:0 offset1:1
ds_read2_b64 {vr(AR.QB,4)}, v4 offset0:10 offset1:11
ds_read_b64 {vr(AR.Q4,2)}, v3 offset:32""")
    for c in range(3):
        a(f"""s_add_u32 s{T2}, s{S_CH0}, {c}
s_min_u32 s{T2}, s{T2}, 639
s_lshl_b32 s{T2}, s{T2}, 1
s_and_b32 s{T2}, s{T2}, 0xfffffffc
s_load_dword s{S_D0+c}, s[{P_DSK}:{P_DSK+1}], s{T2}""")
    a(f"""s_cmp_lg_u32 s{S_W}, 7
s_cbranch_scc1 L_pq_not7
v_add_u32 v2, {L_UT + 512}, v1
s_waitcnt vmcnt(10)""")
    for c in range(3):
        for i in range(4): a(f"ds_write_b128 v2, {vr(UTR+16*c+4*i,4)} offset:{UT_CH*c + 1024*i}")
    a("s_branch L_pq_done")
    a.label("L_pq_not7")
    a(f"""s_cmp_lg_u32 s{S_W}, 6
s_cbranch_scc1 L_pq_not6
v_lshlrev_b32 v2, 3, v0
v_add_u32 v2, {L_UT}, v2
v_mov_b32 v4, 0
v_mov_b32 v5, 0""")
    for c in range(3): a(f"ds_write_b64 v2, v[4:5] offset:{UT_CH*c}")
    a.label("L_pq_not6")
    if cfg.nonce_update:
        a(f"""s_or_b32 s{T2}, s2, s{S_W}
s_cmp_lg_u32 s{T2}, 0
s_cbranch_scc1 L_pq_done
v_mov_b32 v2, {W_NONCE}
v_mov_b32 v3, s{S_NONCE}
s_mov_b64 exec, 1
buffer_store_dword v3, v2, s[{SWS}:{SWS+3}], 0 offen
s_mov_b64 exec, -1""")
    a.label("L_pq_done")
    a("s_waitcnt lgkmcnt(0)")
    for c in range(3):
        a(f"""s_add_u32 s{T2}, s{S_CH0}, {c}
s_min_u32 s{T2}, s{T2}, 639
s_and_b32 s{T2}, s{T2}, 1
s_lshl_b32 s{T2}, s{T2}, 4
s_lshr_b32 s{S_D0+c}, s{S_D0+c}, s{T2}
s_lshl_b32 s{S_D0+c}, s{S_D0+c}, 16""")
    a("s_barrier")
    dump_lds(a, cfg, "b4", 81920, 10)
    stamp(a, cfg, 9)

def conv(a, cfg):
    ACC = 8; AF = 40; BF = 72
    tab = {0: (2, 0, 4), 1: (2, 4, 4), 2: (0, 0, 3), 3: (0, 3, 3), 4: (0, 6, 2), 5: (1, 6, 2), 6: (1, 0, 3), 7: (1, 3, 3)}
    chp = sum(tab[w][0] << (4*w) for w in range(8)); r0p = sum(tab[w][1] << (4*w) for w in range(8)); cnp = sum(tab[w][2] << (4*w) for w in range(8))
    a(f"""s_lshl_b32 s{T0}, s{S_W}, 2
s_lshr_b32 s{T1}, {hx(chp)}, s{T0}
s_and_b32 s{T1}, s{T1}, 15
s_lshr_b32 s{T2}, {hx(r0p)}, s{T0}
s_and_b32 s{T2}, s{T2}, 15
s_lshr_b32 s{T3}, {hx(cnp)}, s{T0}
s_and_b32 s{T3}, s{T3}, 15""")
    for i in range(32): a(f"v_mov_b32 v{ACC+i}, 0")
    a(f"""s_cmp_ge_u32 s{T1}, s{S_NCH}
s_cbranch_scc1 L_conv_done
s_mul_i32 s{T4}, s{T1}, {CP_CH}
s_lshl_b32 s{T5}, s{T2}, 6
s_sub_u32 s{T4}, s{T4}, s{T5}
s_add_u32 s{T4}, s{T4}, {L_CP + 2*2032 - 512*7}
s_mul_i32 s{T6}, s{T1}, {UT_CH}
s_sub_u32 s{T6}, s{T6}, s{T5}
s_add_u32 s{T6}, s{T6}, {L_UT + 480}
v_and_b32 v2, 15, v0
v_lshrrev_b32 v3, 4, v0
v_sub_u32 v4, 0, v2
v_and_b32 v4, 3, v4
v_add_u32 v5, v2, v4
v_mul_u32_u24 v4, {CP_C}, v4
v_lshlrev_b32 v5, 1, v5
v_sub_u32 v4, v4, v5
v_lshl_add_u32 v4, v3, 4, v4
v_add_u32 v4, s{T4}, v4
v_lshlrev_b32 v5, 5, v2
v_lshl_add_u32 v5, v3, 4, v5
v_add_u32 v5, s{T6}, v5""")
    a.label("L_conv_task")
    def reads(i):
        a(f"ds_read_b128 {vr(BF+4*i,4)}, v5 offset:{512*i}")
        a(f"ds_read_b64 {vr(AF+4*i,2)}, v4 offset:{512*(7-i)}")
        a(f"ds_read_b64 {vr(AF+4*i+2,2)}, v4 offset:{512*(7-i)+8}")
    for i in range(5): reads(i)
    for i in range(8):
        issued = min(8, i + 5)
        a(f"s_waitcnt lgkmcnt({3*(issued - i - 1)})")
        first = True
        for j in range(i + 1):
            a(f"v_mfma_f32_16x16x32_bf16 {vr(ACC+4*i,4)}, {vr(AF+4*j,4)}, {vr(BF+4*(i-j),4)}, {vr(ACC+4*i,4)}")
            if first and i + 5 < 8: reads(i + 5)
            first = False
    a(f"""v_subrev_u32 v4, 64, v4
v_subrev_u32 v5, 64, v5
s_sub_u32 s{T3}, s{T3}, 1
s_cmp_lg_u32 s{T3}, 0
s_cbranch_scc1 L_conv_task""")
    a.label("L_conv_done")
    stamp(a, cfg, 10)
    a(f"""v_and_b32 v2, 15, v0
v_lshrrev_b32 v3, 4, v0
v_lshl_add_u32 v2, v3, 2, v2
v_and_b32 v2, 15, v2
v_lshl_add_u32 v2, v3, 4, v2
s_lshl_b32 s{T0}, s{S_W}, 13
s_add_u32 s{T0}, s{T0}, {L_PART}
v_lshl_add_u32 v2, v2, 4, s{T0}
v_lshrrev_b32 v3, 2, v0
v_and_b32 v4, 3, v0
v_lshl_add_u32 v3, v4, 2, v3
v_and_b32 v3, 15, v3
v_lshl_add_u32 v3, v4, 4, v3
s_lshl_b32 s{T0}, s{S_W}, 10
s_add_u32 s{T0}, s{T0}, {L_PART}
v_lshl_add_u32 v3, v3, 4, s{T0}
s_lshl_b32 s{T0}, s{S_W}, 9
v_lshl_add_u32 v4, v0, 3, s{T0}
v_add_u32 v5, {L_UT + 512}, v4
s_lshl_b32 s{T1}, s{S_CH0}, 12
s_add_u32 s{T1}, s{T1}, {W_YT}
s_barrier""")
    for i in range(8): a(f"ds_write_b128 v2, {vr(ACC+4*i,4)} offset:{1024*i}")
    a("s_waitcnt lgkmcnt(0)\ns_barrier")
    src = {0: [2, 3, 4], 1: [5, 6, 7], 2: [0, 1]}
    PR = 40
    for c in range(3):
        if c == 2: a(f"s_cmp_lt_u32 s{S_NCH}, 3\ns_cbranch_scc1 L_y_done")
        b = PR + 16*c
        for n, w in enumerate(src[c]): a(f"ds_read_b128 {vr(b+4*n,4)}, v3 offset:{8192*w}")
        a(f"ds_read_b64 {vr(b+12,2)}, v5 offset:{UT_CH*c}\ns_waitcnt lgkmcnt(0)")
        a(f"""v_lshlrev_b32 v{b+14}, 16, v{b+12}
v_and_b32 v{b+12}, 0xffff0000, v{b+12}
v_lshlrev_b32 v{b+15}, 16, v{b+13}
v_and_b32 v{b+13}, 0xffff0000, v{b+13}""")
        us = [b+14, b+12, b+15, b+13]
        for j in range(4):
            a(f"v_add_f32 v{b+j}, v{b+j}, v{b+4+j}")
        if len(src[c]) == 3:
            for j in range(4): a(f"v_add_f32 v{b+j}, v{b+j}, v{b+8+j}")
        for j in range(4): a(f"v_fma_f32 v{b+j}, v{us[j]}, s{S_D0+c}, v{b+j}")
        a(f"""v_cvt_pk_bf16_f32 v{b+4}, v{b}, v{b+1}
v_cvt_pk_bf16_f32 v{b+5}, v{b+2}, v{b+3}
buffer_store_dwordx2 {vr(b+4,2)}, v4, s[{SWS}:{SWS+3}], s{T1} offen sc1
s_add_u32 s{T1}, s{T1}, 4096""")
    a("s_waitcnt vmcnt(3)\ns_branch L_y_b7")
    a.label("L_y_done")
    a("s_waitcnt vmcnt(2)")
    a.label("L_y_b7")
    a("s_barrier")
    stamp(a, cfg, 11)
    kv_dma(a, 80, 10)

def attn_half(a, cur, par, oK16, oV0, oV1, oK4):
    R = AR; S = R.S[cur]; N = R.S[1-cur]
    e = lambda k: a(f"v_exp_f32 v{S+k}, v{S+k} ; PHYS")
    def vread(dst, off):
        a(f"s_mov_b64 exec, s[{VM}:{VM+1}]\nds_read_b128 {vr(dst,4)}, v{R.aV} offset:{off}\ns_mov_b64 exec, -1")
    a("s_waitcnt lgkmcnt(1)")
    a(f"v_mfma_f32_32x32x16_bf16 {vr(N,16)}, {vr(R.K16,4)}, {vr(R.QA,4)}, {vr(R.CZ,16)}")
    for k in range(0, 4): e(k)
    a(f"v_smfmac_f32_32x32x32_bf16 {vr(R.OB,16)}, {vr(R.V1,4)}, {vr(N+24,8)}, v{R.IDX}")
    vread(R.V1, oV1)
    for k in range(4, 8): e(k)
    a(f"v_mfma_f32_32x32x16_bf16 {vr(N+16,16)}, {vr(R.K16,4)}, {vr(R.QB,4)}, {vr(R.CZ+16,16)}")
    a(f"ds_read_b128 {vr(R.K16,4)}, v{R.aK16} offset:{oK16}")
    for k in range(8, 12): e(k)
    a("s_waitcnt lgkmcnt(2)")
    a(f"v_smfmac_f32_32x32x32_bf16 {vr(R.OA,16)}, {vr(R.V0,4)}, {vr(S,8)}, v{R.IDX}")
    for k in range(12, 16): e(k)
    a(f"v_mfma_f32_32x32x4bf16_1k {vr(N,32)}, {vr(R.K4,2)}, {vr(R.Q4,2)}, {vr(N,32)} cbsz:1 abid:{1-par} ; PHYS")
    if oK4 is not None: a(f"ds_read_b64 {vr(R.K4,2)}, v{R.aK4} offset:{oK4}")
    for k in range(16, 24): e(k)
    a(f"s_waitcnt lgkmcnt({1 + (oK4 is not None)})")
    a(f"v_smfmac_f32_32x32x32_bf16 {vr(R.OA,16)}, {vr(R.V1,4)}, {vr(S+8,8)}, v{R.IDX}")
    for k in range(24, 28): e(k)
    a(f"v_smfmac_f32_32x32x32_bf16 {vr(R.OB,16)}, {vr(R.V0,4)}, {vr(S+16,8)}, v{R.IDX}")
    vread(R.V0, oV0)
    for k in range(28, 32): e(k)

def attention(a, cfg):
    R = AR
    for i in range(32): a(f"v_mov_b32 v{R.CZ+i}, 0")
    a.label("L_attn_start")
    a(f"""s_mul_i32 s{T0}, s{S_KH}, {BLK}
v_add_u32 v{R.aK16}, s{T0}, v1
v_lshl_add_u32 v{R.aK4}, v0, 3, s{T0}
v_and_b32 v2, 31, v0
v_lshrrev_b32 v3, 5, v0
v_mul_u32_u24 v3, 320, v3
v_lshl_add_u32 v2, v2, 4, v3
v_add_u32 v{R.aV}, s{T0}, v2
ds_read_b128 {vr(R.K16,4)}, v{R.aK16}
ds_read_b64 {vr(R.K4,2)}, v{R.aK4} offset:2048
v_mov_b32 v{R.IDX}, 0xdddd""")
    for i in range(32): a(f"v_mov_b32 v{R.OA+i}, 0")
    for i in range(8): a(f"v_mov_b32 v{R.V0+i}, 0\nv_mov_b32 v{R.S[1]+24+i}, 0")
    a(f"s_mov_b32 exec_lo, 0x00100000\ns_mov_b32 exec_hi, 0x00100000")
    for i in range(8): a(f"v_mov_b32 v{R.V0+i}, 0x3f803f80")
    a(f"""s_mov_b64 exec, -1
s_waitcnt lgkmcnt(0)
v_mfma_f32_32x32x16_bf16 {vr(R.S[0],16)}, {vr(R.K16,4)}, {vr(R.QA,4)}, {vr(R.CZ,16)}
v_mfma_f32_32x32x16_bf16 {vr(R.S[0]+16,16)}, {vr(R.K16,4)}, {vr(R.QB,4)}, {vr(R.CZ+16,16)}
ds_read_b128 {vr(R.K16,4)}, v{R.aK16} offset:1024
s_mov_b64 exec, s[{VM}:{VM+1}]
ds_read_b128 {vr(R.V0,4)}, v{R.aV} offset:2560
s_mov_b64 exec, -1
s_nop 7
v_mfma_f32_32x32x4bf16_1k {vr(R.S[0],32)}, {vr(R.K4,2)}, {vr(R.Q4,2)}, {vr(R.S[0],32)} cbsz:1 abid:0
s_mov_b32 s{S_IT}, 0
s_nop 15
s_nop 2""")
    stamp(a, cfg, 12)
    a.label("L_attn_loop")
    ST = 2*BLK
    for b in range(4):
        base = b*ST; nxt = base + ST
        attn_half(a, 0, 0, nxt, base + 2560 + 1280, base + 2560 + 640, nxt + 2048)
        attn_half(a, 1, 1, nxt + 1024, nxt + 2560, base + 2560 + 1920, None)
    a(f"""v_add_u32 v{R.aK16}, {4*ST}, v{R.aK16}
v_add_u32 v{R.aK4}, {4*ST}, v{R.aK4}
v_add_u32 v{R.aV}, {4*ST}, v{R.aV}
s_add_u32 s{S_IT}, s{S_IT}, 1
s_cmp_lg_u32 s{S_IT}, 1
s_cbranch_scc1 L_attn_next
s_waitcnt vmcnt(0)
s_cmp_lg_u32 s{S_FB}, 0
s_cbranch_scc1 L_attn_noflag
s_lshl_b32 s{T0}, s{S_XCD}, 10
s_lshl_b32 s{T1}, s{S_J}, 5
s_add_u32 s{T0}, s{T0}, s{T1}
s_lshl_b32 s{T1}, s{S_W}, 2
s_add_u32 s{T0}, s{T0}, s{T1}
s_add_u32 s{T0}, s{T0}, {W_FY}
v_mov_b32 v2, s{S_NONCE}
v_mov_b32 v3, 0
s_mov_b64 exec, 1
buffer_store_dword v2, v3, s[{SWS}:{SWS+3}], s{T0} offen sc1
s_mov_b64 exec, -1""")
    a.label("L_attn_noflag")
    a("s_barrier")
    a.label("L_attn_next")
    a(f"""s_cmp_lt_u32 s{S_IT}, 4
s_cbranch_scc1 L_attn_loop
v_smfmac_f32_32x32x32_bf16 {vr(R.OB,16)}, {vr(R.V1,4)}, {vr(R.S[1]+24,8)}, v{R.IDX}""")

def o_finish(a, cfg):
    R = AR
    X = 8; Y = 24
    stamp(a, cfg, 13)
    a(f"""s_mul_i32 s{T0}, s{S_W}, 3072
s_add_u32 s{T0}, s{T0}, {L_XCH}
v_add_u32 v2, s{T0}, v1
s_xor_b32 s{T0}, s{S_W}, 4
s_mul_i32 s{T0}, s{T0}, 3072
s_add_u32 s{T0}, s{T0}, {L_XCH}
v_add_u32 v3, s{T0}, v1
v_mov_b32 v4, {L_DEC}
v_mov_b32 v5, 0
s_waitcnt lgkmcnt(0)
s_nop 7
s_barrier""")
    a(f"ds_write_b32 v4, v5\ns_cmp_eq_u32 s{S_KH}, 0\ns_cbranch_scc0 L_ox_hi")
    for kh in range(2):
        if kh: a.label("L_ox_hi")
        send, keep = (R.OB, R.OA) if kh == 0 else (R.OA, R.OB)
        for q in range(3): a(f"ds_write_b128 v2, {vr(send+4*q,4)} offset:{1024*q}")
        a("s_waitcnt lgkmcnt(0)\ns_barrier")
        for q in range(3): a(f"ds_read_b128 {vr(X+4*q,4)}, v3 offset:{1024*q}")
        for q in (2, 0, 1):
            a(f"s_waitcnt lgkmcnt(0)" if q == 2 else "")
            for j in range(4): a(f"v_add_f32 v{X+4*q+j}, v{X+4*q+j}, v{keep+4*q+j}")
        if kh == 0: a("s_branch L_ox_done")
    a.label("L_ox_done")
    a(f"""v_mov_b32 v{Y}, v{X+8}
v_mov_b32 v{Y+1}, v{X+8}
s_mov_b32 s{T0}, {hx(f2u(2.0**-40))}
s_mov_b32 s{T1}, {hx(f2u(2.0**40))}
v_permlane32_swap_b32 v{Y}, v{Y+1}
s_cmp_lg_u32 s{S_FB}, 0
s_cbranch_scc1 L_ox_ok
v_cmp_le_f32 vcc, s{T0}, v{Y+1}
v_cmp_ge_f32 s[{T2}:{T3}], s{T1}, v{Y+1}
s_nop 3
s_and_b64 vcc, vcc, s[{T2}:{T3}]
s_cmp_eq_u64 vcc, exec
s_cbranch_scc1 L_ox_ok
v_mov_b32 v5, 1
ds_write_b32 v4, v5""")
    a.label("L_ox_ok")
    a(f"""v_rcp_f32 v{Y}, v{Y+1}
s_and_b32 s{T0}, s{S_W}, 7
s_mul_i32 s{T0}, s{T0}, {OT_SZ}
s_add_u32 s{T0}, s{T0}, {L_OT}
v_and_b32 v6, 15, v0
v_mul_u32_u24 v6, 80, v6
v_bfe_u32 v7, v0, 4, 1
v_mul_u32_u24 v7, 40, v7
v_add3_u32 v6, v6, v7, s{T0}
v_lshrrev_b32 v7, 5, v0
v_lshl_add_u32 v6, v7, 3, v6
v_add_u32 v7, s{T0}, v1""")
    for k in range(12): a(f"v_mul_f32 v{X+k}, v{X+k}, v{Y}")
    for k in range(6): a(f"v_cvt_pk_bf16_f32 v{Y+2+k}, v{X+2*k}, v{X+2*k+1}")
    a(f"""ds_write_b64 v6, {vr(Y+2,2)}
ds_write_b64 v6, {vr(Y+4,2)} offset:16
s_mov_b32 exec_hi, 0
ds_write_b64 v6, {vr(Y+6,2)} offset:32
s_mov_b32 exec_hi, -1
s_lshl_b32 s{T0}, s{S_RB}, 4
s_lshl_b32 s{T1}, s{S_HG}, 1
s_add_u32 s{T0}, s{T0}, s{T1}
s_add_u32 s{T0}, s{T0}, s{S_KH}
s_mul_i32 s{T0}, s{T0}, 5120
s_mul_i32 s{T1}, s{S_RT}, 1280
s_add_u32 s{T0}, s{T0}, s{T1}
s_add_u32 s{T0}, s{T0}, {W_O}
ds_read_b128 {vr(X,4)}, v7
ds_read_b128 {vr(X+4,4)}, v7 offset:1024
s_waitcnt lgkmcnt(1)
buffer_store_dwordx4 {vr(X,4)}, v1, s[{SWS}:{SWS+3}], s{T0} offen sc1
s_mov_b64 exec, 0xffff
s_waitcnt lgkmcnt(0)
buffer_store_dwordx4 {vr(X+4,4)}, v1, s[{SWS}:{SWS+3}], s{T0} offen offset:1024 sc1
s_mov_b64 exec, -1
s_barrier""")
    a(f"""ds_read_b32 v5, v4
s_waitcnt lgkmcnt(0)
v_readfirstlane_b32 s{T0}, v5
s_nop 3
s_cmp_lg_u32 s{T0}, 0
s_cbranch_scc1 L_fallback""")
    stamp(a, cfg, 14)

def fallback(a, cfg):
    R = AR
    a.label("L_fallback")
    a(f"s_mov_b32 s{S_FB}, 1\ns_barrier")
    kv_dma(a, 0, 20)
    a(f"""v_mov_b32 v{R.aK16}, v1
v_lshlrev_b32 v{R.aK4}, 3, v0
v_mov_b32 v2, 0xff7fffff
v_mov_b32 v3, 0xff7fffff
s_mov_b32 s{S_IT}, 0
s_waitcnt vmcnt(0)
s_barrier""")
    a.label("L_fb_loop")
    for par in range(2):
        a(f"""ds_read_b128 {vr(R.K16,4)}, v{R.aK16} offset:{1024*par}
ds_read_b64 {vr(R.K4,2)}, v{R.aK4} offset:2048
s_waitcnt lgkmcnt(0)
v_mfma_f32_32x32x16_bf16 {vr(R.S[0],16)}, {vr(R.K16,4)}, {vr(R.QA,4)}, 0
v_mfma_f32_32x32x16_bf16 {vr(R.S[0]+16,16)}, {vr(R.K16,4)}, {vr(R.QB,4)}, 0
s_nop 9
v_mfma_f32_32x32x4bf16_1k {vr(R.S[0],32)}, {vr(R.K4,2)}, {vr(R.Q4,2)}, {vr(R.S[0],32)} cbsz:1 abid:{par}
s_nop 15
s_nop 3""")
        for k in range(0, 16, 2):
            a(f"v_max3_f32 v2, v2, v{R.S[0]+k}, v{R.S[0]+k+1}\nv_max3_f32 v3, v3, v{R.S[0]+16+k}, v{R.S[0]+17+k}")
    a(f"""v_add_u32 v{R.aK16}, {BLK}, v{R.aK16}
v_add_u32 v{R.aK4}, {BLK}, v{R.aK4}
s_add_u32 s{S_IT}, s{S_IT}, 1
s_cmp_lt_u32 s{S_IT}, 32
s_cbranch_scc1 L_fb_loop
v_mov_b32 v4, v2
v_mov_b32 v5, v3
s_nop 1
v_permlane32_swap_b32 v2, v4
v_permlane32_swap_b32 v3, v5
v_max_f32 v2, v2, v4
v_max_f32 v3, v3, v5""")
    for i in range(16): a(f"v_sub_f32 v{R.CZ+i}, 0, v2\nv_sub_f32 v{R.CZ+16+i}, 0, v3")
    a("s_branch L_attn_start")

def out_proj(a, cfg):
    WF = 40; OF = 200; ACC = 8; OFFS = 240
    NPRE = 8
    for t in range(5): div10_offsets(a, OFFS+t, None, 64*t, 2, True)
    srd(a, SA, P_WO, 640*1280)
    a(f"""s_mul_i32 s{T0}, s{S_HG}, 160
s_mul_i32 s{T1}, s{S_W}, 40960
s_add_u32 s{T0}, s{T0}, s{T1}
s_mul_i32 m0, s{S_W}, 5120""")
    for r in range(3):
        if r == 2: a(f"s_cmp_ge_u32 s{S_W}, 4\ns_cbranch_scc1 L_wo_10")
        for t in range(5):
            a(f"s_nop 0\nbuffer_load_dwordx4 v{OFFS+t}, s[{SA}:{SA+3}], s{T0} offen lds\ns_add_u32 m0, m0, {1024 if t < 4 else 8*5120 - 4096}")
        a(f"s_add_u32 s{T0}, s{T0}, {8*40960}")
    a("s_waitcnt vmcnt(15)\ns_branch L_wo_flag")
    a.label("L_wo_10")
    a("s_waitcnt vmcnt(10)")
    a.label("L_wo_flag")
    a(f"""s_lshl_b32 s{T0}, s{S_HG}, 1
s_add_u32 s{T0}, s{T0}, s{S_KH}
s_lshl_b32 s{T0}, s{T0}, 2
s_add_u32 s{T0}, s{T0}, s{S_RT}
s_lshl_b32 s{T0}, s{T0}, 2
s_lshl_b32 s{T1}, s{S_RB}, 8
s_add_u32 s{T0}, s{T0}, s{T1}
s_add_u32 s{T0}, s{T0}, {W_FO}
v_mov_b32 v2, s{S_NONCE}
v_mov_b32 v3, 0
s_mov_b64 exec, 1
buffer_store_dword v2, v3, s[{SWS}:{SWS+3}], s{T0} offen sc1
s_mov_b64 exec, -1""")
    stamp(a, cfg, 15)
    a(f"""s_cmp_lg_u32 s{S_W}, 7
s_cbranch_scc1 L_y_noload
s_lshl_b32 s{T0}, s{S_XCD}, 10
s_add_u32 s{T0}, s{T0}, {W_FY}
v_add_u32 v2, s{T0}, v1""")
    poll(a, "y", 2, 4, 4)
    a(f"""v_lshrrev_b32 v2, 3, v0
v_lshlrev_b32 v2, 12, v2
v_and_b32 v3, 7, v0
v_lshl_add_u32 v2, v3, 4, v2
s_mul_i32 s{T0}, s{S_XCD}, {80*4096}
s_lshl_b32 s{T1}, s{S_J}, 7
s_add_u32 s{T0}, s{T0}, s{T1}
s_add_u32 s{T0}, s{T0}, {W_YT}
s_mov_b32 m0, {L_YT}""")
    for i in range(10):
        a(f"s_nop 0\nbuffer_load_dwordx4 v2, s[{SWS}:{SWS+3}], s{T0} offen sc1 lds\ns_add_u32 s{T0}, s{T0}, 32768\ns_add_u32 m0, m0, 1024")
    a.label("L_y_noload")
    a(f"""v_and_b32 v2, 3, v0
v_lshrrev_b32 v3, 4, v0
v_lshl_add_u32 v2, v3, 2, v2
v_lshrrev_b32 v3, 1, v2
v_lshlrev_b32 v3, 3, v3
v_bfe_u32 v4, v0, 2, 2
v_add_u32 v3, v3, v4
v_lshlrev_b32 v3, 7, v3
v_and_b32 v2, 1, v2
v_lshl_add_u32 v3, v2, 3, v3
s_lshl_b32 s{T0}, s{S_W}, 4
s_add_u32 s{T0}, s{T0}, {L_YT}
v_add_u32 v3, s{T0}, v3
v_lshrrev_b32 v4, 2, v0
v_and_b32 v5, 1, v4
v_and_b32 v6, 3, v0
v_lshl_add_u32 v5, v5, 2, v6
v_mul_u32_u24 v5, 160, v5
v_lshrrev_b32 v4, 1, v4
v_lshl_add_u32 v5, v4, 4, v5
s_mul_i32 s{T0}, s{S_W}, 1280
s_add_u32 s{T0}, s{T0}, {L_YS}
v_add_u32 v5, s{T0}, v5
v_add_u32 v6, s{T0}, v1
v_mul_u32_u24 v7, 6554, v0
v_lshrrev_b32 v7, 16, v7
v_mul_u32_u24 v28, 10, v7
v_sub_u32 v28, v0, v28
v_mul_u32_u24 v7, 2560, v7
v_lshl_add_u32 v7, v28, 4, v7
v_add_u32 v28, 64, v0
v_mul_u32_u24 v29, 6554, v28
v_lshrrev_b32 v29, 16, v29
v_mul_u32_u24 v30, 10, v29
v_sub_u32 v28, v28, v30
v_mul_u32_u24 v29, 2560, v29
v_lshl_add_u32 v28, v28, 4, v29
s_lshl_b32 s{T0}, s{S_J}, 6
s_lshl_b32 s{T1}, s{S_W}, 3
s_add_u32 s{T0}, s{T0}, s{T1}
s_mul_i32 s{T0}, s{T0}, 2560
s_mul_i32 s{T1}, s{S_XCD}, 160
s_add_u32 s{T0}, s{T0}, s{T1}
s_add_u32 s{T0}, s{T0}, 1280
v_lshrrev_b32 v2, 5, v0
v_lshlrev_b32 v2, 4, v2
v_bfe_u32 v29, v0, 4, 1
v_lshl_add_u32 v2, v29, 2, v2
v_bfe_u32 v29, v0, 2, 2
v_add_u32 v2, v2, v29
v_mul_u32_u24 v2, 160, v2
v_and_b32 v29, 3, v0
v_lshl_add_u32 v2, v29, 3, v2
s_mul_i32 s{T1}, s{S_KH}, 51200
v_add_u32 v2, s{T1}, v2
s_waitcnt vmcnt(0)
s_barrier""")
    stamp(a, cfg, 16)
    a(f"""ds_read_b64_tr_b16 v[8:9], v3
ds_read_b64_tr_b16 v[10:11], v3 offset:512
ds_read_b64_tr_b16 v[12:13], v3 offset:8192
ds_read_b64_tr_b16 v[14:15], v3 offset:8704
s_waitcnt lgkmcnt(2)
ds_write_b128 v5, v[8:11]
s_mov_b64 exec, 0xffff
s_waitcnt lgkmcnt(1)
ds_write_b128 v5, v[12:15] offset:128
s_mov_b64 exec, -1
ds_read_b128 v[16:19], v6
ds_read_b128 v[20:23], v6 offset:1024
s_waitcnt lgkmcnt(1)
buffer_store_dwordx4 v[16:19], v7, s[{SOUT}:{SOUT+3}], s{T0} offen
s_mov_b64 exec, 0xffff
s_waitcnt lgkmcnt(0)
buffer_store_dwordx4 v[20:23], v28, s[{SOUT}:{SOUT+3}], s{T0} offen
s_mov_b64 exec, -1""")
    def wreads(i, b):
        for ct in range(5):
            for hf in range(2):
                a(f"ds_read_b64_tr_b16 {vr(b+4*ct+2*hf,2)}, v2 offset:{5120*i + 1280*hf + 32*ct}")
    for i in range(NPRE): wreads(i, WF + 20*i)
    a(f"""v_and_b32 v3, 15, v0
v_mul_u32_u24 v3, 80, v3
v_lshrrev_b32 v4, 4, v0""")
    for i in range(5):
        a(f"""v_add_u32 v5, {4*i}, v4
v_mul_u32_u24 v6, 52, v5
v_lshrrev_b32 v6, 8, v6
v_mul_u32_u24 v7, 5, v6
v_sub_u32 v5, v5, v7
v_mul_u32_u24 v6, 5120, v6
v_lshl_add_u32 v5, v5, 4, v6
v_add_u32 v{OFFS+i}, v5, v3""")
    a(f"""s_and_b32 s{T2}, s{S_W}, 3
s_lshl_b32 s{T0}, s{S_RB}, 8
s_lshl_b32 s{T1}, s{S_KH}, 7
s_add_u32 s{T0}, s{T0}, s{T1}
s_lshl_b32 s{T1}, s{T2}, 2
s_add_u32 s{T0}, s{T0}, s{T1}
s_add_u32 s{T0}, s{T0}, {W_FO}
v_lshl_add_u32 v3, v0, 4, s{T0}
s_lshl_b32 s{T0}, s{S_RB}, 4
s_lshl_b32 s{T1}, s{S_KH}, 3
s_add_u32 s{T0}, s{T0}, s{T1}
s_mul_i32 s{T0}, s{T0}, 5120
s_mul_i32 s{T1}, s{T2}, 1280
s_add_u32 s{T0}, s{T0}, s{T1}
s_add_u32 s{T0}, s{T0}, {W_O}
s_add_u32 s{T1}, s{T0}, 20480""")
    stamp(a, cfg, 17)
    poll(a, "o", 3, 1, 4, lanes=8)
    stamp(a, cfg, 18)
    for i in range(10):
        a(f"buffer_load_dwordx4 {vr(OF+4*i,4)}, v{OFFS+i%5}, s[{SWS}:{SWS+3}], s{T0 if i < 5 else T1} offen sc1")
    a("s_waitcnt lgkmcnt(0)")
    for i in range(10):
        b = WF + 20*(i if i < NPRE else i - NPRE)
        a(f"s_waitcnt vmcnt({9-i})" + (" lgkmcnt(0)" if i == NPRE else ""))
        for ct in range(5):
            c = "0" if i == 0 else vr(ACC+4*ct, 4)
            a(f"v_mfma_f32_16x16x32_bf16 {vr(ACC+4*ct,4)}, {vr(b+4*ct,4)}, {vr(OF+4*i,4)}, {c}")
        if i < 10 - NPRE: wreads(NPRE + i, b)
        if i == 1: a("s_nop 0")
    stamp(a, cfg, 19)
    a(f"""s_mul_i32 s{T0}, s{S_W}, 3072
s_add_u32 s{T0}, s{T0}, {L_XCH}
v_add_u32 v2, s{T0}, v1
s_xor_b32 s{T0}, s{S_W}, 4
s_mul_i32 s{T0}, s{T0}, 3072
s_add_u32 s{T0}, s{T0}, {L_XCH}
v_add_u32 v3, s{T0}, v1
s_mul_i32 s{T0}, s{S_W}, {OT_SZ}
s_add_u32 s{T0}, s{T0}, {L_OT}
v_add_u32 v7, s{T0}, v1
v_and_b32 v4, 15, v0
v_lshrrev_b32 v5, 4, v0
s_lshl_b32 s{T1}, s{S_RB}, 2
s_add_u32 s{T1}, s{T1}, s{T2}
s_mul_i32 s{T1}, s{T1}, {16*2560}
s_mul_i32 s{T3}, s{S_HG}, 160
s_add_u32 s{T1}, s{T1}, s{T3}
s_cmp_eq_u32 s{S_KH}, 0
s_cbranch_scc0 L_px_hi""")
    X = 40
    for kh in range(2):
        if kh: a.label("L_px_hi")
        send = [3, 4] if kh == 0 else [0, 1, 2]
        keep = [0, 1, 2] if kh == 0 else [3, 4]
        pitch = 32*len(keep)
        for n, ct in enumerate(send): a(f"ds_write_b128 v2, {vr(ACC+4*ct,4)} offset:{1024*n}")
        a(f"""v_mul_u32_u24 v4, {pitch}, v4
v_lshl_add_u32 v4, v5, 3, v4
v_add_u32 v4, s{T0}, v4
s_waitcnt lgkmcnt(0)
s_barrier""")
        for n, ct in enumerate(keep): a(f"ds_read_b128 {vr(X+4*n,4)}, v3 offset:{1024*n}")
        if kh == 0:
            a(f"""v_mul_u32_u24 v5, 10923, v0
v_lshrrev_b32 v5, 16, v5
v_mul_u32_u24 v6, 6, v5
v_sub_u32 v6, v0, v6
v_mul_u32_u24 v5, 2560, v5
v_lshl_add_u32 v5, v6, 4, v5
v_add_u32 v6, 64, v0
v_mul_u32_u24 v28, 10923, v6
v_lshrrev_b32 v28, 16, v28
v_mul_u32_u24 v29, 6, v28
v_sub_u32 v6, v6, v29
v_mul_u32_u24 v28, 2560, v28
v_lshl_add_u32 v6, v6, 4, v28""")
        else:
            a(f"""v_lshrrev_b32 v5, 2, v0
v_mul_u32_u24 v5, 2560, v5
v_and_b32 v6, 3, v0
v_lshl_add_u32 v5, v6, 4, v5
s_add_u32 s{T1}, s{T1}, 96""")
        for n, ct in enumerate(keep):
            a(f"s_waitcnt lgkmcnt({len(keep)-1-n})")
            for j in range(4): a(f"v_add_f32 v{X+4*n+j}, v{X+4*n+j}, v{ACC+4*ct+j}")
            a(f"v_cvt_pk_bf16_f32 v{X+16+2*n}, v{X+4*n}, v{X+4*n+1}\nv_cvt_pk_bf16_f32 v{X+17+2*n}, v{X+4*n+2}, v{X+4*n+3}")
            a(f"ds_write_b64 v4, {vr(X+16+2*n,2)} offset:{32*n}")
        a(f"ds_read_b128 {vr(X+24,4)}, v7")
        if kh == 0:
            a(f"""ds_read_b128 {vr(X+28,4)}, v7 offset:1024
s_waitcnt lgkmcnt(1)
buffer_store_dwordx4 {vr(X+24,4)}, v5, s[{SOUT}:{SOUT+3}], s{T1} offen
s_mov_b32 exec_hi, 0
s_waitcnt lgkmcnt(0)
buffer_store_dwordx4 {vr(X+28,4)}, v6, s[{SOUT}:{SOUT+3}], s{T1} offen
s_mov_b32 exec_hi, -1
s_branch L_px_done""")
        else:
            a(f"s_waitcnt lgkmcnt(0)\nbuffer_store_dwordx4 {vr(X+24,4)}, v5, s[{SOUT}:{SOUT+3}], s{T1} offen")
    a.label("L_px_done")
    if cfg.stamps:
        a("s_waitcnt vmcnt(0)")
        stamp(a, cfg, 20)

def build(cfg):
    a = Asm()
    prologue(a, cfg)
    a(f"""s_cmp_eq_u32 s{S_W}, 0
s_cbranch_scc1 L_role0
s_cmp_lt_u32 s{S_W}, 4
s_cbranch_scc1 L_role123
s_cmp_lt_u32 s{S_W}, 7
s_cbranch_scc1 L_role456""")
    role_w7(a, cfg)
    a("s_branch L_join")
    a.label("L_role456"); role_w456(a, cfg)
    a.label("L_role123"); role_w123(a, cfg); a("s_branch L_join")
    a.label("L_role0"); role_w0(a, cfg)
    a.label("L_join")
    qproj(a, cfg)
    post_q(a, cfg)
    conv(a, cfg)
    attention(a, cfg)
    o_finish(a, cfg)
    out_proj(a, cfg)
    a.label("L_end")
    a("s_endpgm")
    fallback(a, cfg)
    probs = check(a.lines)
    for p in probs: print("HAZARD", p, file=sys.stderr)
    head = open("cdna_kernels/%s.s.ref" % NAME).read().split("; Override")[0]
    txt = head + f"""; @launch grid=(256,1,1) block=(512,1,1) lds=163840
.amdgcn_target "amdgcn-amd-amdhsa--gfx950"
.text
.globl {NAME}_kernel
.p2align 8
.type {NAME}_kernel,@function
{NAME}_kernel:
""" + a.text() + f""".section .rodata,"a"
.p2align 6
.amdhsa_kernel {NAME}_kernel
  .amdhsa_next_free_vgpr 256
  .amdhsa_next_free_sgpr 96
  .amdhsa_accum_offset 256
  .amdhsa_group_segment_fixed_size 0
  .amdhsa_kernarg_size 120
  .amdhsa_user_sgpr_count 2
  .amdhsa_user_sgpr_kernarg_segment_ptr 1
  .amdhsa_system_sgpr_workgroup_id_x 1
  .amdhsa_float_denorm_mode_32 3
.end_amdhsa_kernel
"""
    return txt, len(probs)

if __name__ == "__main__":
    cfg = Cfg()
    out = sys.argv[1]
    for o in sys.argv[2:]:
        if o == "stamps": cfg.stamps = True
        if o == "dbg": cfg.dbg = True
    txt, n = build(cfg)
    open(out, "w").write(txt)
    print("written", out, len(txt), "bytes; hazards:", n)
```

```python
import re
class Asm:
    def __init__(s):
        s.lines = []
    def __call__(s, text):
        for l in text.split("\n"):
            l = l.strip()
            if l: s.lines.append(l)
    def label(s, name): s.lines.append(name + ":")
    def sub(s, tag):
        outer = s
        class Sub:
            def __call__(_, text): outer(re.sub(r"\b(L_\w+)", r"\1_" + tag, text))
            def label(_, name): outer.label(name + "_" + tag)
        return Sub()
    def text(s): return "\n".join(("" if l.endswith(":") else "    ") + l for l in s.lines) + "\n"

def vr(b, n=1):
    return f"v{b}" if n == 1 else f"v[{b}:{b+n-1}]"
def sr(b, n=1):
    return f"s{b}" if n == 1 else f"s[{b}:{b+n-1}]"

_reg = re.compile(r"\b([vs])(\d+)\b|\b([vs])\[(\d+):(\d+)\]|\b(vcc|exec|m0)\b")
def regs_of(op):
    out = set()
    for m in _reg.finditer(op):
        if m.group(1): out.add((m.group(1), int(m.group(2))))
        elif m.group(3):
            for i in range(int(m.group(4)), int(m.group(5)) + 1): out.add((m.group(3), i))
        else: out.add((m.group(6), 0))
    return out
TRANS = ("v_exp_", "v_log_", "v_rcp_", "v_rsq_", "v_sqrt_", "v_sin_", "v_cos_")
def passes(mn):
    if "32x32x4bf16_1k" in mn: return 16
    if "32x32" in mn: return 8
    if "16x16" in mn: return 4
    raise ValueError(mn)
def parse(line):
    line = line.split(";")[0].strip()
    if not line or line.endswith(":") or line.startswith("."): return None
    p = line.split(None, 1)
    mn = p[0]; rest = p[1] if len(p) > 1 else ""
    ops = [o.strip() for o in re.split(r",(?![^\[]*\])", rest)]
    d = dict(mn=mn, ops=ops, w=set(), r=set(), kind="other", line=line)
    R = lambda i: regs_of(ops[i].split(" ")[0]) if i < len(ops) else set()
    allr = lambda a: set().union(*[R(i) for i in range(a, len(ops))]) if len(ops) > a else set()
    if mn.startswith("v_mfma") or mn.startswith("v_smfmac"):
        d["kind"] = "mfma"; d["w"] = R(0); d["A"] = R(1); d["B"] = R(2)
        d["C"] = R(0) if mn.startswith("v_smfmac") else R(3)
        d["r"] = d["A"] | d["B"] | d["C"] | (R(3) if mn.startswith("v_smfmac") else set()); d["passes"] = passes(mn)
    elif mn.startswith("v_cmp"):
        d["kind"] = "valu"; d["w"] = R(0); d["r"] = allr(1)
    elif mn.startswith("v_readfirstlane") or mn.startswith("v_readlane"):
        d["kind"] = "valu"; d["w"] = R(0); d["r"] = allr(1); d["rl"] = True
    elif mn.startswith("v_permlane"):
        d["kind"] = "valu"; d["w"] = R(0) | R(1); d["r"] = R(0) | R(1); d["perm"] = True
    elif mn.startswith("v_"):
        d["kind"] = "valu"; d["w"] = R(0); d["r"] = allr(1)
        if mn.startswith(("v_fmac", "v_pk_fmac")): d["r"] |= R(0)
        if mn.startswith("v_cndmask") and len(ops) == 4 and "vcc" in ops[3]: d["r"].add(("vcc", 0))
        if mn.startswith(("v_add_co", "v_sub_co", "v_addc_co")): d["w"] |= R(1)
        d["trans"] = mn.startswith(TRANS)
    elif mn.startswith("ds_"):
        d["kind"] = "ds"
        if "read" in mn: d["w"] = R(0); d["r"] = allr(1)
        else: d["r"] = allr(0)
    elif mn.startswith("buffer_") or mn.startswith("global_"):
        d["kind"] = "vmem"
        if "load" in mn and " lds" not in line: d["w"] = R(0); d["r"] = allr(1)
        else: d["r"] = allr(0)
        if " lds" in line: d["r"].add(("m0", 0)); d["dma"] = True
        if "store" in mn and ("x4" in mn or "x3" in mn): d["wide"] = R(0)
    elif mn.startswith("s_"):
        d["kind"] = "salu"
        if mn.startswith(("s_cmp", "s_cbranch", "s_branch", "s_waitcnt", "s_barrier", "s_nop", "s_endpgm", "s_sleep", "s_setprio")): d["r"] = allr(0)
        else: d["w"] = R(0); d["r"] = allr(1)
        if mn == "s_nop": d["nop"] = int(ops[0]) + 1
    return d
def check(lines, trans2=False):
    ins = []
    for n, l in enumerate(lines):
        d = parse(l)
        if d: d["n"] = n; d["phys"] = "PHYS" in l; ins.append(d)
    probs = []
    for i, c in enumerate(ins):
        dist = 0; distp = 0
        for j in range(i - 1, max(-1, i - 40), -1):
            p = ins[j]
            need = 0; why = ""; usep = False
            isv = lambda s: {x for x in s if x[0] == "v"}
            iss = lambda s: {x for x in s if x[0] != "v"}
            if p["kind"] == "valu":
                if c["kind"] == "mfma" and isv(p["w"]) & c["r"]: need, why = 2, "valu->mfma"
                if c.get("rl") and isv(p["w"]) & c["r"]: need, why = 1, "valu->readlane"
                if c.get("perm") and isv(p["w"]) & c["r"]: need, why = 2, "valu->permlane"
                if p.get("trans") and c["kind"] == "valu" and not c.get("trans") and p["w"] & c["r"]: need, why = max(need, 1), "trans->valu"
                if iss(p["w"]) & c["r"]:
                    if c["kind"] == "vmem": need, why = 5, "valu sgpr->vmem"
                    elif c["kind"] == "valu": need, why = max(need, 2), "valu sgpr->valu"
            if p["kind"] == "mfma":
                P = p["passes"]; tb = {4: (6, 8, 3), 8: (10, 12, 7), 16: (18, 20, 15)}[P]
                if c["kind"] == "mfma":
                    if p["w"] & (c["A"] | c["B"]): need, why = tb[1], "mfma D->A/B"
                    elif p["w"] & c["C"] and not (p["w"] == c["C"] and P == c["passes"]): need, why = tb[0], "mfma D->C partial"
                    elif p["w"] & c["w"] and not (p["w"] == c["C"]): need, why = tb[0], "mfma WAW"
                elif c["kind"] in ("valu", "ds", "vmem"):
                    if p["w"] & (c["r"] | c["w"]): need, why = tb[1], "mfma D->valu/mem"
                    elif c["kind"] == "valu" and p["C"] & c["w"]: need, why = tb[2], "mfma C WAR"
                usep = True
            if p.get("wide") and c["kind"] == "valu" and p["wide"] & c["w"]: need, why = 2, "wide store WAR"
            if p["kind"] == "salu" and ("m0", 0) in p["w"] and c.get("dma"): need, why = 1, "m0->dma"
            dd = distp if (usep and c["phys"]) else dist
            if need > dd: probs.append((c["n"], why, need, dd, p["line"], c["line"]))
            dist += p.get("nop", 1)
            distp += p.get("nop", 2 if p.get("trans") else 1)
            if dist > 24: break
    return probs
```

```python
import sys, struct, math
from asmlib import Asm, vr, sr, check
NAME = "concat_heads__grouped_kv_mqa__ssm_conv_s4d__prompt"
def f2u(x): return struct.unpack("<I", struct.pack("<f", x))[0]
def hx(x): return "0x%08x" % (x & 0xffffffff)

L_WQ = 0; L_X = 0; L_WK = 102400; L_SCR = 128000; SCR_SZ = 4352; L_UST = 81920; NWQA = 2
L_CP = 102400; CP_CH = 16640; CP_C = 4160
L_TBL = 154112; TBL_SZ = 1552; L_QST = 152320
L_UT = 81920; UT_CH = 4608; L_PART = 95744; L_QX = 0
L_YT = 102400; L_XCH = 122880; L_OT = 147456; OT_SZ = 1536; L_DEC = 159744; L_YS = 112640
BLK = 5120
W_NONCE = 0; W_FU = 0x1000; W_FKV = 0x2000; W_FY = 0x4000; W_FO = 0x6000
W_KV = 0x10000; W_UT = 0x40000; W_YT = 0x2C0000; W_O = 0x540000; W_DBG = 0x800000; W_STAMP = 0xF00000; WS_SZ = 0x1000000
P_X, P_WQ, P_WK, P_WV, P_WO, P_U, P_LAR, P_AIM, P_CR, P_CI, P_LDT, P_DSK, P_OUT, P_DBG, P_WS = range(4, 34, 2)
SA, SB, SWS, SOUT = 36, 40, 44, 48
S_W, S_XCD, S_J, S_RB, S_HG, S_NONCE, S_CH0, S_NCH = 52, 53, 54, 55, 56, 57, 58, 59
VM = 60
T0, T1, T2, T3, T4, T5, T6, T7 = range(62, 70)
S_RT, S_KH, S_FB, S_IT = 70, 71, 72, 73
EX = 74
S_LDT = 76; S_D0 = 77
S_C1, S_C2, S_C3, S_C4 = 80, 81, 82, 83
ST0 = 84
SPIN_MAX = 100000

class Cfg:
    dbg = False; stamps = False; stop_after = None; nonce_update = True

def srd(a, base, ptr, size):
    a(f"s_mov_b32 s{base}, s{ptr}\ns_mov_b32 s{base+1}, s{ptr+1}\ns_mov_b32 s{base+2}, {size}\ns_mov_b32 s{base+3}, 0x00020000")

_stamp_n = [0]
def stamp(a, cfg, idx, cyc=False):
    if not cfg.stamps or cyc: return
    a(f"""s_memrealtime s[{ST0}:{ST0+1}]
s_memtime s[86:87]
s_waitcnt lgkmcnt(0)
v_writelane_b32 v255, s{ST0}, {idx}
v_writelane_b32 v255, s86, {idx+32}""")
def stamp_flush(a, cfg):
    if not cfg.stamps: return
    a(f"""s_lshl_b32 s86, s2, 3
s_add_u32 s86, s86, s{S_W}
s_lshl_b32 s86, s86, 8
s_add_u32 s86, s86, {W_STAMP}
v_lshlrev_b32 v254, 2, v0
buffer_store_dword v255, v254, s[{SWS}:{SWS+3}], s86 offen""")

def dump_lds(a, cfg, tag, lo, n8):
    if not cfg.dbg: return
    a(f"""s_cmp_ge_u32 s2, 4
s_cbranch_scc1 L_dump_{tag}
s_lshl_b32 s86, s{S_W}, 10
s_mul_i32 s87, s2, {n8*8192}
s_add_u32 s87, s87, {W_DBG}
s_add_u32 s87, s87, s86
s_add_u32 s86, s86, {lo}
v_add_u32 v250, s86, v1
s_mov_b32 s88, 0""")
    a.label(f"L_dumpl_{tag}")
    a(f"""ds_read_b128 v[252:255], v250
s_waitcnt lgkmcnt(0)
buffer_store_dwordx4 v[252:255], v1, s[{SWS}:{SWS+3}], s87 offen
s_waitcnt vmcnt(0)
v_add_u32 v250, 8192, v250
s_add_u32 s87, s87, 8192
s_add_u32 s88, s88, 1
s_cmp_lt_u32 s88, {n8}
s_cbranch_scc1 L_dumpl_{tag}""")
    a.label(f"L_dump_{tag}")

def poll(a, tag, vaddr, nload, vt, lanes=64):
    sfx = {1: "dword", 2: "dwordx2", 4: "dwordx4"}[nload]
    if lanes < 64: a(f"s_mov_b32 exec_lo, {hx((1 << lanes) - 1)}\ns_mov_b32 exec_hi, 0")
    a(f"s_mov_b32 s{T7}, 0")
    a.label(f"L_poll_{tag}")
    a(f"buffer_load_{sfx} {vr(vt, nload)}, v{vaddr}, s[{SWS}:{SWS+3}], 0 offen sc1")
    a("s_waitcnt vmcnt(0)")
    for i in range(nload): a(f"v_xor_b32 v{vt+i}, s{S_NONCE}, v{vt+i}")
    if nload == 2: a(f"v_or_b32 v{vt}, v{vt}, v{vt+1}")
    if nload == 4: a(f"v_or_b32 v{vt}, v{vt}, v{vt+1}\nv_or3_b32 v{vt}, v{vt}, v{vt+2}, v{vt+3}")
    a(f"""v_cmp_ne_u32 vcc, 0, v{vt}
s_add_u32 s{T7}, s{T7}, 1
s_nop 2
s_cmp_eq_u64 vcc, 0
s_cbranch_scc1 L_polld_{tag}
s_cmp_lt_u32 s{T7}, {SPIN_MAX}
s_cbranch_scc1 L_poll_{tag}""")
    a.label(f"L_polld_{tag}")
    if lanes < 64: a("s_mov_b64 exec, -1")

def div10_offsets(a, vdst, cbase_s, cbase_imm, vt, perm):
    if cbase_s is not None: a(f"v_add_u32 v{vt}, s{cbase_s}, v0")
    else: a(f"v_add_u32 v{vt}, {cbase_imm}, v0")
    a(f"""v_mul_u32_u24 v{vt+1}, 6554, v{vt}
v_lshrrev_b32 v{vt+1}, 16, v{vt+1}
v_mul_u32_u24 v{vt+2}, 10, v{vt+1}
v_sub_u32 v{vt}, v{vt}, v{vt+2}""")
    if perm:
        a(f"""v_lshrrev_b32 v{vt+2}, 2, v{vt+1}
v_lshrrev_b32 v{vt+3}, 3, v{vt+1}
v_xor_b32 v{vt+2}, v{vt+2}, v{vt+3}
v_and_b32 v{vt+2}, 1, v{vt+2}
v_mul_u32_u24 v{vt+2}, 12, v{vt+2}
v_xor_b32 v{vt+1}, v{vt+1}, v{vt+2}""")
    a(f"""v_mul_u32_u24 v{vt+1}, 1280, v{vt+1}
v_lshl_add_u32 v{vdst}, v{vt}, 4, v{vt+1}""")

XF = 16
VX = 250
WO5 = 245

def prologue(a, cfg):
    a(f"""s_cmp_ge_u32 s2, 256
s_cbranch_scc1 L_end""")
    stamp(a, cfg, 21)
    a(f"""s_load_dwordx16 s[4:19], s[0:1], 0
s_load_dwordx8 s[20:27], s[0:1], 64
s_load_dwordx4 s[28:31], s[0:1], 96
s_load_dwordx2 s[32:33], s[0:1], 112
v_lshrrev_b32 v1, 6, v0
v_and_b32 v0, 63, v0
s_and_b32 s{S_XCD}, s2, 7
v_readfirstlane_b32 s{S_W}, v1
s_lshr_b32 s{S_J}, s2, 3
s_lshr_b32 s{T0}, s{S_J}, 3
s_lshl_b32 s{S_RB}, s{S_XCD}, 2
s_add_u32 s{S_RB}, s{S_RB}, s{T0}
s_and_b32 s{S_HG}, s{S_J}, 7
s_mul_i32 s{T0}, s{S_J}, 3
s_lshl_b32 s{T1}, s{S_J}, 1
s_add_u32 s{T1}, s{T1}, 16
s_cmp_lt_u32 s{S_J}, 16
s_cselect_b32 s{T0}, s{T0}, s{T1}
s_cselect_b32 s{S_NCH}, 3, 2
s_mul_i32 s{S_CH0}, s{S_XCD}, 80
s_add_u32 s{S_CH0}, s{S_CH0}, s{T0}
s_lshr_b32 s{T0}, s{S_HG}, 1
s_add_u32 s{S_RT}, s{T0}, s{S_W}
s_and_b32 s{S_RT}, s{S_RT}, 3
s_lshr_b32 s{S_KH}, s{S_W}, 2
s_mov_b32 s{S_FB}, 0
s_mov_b32 s{VM}, 0x000fffff
s_mov_b32 s{VM+1}, 0x000fffff
v_lshlrev_b32 v1, 4, v0
v_lshrrev_b32 v2, 3, v0
v_and_b32 v3, 7, v0
v_xor_b32 v3, v3, v2
v_mul_u32_u24 v2, 1280, v2
v_lshl_add_u32 v{VX}, v3, 4, v2
s_cmp_ge_u32 s{S_W}, 4
s_cbranch_scc1 L_pro_noprio
s_setprio 2""")
    a.label("L_pro_noprio")
    a(f"""s_waitcnt lgkmcnt(0)
s_load_dword s{S_NONCE}, s[{P_WS}:{P_WS+1}], {W_NONCE}""")
    srd(a, SWS, P_WS, WS_SZ)
    srd(a, SA, P_X, 2048*1280)
    stamp(a, cfg, 0)

def x_dma(a, s_ro, c0, cstep, n, s_c0=None):
    a(f"""s_lshl_b32 s{T0}, s{S_RB}, 3
s_add_u32 s{T0}, s{T0}, s{s_ro}
s_mul_i32 s{T0}, s{T0}, {8*1280}
s_lshl_b32 s{T1}, s{s_ro}, 10""")
    if s_c0 is not None:
        a(f"""s_lshl_b32 s{T2}, s{s_c0}, 7
s_add_u32 s{T0}, s{T0}, s{T2}
s_lshl_b32 s{T2}, s{s_c0}, 13
s_add_u32 s{T1}, s{T1}, s{T2}""")
    a(f"s_add_u32 m0, s{T1}, {L_X + 8192*c0}\ns_add_u32 s{T0}, s{T0}, {128*c0}")
    for i in range(n):
        a(f"buffer_load_dwordx4 v{VX}, s[{SA}:{SA+3}], s{T0} offen lds")
        if i < n - 1: a(f"s_add_u32 m0, m0, {8192*cstep}\ns_add_u32 s{T0}, s{T0}, {128*cstep}")

def crit_loads(a):
    a(f"""s_and_b32 s{T3}, s{S_HG}, 6
s_and_b32 s{T4}, s{S_W}, 1
s_add_u32 s{T3}, s{T3}, s{T4}
s_lshr_b32 s{T4}, s{S_W}, 1""")
    x_dma(a, T3, 0, 2, 5, s_c0=T4)
    a(f"""s_bitcmp1_b32 s{S_HG}, 0
s_cselect_b32 s{SB}, s{P_WV}, s{P_WK}
s_cselect_b32 s{SB+1}, s{P_WV+1}, s{P_WK+1}
s_mov_b32 s{SB+2}, 25600
s_mov_b32 s{SB+3}, 0x00020000
s_lshl_b32 s{T0}, s{S_W}, 10
s_add_u32 m0, s{T0}, {L_WK}
s_nop 0""")
    for i in range(7):
        if i == 6: a(f"s_cmp_lg_u32 s{S_W}, 0\ns_cbranch_scc1 L_wk_done")
        a(f"buffer_load_dwordx4 v1, s[{SB}:{SB+3}], s{T0} offen lds")
        if i < 6: a(f"s_add_u32 m0, m0, 4096\ns_add_u32 s{T0}, s{T0}, 4096")
    a.label("L_wk_done")

def rest_x(a):
    a(f"""s_and_b32 s{T5}, s{S_HG}, 6
s_add_u32 s{T5}, s{T5}, 2
s_sub_u32 s{T4}, s{S_W}, 4
s_add_u32 s{T3}, s{T5}, s{T4}
s_and_b32 s{T3}, s{T3}, 7""")
    x_dma(a, T3, 0, 1, 10)
    a(f"""s_lshr_b32 s{T3}, s{T4}, 1
s_add_u32 s{T3}, s{T3}, s{T5}
s_add_u32 s{T3}, s{T3}, 4
s_and_b32 s{T3}, s{T3}, 7
s_and_b32 s{T4}, s{T4}, 1
s_mul_i32 s{T4}, s{T4}, 5""")
    x_dma(a, T3, 0, 1, 5, s_c0=T4)

def typed_offsets(a):
    for t in range(5): div10_offsets(a, WO5+t, None, 64*t, 2, True)

def wq_dma(a, tag, first, last):
    a(f"""s_add_u32 s{T2}, s{S_W}, {first - 1}
s_cmp_ge_u32 s{T2}, {last}
s_cbranch_scc1 L_wq_{tag}_done
s_mul_i32 s{T3}, s{T2}, 40960
s_mul_i32 s{T4}, s{S_HG}, 160
s_add_u32 s{T3}, s{T3}, s{T4}
s_mul_i32 m0, s{T2}, 5120""")
    a.label(f"L_wq_{tag}")
    for t in range(5):
        a(f"s_nop 0\nbuffer_load_dwordx4 v{WO5+t}, s[{SB}:{SB+3}], s{T3} offen lds\ns_add_u32 m0, m0, {1024 if t < 4 else 3*5120 - 4096}")
    a(f"""s_add_u32 s{T3}, s{T3}, {3*40960}
s_add_u32 s{T2}, s{T2}, 3
s_cmp_lt_u32 s{T2}, {last}
s_cbranch_scc1 L_wq_{tag}""")
    a.label(f"L_wq_{tag}_done")

def x_frags(a, n):
    a(f"""v_and_b32 v2, 15, v0
v_lshrrev_b32 v3, 4, v0
v_and_b32 v4, 7, v2
v_xor_b32 v3, v3, v4
v_lshlrev_b32 v2, 7, v2
v_lshl_add_u32 v2, v3, 4, v2
s_lshl_b32 s{T0}, s{S_RT}, 11
s_mul_i32 s{T1}, s{S_KH}, 40960
s_add_u32 s{T0}, s{T0}, s{T1}
v_add_u32 v2, s{T0}, v2
v_xor_b32 v3, 64, v2""")
    for i in range(min(n, 10) if n == 10 else 10):
        a(f"ds_read_b128 {vr(XF+4*i,4)}, v{2 + (i & 1)} offset:{L_X + 8192*(i >> 1)}")
    if n == 20:
        a("v_add_u32 v4, 40960, v2\nv_add_u32 v5, 40960, v3")
        for i in range(10):
            a(f"ds_read_b128 {vr(XF+40+4*i,4)}, v{4 + (i & 1)} offset:{L_X + 8192*(i >> 1)}")

def finish_nonce(a):
    a(f"s_waitcnt lgkmcnt(0)\ns_mul_i32 s{S_NONCE}, s{S_NONCE}, 0x9E3779B1\ns_add_u32 s{S_NONCE}, s{S_NONCE}, 0x7F4A7C15")

def kv_proj(a, cfg):
    WR = 96
    ACC = 124
    x_frags(a, 20)
    a(f"""v_lshrrev_b32 v6, 4, v0
v_lshlrev_b32 v6, 3, v6
v_bfe_u32 v7, v0, 2, 2
v_add_u32 v6, v6, v7
v_mul_u32_u24 v6, 40, v6
v_and_b32 v7, 3, v0
v_lshl_add_u32 v6, v7, 3, v6
v_add_u32 v6, {L_WK}, v6""")
    def reads(s):
        b = WR + 8*(s % 3)
        for ct in range(2):
            for hf in range(2):
                a(f"ds_read_b64_tr_b16 {vr(b+4*ct+2*hf,2)}, v6 offset:{1280*s + 160*hf + 32*ct}")
    a(f"s_bitcmp1_b32 s{S_HG}, 0\ns_cbranch_scc1 L_kv_v")
    for kind in range(2):
        if kind: a.label("L_kv_v")
        reads(0); reads(1)
        for s in range(20):
            if s + 2 < 20: reads(s + 2)
            n_after = 4*min(2, 19 - s)
            a(f"s_waitcnt lgkmcnt({n_after})")
            b = WR + 8*(s % 3)
            for ct in range(2):
                c = "0" if s == 0 else vr(ACC+4*ct, 4)
                A, B = vr(b+4*ct, 4), vr(XF+4*s, 4)
                if kind: A, B = B, A
                a(f"v_mfma_f32_16x16x32_bf16 {vr(ACC+4*ct,4)}, {A}, {B}, {c}")
        a(f"""s_mul_i32 s{T0}, s{S_RB}, {BLK}
s_add_u32 s{T0}, s{T0}, {W_KV}
v_and_b32 v3, 15, v0
v_lshrrev_b32 v4, 4, v0""")
        if kind == 0:
            a(f"""s_lshr_b32 s{T1}, s{S_RT}, 1
s_lshl_b32 s{T1}, s{T1}, 10
s_and_b32 s{T2}, s{S_RT}, 1
s_lshl_b32 s{T2}, s{T2}, 8
s_add_u32 s{T1}, s{T1}, s{T2}
s_add_u32 s{T1}, s{T1}, s{T0}
v_lshrrev_b32 v5, 1, v4
v_lshlrev_b32 v5, 9, v5
v_lshl_add_u32 v5, v3, 4, v5
v_and_b32 v6, 1, v4
v_lshl_add_u32 v5, v6, 3, v5
s_lshl_b32 s{T2}, s{S_RT}, 7
s_add_u32 s{T2}, s{T2}, s{T0}
s_add_u32 s{T2}, s{T2}, 2048
v_lshlrev_b32 v6, 3, v3
v_cmp_gt_u32 vcc, 16, v0""")
        else:
            a(f"""s_mul_i32 s{T1}, s{S_RT}, 640
s_add_u32 s{T1}, s{T1}, s{T0}
s_add_u32 s{T1}, s{T1}, 2560
s_add_u32 s{T2}, s{T1}, 256
v_lshrrev_b32 v5, 1, v4
v_mul_u32_u24 v5, 320, v5
v_lshl_add_u32 v5, v3, 4, v5
v_and_b32 v6, 1, v4
v_lshl_add_u32 v5, v6, 3, v5
v_mov_b32 v6, v5
v_cmp_gt_u32 vcc, 4, v3""")
        a(f"""v_cvt_pk_bf16_f32 v8, v{ACC}, v{ACC+1}
v_cvt_pk_bf16_f32 v9, v{ACC+2}, v{ACC+3}
v_cvt_pk_bf16_f32 v10, v{ACC+4}, v{ACC+5}
v_cvt_pk_bf16_f32 v11, v{ACC+6}, v{ACC+7}
buffer_store_dwordx2 v[8:9], v5, s[{SWS}:{SWS+3}], s{T1} offen sc1
s_and_saveexec_b64 s[{EX}:{EX+1}], vcc
buffer_store_dwordx2 v[10:11], v6, s[{SWS}:{SWS+3}], s{T2} offen sc1
s_mov_b64 exec, s[{EX}:{EX+1}]""")
        if kind == 0: a("s_branch L_kv_done")
    a.label("L_kv_done")

def role_w0(a, cfg):
    crit_loads(a)
    stamp(a, cfg, 22)
    typed_offsets(a)
    finish_nonce(a)
    a("s_waitcnt vmcnt(0)")
    stamp(a, cfg, 24)
    a("s_barrier")
    stamp(a, cfg, 1)
    kv_proj(a, cfg)
    stamp(a, cfg, 2)
    a("s_barrier\ns_barrier")
    a(f"""v_lshlrev_b32 v2, 10, v0
s_lshl_b32 s{T0}, s2, 2
s_add_u32 s{T0}, s{T0}, {W_FKV}
v_mov_b32 v3, s{S_NONCE}
s_waitcnt vmcnt(0)
s_mov_b64 exec, 0xff
buffer_store_dword v3, v2, s[{SWS}:{SWS+3}], s{T0} offen sc1
s_mov_b64 exec, -1""")
    stamp(a, cfg, 3)
    a("s_barrier")

def cmul(a, d, x, y, t):
    a(f"v_pk_mul_f32 {vr(t,2)}, {vr(x,2)}, {vr(y,2)} op_sel:[0,0] op_sel_hi:[0,1]")
    return f"v_pk_fma_f32 {vr(d,2)}, {vr(x,2)}, {vr(y,2)}, {vr(t,2)} op_sel:[1,1,0] op_sel_hi:[1,0,1] neg_lo:[1,0,0]"
def cmul_multi(a, items, tmps):
    for k in range(0, len(items), len(tmps)):
        grp = items[k:k+len(tmps)]
        second = [cmul(a, d, x, y, t) for (d, x, y), t in zip(grp, tmps)]
        for s in second: a(s)

LOG2E = 1.4426950408889634
def acc_exp(a, d, x, t):
    a(f"""v_mul_f32 v{t}, s{S_C1}, {x}
v_fma_f32 v{t+1}, {x}, s{S_C1}, -v{t}
v_fma_f32 v{t+1}, {x}, s{S_C2}, v{t+1}
v_exp_f32 v{t}, v{t}
v_fma_f32 v{t+1}, v{t+1}, s{S_C3}, 1.0
v_mul_f32 v{d}, v{t}, v{t+1}""")

KP = 56
def kgen_loads(a):
    a(f"""s_sub_u32 s{T4}, s{S_W}, 1
s_lshr_b32 s{T2}, s{T4}, 1
s_add_u32 s{T2}, s{T2}, s{S_CH0}
s_min_u32 s{T2}, s{T2}, 639
s_lshl_b32 s{T3}, s{T2}, 8
s_and_b32 s{T4}, s{T4}, 1
s_lshl_b32 s{T4}, s{T4}, 7
s_add_u32 s{T3}, s{T3}, s{T4}
v_lshlrev_b32 v2, 1, v0""")
    for i, p in enumerate((P_LAR, P_AIM, P_CR, P_CI)):
        srd(a, SB, p, 640*256)
        a(f"buffer_load_ushort v{KP+i}, v2, s[{SB}:{SB+3}], s{T3} offen")
    a(f"""s_lshl_b32 s{T3}, s{T2}, 1
s_and_b32 s{T3}, s{T3}, 0xfffffffc
s_load_dword s{S_LDT}, s[{P_LDT}:{P_LDT+1}], s{T3}
s_mov_b32 s{T6}, s{T2}""")

def kgen(a, cfg):
    W1, W2, V8, V2, WW = 60, 62, 64, 66, 68
    G = 70
    FA, FB = 86, 88
    TM = [90, 92, 94, 96]
    PK = 98
    BF = 104
    AF = 120
    ACC = 136
    DT, ER, TH = 148, 149, 150
    AW, AR = 2, 3
    hi = f2u(LOG2E); lo = f2u(LOG2E - struct.unpack("<f", struct.pack("<I", hi))[0])
    a(f"""s_sub_u32 s{T5}, s{S_W}, 1
s_lshr_b32 s{T2}, s{T5}, 1
s_cmp_ge_u32 s{T2}, s{S_NCH}
s_cbranch_scc1 L_kgen_done
s_mov_b32 s{S_C1}, {hx(hi)}
s_mov_b32 s{S_C2}, {hx(lo)}
s_mov_b32 s{S_C3}, {hx(f2u(math.log(2)))}
s_mov_b32 s{S_C4}, {hx(f2u(1/(2*math.pi)))}
s_bitcmp1_b32 s{T6}, 0
s_cbranch_scc0 L_kg_lo
s_lshr_b32 s{S_LDT}, s{S_LDT}, 16""")
    a.label("L_kg_lo")
    a(f"""s_lshl_b32 s{S_LDT}, s{S_LDT}, 16
s_mul_i32 s{T3}, s{T5}, {SCR_SZ}
s_add_u32 s{T3}, s{T3}, {L_SCR}
v_lshl_add_u32 v{AW}, v0, 2, s{T3}
v_and_b32 v4, 15, v0
v_mul_u32_u24 v4, 272, v4
v_lshrrev_b32 v5, 4, v0
v_lshl_add_u32 v4, v5, 4, v4
v_add_u32 v{AR}, s{T3}, v4
v_mov_b32 v6, s{S_LDT}""")
    acc_exp(a, DT, "v6", 4)
    a(f"v_cvt_pk_bf16_f32 v{DT}, v{DT}, v{DT}\nv_lshlrev_b32 v{DT}, 16, v{DT}")
    for i in range(4): a(f"v_lshlrev_b32 v{PK+i}, 16, v{KP+i}")
    acc_exp(a, ER, f"v{PK}", 4)
    a(f"""v_cvt_pk_bf16_f32 v{ER}, v{ER}, v{ER}
v_mul_f32 v{TH}, v{PK+1}, v{DT}
v_lshlrev_b32 v{ER}, 16, v{ER}
v_mul_f32 v{G}, v{PK+2}, v{DT}
v_mul_f32 v{ER}, v{ER}, v{DT}
v_mul_f32 v{G+1}, v{PK+3}, v{DT}
v_mul_f32 v{ER}, s{S_C1}, -v{ER}
v_mul_f32 v{TH}, s{S_C4}, v{TH}
v_add_f32 v{G}, v{G}, v{G}
v_add_f32 v{G+1}, v{G+1}, v{G+1}""")
    for k, (dst, p) in enumerate(((W1, 1.0), (V8, 8.0), (WW, 128.0))):
        t = TM[k]
        if p == 1.0:
            a(f"v_exp_f32 v{t}, v{ER}\nv_fract_f32 v{t+1}, v{TH}")
        else:
            a(f"v_mul_f32 v{t}, {hx(f2u(p))}, v{ER}\nv_mul_f32 v{t+1}, {hx(f2u(p))}, v{TH}\nv_exp_f32 v{t}, v{t}\nv_fract_f32 v{t+1}, v{t+1}")
        a(f"s_nop 0\nv_cos_f32 v{dst}, v{t+1}\nv_sin_f32 v{dst+1}, v{t+1}\ns_nop 0\nv_mul_f32 v{dst}, v{dst}, v{t}\nv_mul_f32 v{dst+1}, v{dst+1}, v{t}")
    pk = [0]
    def put(row, src, neg):
        r = PK + (pk[0] & 3); pk[0] += 1
        a(f"v_cvt_pk_bf16_f32 v{r}, v{src}, {'-' if neg else ''}v{src+1}\nds_write_b32 v{AW}, v{r} offset:{272*row}")
    a(f"v_mov_b32 v{PK}, 0x3f80\nds_write_b32 v{AW}, v{PK}")
    pk[0] = 1
    cmul_multi(a, [(W2, W1, W1), (V2, V8, V8), (G+2, G, W1)], TM)
    put(1, V8, True); put(2, V2, True)
    fa, fb = V8, V2
    for k in range(7):
        items = [(FA, fa, V2)]
        if k < 6: items.append((FB, fb, V2))
        if k < 3: items += [(G+4+4*k, G+4*k, W2), (G+6+4*k, G+2+4*k, W2)]
        cmul_multi(a, items, TM)
        put(3+2*k, FA, True)
        if k < 6: put(4+2*k, FB, True)
        fa, fb = FA, FB
    for ks in range(4): a(f"ds_read_b128 {vr(BF+4*ks,4)}, v{AR} offset:{64*ks}")
    def tile(T):
        for ks in range(4): a(f"ds_read_b128 {vr(AF+4*ks,4)}, v{AR} offset:{64*ks}")
    def mm(T):
        for ks in range(4):
            a(f"s_waitcnt lgkmcnt({3-ks})\nv_mfma_f32_16x16x32_bf16 {vr(ACC+4*T,4)}, {vr(AF+4*ks,4)}, {vr(BF+4*ks,4)}, {vr(ACC+4*T,4) if ks else 0}")
    for g in range(8): put(g, G+2*g, False)
    cmul_multi(a, [(G+2*g, G+2*g, WW) for g in range(8)], TM)
    for g in range(8): put(8+g, G+2*g, False)
    tile(0)
    ev = [0, 2, 4, 6]
    cmul_multi(a, [(G+2*g, G+2*g, WW) for g in ev], TM)
    mm(0)
    for i, g in enumerate(ev): put(i, G+2*g, False)
    cmul_multi(a, [(G+2*g, G+2*g, WW) for g in ev], TM)
    for i, g in enumerate(ev): put(4+i, G+2*g, False)
    for al in range(4):
        cmul_multi(a, [(G, G, WW), (G+8, G+8, WW)], TM)
        put(8+2*al, G, False); put(9+2*al, G+8, False)
    tile(1)
    cmul_multi(a, [(G, G, WW), (W2, WW, WW)], TM)
    mm(1)
    cmul_multi(a, [(G+2, G, WW)], TM)
    put(0, G, False); put(1, G+2, False)
    for k in range(1, 4):
        cmul_multi(a, [(G, G, W2), (G+2, G+2, W2)], TM)
        put(2*k, G, False); put(2*k+1, G+2, False)
    cmul_multi(a, [(G, G, W2)], TM)
    put(8, G, False)
    tile(2)
    mm(2)
    a(f"""s_bitcmp1_b32 s{T5}, 0
s_cbranch_scc0 L_kgen_done
v_add_u32 v4, s{T3}, v1
s_nop 7""")
    for q in range(3): a(f"ds_write_b128 v4, {vr(ACC+4*q,4)} offset:{1024*q}")
    a.label("L_kgen_done")

def kgen_table(a, cfg):
    PK = 98; ACC = 136; AF = 120
    a(f"""s_sub_u32 s{T5}, s{S_W}, 1
s_lshr_b32 s{T2}, s{T5}, 1
s_cmp_ge_u32 s{T2}, s{S_NCH}
s_cbranch_scc1 L_ktab_done
s_bitcmp1_b32 s{T5}, 0
s_cbranch_scc1 L_ktab_done
s_add_u32 s{T3}, s{T5}, 1
s_mul_i32 s{T3}, s{T3}, {SCR_SZ}
s_add_u32 s{T3}, s{T3}, {L_SCR}
v_add_u32 v4, s{T3}, v1""")
    for q in range(3): a(f"ds_read_b128 {vr(AF+4*q,4)}, v4 offset:{1024*q}")
    a(f"""s_mul_i32 s{T3}, s{T2}, {TBL_SZ}
s_add_u32 s{T3}, s{T3}, {L_TBL}
v_and_b32 v4, 15, v0
v_lshrrev_b32 v5, 4, v0
v_lshrrev_b32 v6, 1, v5
v_and_b32 v7, 1, v5
v_lshlrev_b32 v8, 8, v6
v_lshl_add_u32 v8, v7, 3, v8
v_lshl_add_u32 v8, v4, 4, v8
v_add_u32 v8, s{T3}, v8
v_lshlrev_b32 v9, 7, v5
v_lshl_add_u32 v9, v4, 3, v9
v_add_u32 v10, 4, v9
v_lshlrev_b32 v11, 7, v7
v_lshl_add_u32 v11, v4, 2, v11
v_add_u32 v11, 256, v11
v_add_u32 v12, 64, v11
v_cmp_lt_u32 vcc, 1, v5
v_lshlrev_b32 v13, 7, v5
v_lshl_add_u32 v13, v4, 1, v13
v_cndmask_b32 v9, v9, v11, vcc
v_cndmask_b32 v10, v10, v12, vcc
v_add_u32 v13, s{T3}, v13
v_add_u32 v9, s{T3}, v9
v_add_u32 v10, s{T3}, v10
v_mov_b32 v14, 0
v_mov_b32 v15, 0
v_mov_b32 v4, s{T3}""")
    a("s_waitcnt lgkmcnt(0)")
    for i in range(12): a(f"v_add_f32 v{ACC+i}, v{ACC+i}, v{AF+i}")
    for i in range(6): a(f"v_cvt_pk_bf16_f32 v{PK+i}, v{ACC+2*i}, v{ACC+2*i+1}")
    a(f"""ds_write_b64 v4, v[14:15]
ds_write_b64 v8, v[{PK}:{PK+1}] offset:8
ds_write_b32 v9, v{PK+2} offset:{8+512}
ds_write_b32 v10, v{PK+3} offset:{8+512}
ds_write_b16 v13, v{PK+4} offset:{8+1024}
ds_write_b16_d16_hi v13, v{PK+4} offset:{8+1024+32}
ds_write_b16 v13, v{PK+5} offset:{8+1024+64}
ds_write_b16_d16_hi v13, v{PK+5} offset:{8+1024+96}""")
    a.label("L_ktab_done")

def expand(a, cfg):
    AD = 60; E = 72; O = 80; LF = 86
    a(f"""s_sub_u32 s{T2}, s{S_W}, 4
s_lshl_b32 s{T3}, s{T2}, 9
s_sub_u32 s{T3}, 2048, s{T3}
v_lshlrev_b32 v4, 3, v0
v_sub_u32 v4, s{T3}, v4
v_cvt_f32_u32 v5, v4
s_mov_b32 s{T4}, {hx(L_TBL + 8 - 2*17024)}
s_mov_b32 s{T5}, {L_TBL + 8 + 256}
v_lshlrev_b32 v6, 1, v4
v_add_u32 v6, {L_TBL + 8}, v6""")
    for e in range(12):
        a(f"v_subrev_f32 v{LF+e}, {hx(f2u(float(e)))}, v5")
        if e >= 9: a(f"v_max_f32 v{LF+e}, 0, v{LF+e}")
    for k in range(6): a(f"v_cvt_pk_bf16_f32 v{E+k}, v{LF+2*k}, v{LF+2*k+1}")
    for e in range(12):
        a(f"v_mad_u32_u16 v{AD+e}, v{E+(e>>1)}, 2, s{T4} op_sel:[{e&1},0,0,0]")
        a(f"v_subrev_u32 v{LF+e}, {2*e}, v6")
    for e in range(12): a(f"v_med3_i32 v{AD+e}, v{AD+e}, v{LF+e}, s{T5}")
    a(f"""s_lshl_b32 s{T3}, s{T2}, 10
s_add_u32 s{T3}, s{T3}, {L_CP}
v_lshl_add_u32 v4, v0, 4, s{T3}""")
    for c in range(3):
        for e in range(12):
            a(f"ds_read_u16{'_d16_hi' if e & 1 else ''} v{(LF if e & 1 else E)+(e>>1)}, v{AD+e} offset:{c*TBL_SZ}")
        a(f"v_add_u32 v5, {c*CP_CH + 2*CP_C}, v4\nv_add_u32 v6, {c*CP_CH + 3*CP_C}, v4\ns_waitcnt lgkmcnt(0)")
        for k in range(6): a(f"v_or_b32 v{E+k}, v{E+k}, v{LF+k}")
        for k in range(5): a(f"v_alignbit_b32 v{O+k}, v{E+k+1}, v{E+k}, 16")
        a(f"""ds_write_b128 v4, {vr(E,4)} offset:{c*CP_CH}
ds_write2_b32 v5, v{E+1}, v{E+2} offset0:0 offset1:1
ds_write2_b32 v5, v{E+3}, v{E+4} offset0:2 offset1:3
ds_write_b128 v4, {vr(O,4)} offset:{c*CP_CH + CP_C}
ds_write2_b32 v6, v{O+1}, v{O+2} offset0:0 offset1:1
ds_write2_b32 v6, v{O+3}, v{O+4} offset0:2 offset1:3""")
    a(f"""s_cmp_lg_u32 s{S_W}, 7
s_cbranch_scc1 L_exp_done
v_lshrrev_b32 v5, 3, v0
v_mul_u32_u24 v6, {CP_CH}, v5
v_bfe_u32 v7, v0, 1, 2
v_mul_u32_u24 v7, {CP_C}, v7
v_and_b32 v8, 1, v0
v_lshl_add_u32 v7, v8, 4, v7
v_add_u32 v6, v6, v7
v_add_u32 v6, {L_CP + 4096}, v6
v_mov_b32 v8, 0
v_mov_b32 v9, 0
v_mov_b32 v10, 0
v_mov_b32 v11, 0
v_mul_u32_u24 v12, {TBL_SZ}, v0
v_add_u32 v12, {L_TBL + 8}, v12
v_mul_u32_u24 v13, {CP_CH}, v0
s_mov_b64 exec, 7
ds_read_u16 v12, v12
s_mov_b64 exec, 0xffffff
ds_write_b128 v6, v[8:11]
s_mov_b64 exec, 7
v_add_u32 v13, {L_CP + 4096}, v13
s_waitcnt lgkmcnt(0)
ds_write_b16 v13, v12
s_mov_b64 exec, -1""")
    a.label("L_exp_done")

def role_k(a, cfg):
    a(f"s_cmp_ge_u32 s{S_W}, 4\ns_cbranch_scc1 L_k_hi")
    crit_loads(a.sub("k"))
    kgen_loads(a)
    typed_offsets(a)
    srd(a, SB, P_WQ, 640*1280)
    wq_dma(a, "a", 20 - NWQA, 20)
    finish_nonce(a)
    a(f"s_cmp_eq_u32 s{S_W}, 3\ns_cbranch_scc1 L_k_w3\ns_waitcnt vmcnt(5)\ns_branch L_k_b0")
    a.label("L_k_w3")
    a("s_waitcnt vmcnt(0)\ns_branch L_k_b0")
    a.label("L_k_hi")
    kgen_loads(a)
    a(f"""s_cmp_lg_u32 s{S_W}, 6
s_cbranch_scc1 L_k_nopf
s_mul_i32 s{T0}, s{S_J}, 25600
v_lshlrev_b32 v2, 7, v0""")
    srd(a, SB, P_WQ, 640*1280)
    for i in range(4):
        a(f"buffer_load_dword v6, v2, s[{SB}:{SB+3}], s{T0} offen\ns_add_u32 s{T0}, s{T0}, 8192")
    a(f"""v_lshlrev_b32 v2, 21, v0
s_mov_b64 exec, 15
buffer_load_dword v6, v2, s[{SWS}:{SWS+3}], 0 offen offset:2048
buffer_load_dword v6, v2, s[{SOUT}:{SOUT+3}], 0 offen
s_mov_b64 exec, -1""")
    a.label("L_k_nopf")
    rest_x(a)
    typed_offsets(a)
    finish_nonce(a)
    a("s_waitcnt vmcnt(15)")
    a.label("L_k_b0")
    stamp(a, cfg, 24)
    a("s_barrier")
    stamp(a, cfg, 1)
    a("s_setprio 0")
    kgen(a, cfg)
    a("s_waitcnt vmcnt(0) lgkmcnt(0)")
    stamp(a, cfg, 2)
    a("s_barrier")
    x_frags(a, 10)
    kgen_table(a, cfg)
    a("s_waitcnt lgkmcnt(0)\ns_barrier")
    stamp(a, cfg, 26)
    a(f"s_cmp_ge_u32 s{S_W}, 4\ns_cbranch_scc1 L_expand")
    wq_dma(a, "b", 0, 20 - NWQA)
    stamp(a, cfg, 3)
    a("s_waitcnt vmcnt(0)")
    stamp(a, cfg, 25)
    a("s_barrier\ns_branch L_join")

def role_w7(a, cfg):
    for i in range(5): div10_offsets(a, 8+i, None, 64*i, 2, False)
    srd(a, SB, P_U, 2048*1280)
    a(f"""s_mul_i32 s{T2}, s{S_J}, {64*1280}
s_mul_i32 s{T3}, s{S_XCD}, 160
s_add_u32 s{T2}, s{T2}, s{T3}
s_add_u32 s{T3}, s{T2}, 40960
s_mov_b32 m0, {L_UST}
s_nop 0""")
    for i in range(10):
        a(f"buffer_load_dwordx4 v{8+i%5}, s[{SB}:{SB+3}], s{T2 if i < 5 else T3} offen lds")
        if i < 9: a(f"s_add_u32 m0, m0, 1024\ns_nop 0")
    rest_x(a)
    stamp(a, cfg, 22)
    typed_offsets(a)
    finish_nonce(a)
    a(f"""v_and_b32 v2, 3, v0
v_lshrrev_b32 v3, 4, v0
v_lshl_add_u32 v2, v3, 2, v2
v_and_b32 v3, 7, v2
v_lshrrev_b32 v4, 3, v2
v_bfe_u32 v5, v0, 2, 2
v_lshl_add_u32 v5, v3, 3, v5
v_mul_u32_u24 v5, 160, v5
v_lshl_add_u32 v5, v4, 3, v5
v_add_u32 v5, {L_UST}, v5
v_lshrrev_b32 v6, 2, v0
v_and_b32 v7, 7, v6
v_lshrrev_b32 v6, 3, v6
v_and_b32 v3, 3, v0
v_lshl_add_u32 v6, v6, 2, v3
v_xor_b32 v7, v7, v6
v_lshlrev_b32 v6, 7, v6
v_lshl_add_u32 v6, v7, 4, v6
v_add_u32 v6, {L_UST}, v6
v_lshrrev_b32 v7, 3, v0
v_and_b32 v3, 7, v0
v_xor_b32 v3, v3, v7
v_lshlrev_b32 v7, 12, v7
v_lshl_add_u32 v7, v3, 4, v7
v_add_u32 v8, {L_UST}, v1
s_mul_i32 s{T2}, s{S_XCD}, {80*4096}
s_lshl_b32 s{T3}, s{S_J}, 7
s_add_u32 s{T2}, s{T2}, s{T3}
s_add_u32 s{T2}, s{T2}, {W_UT}
s_waitcnt vmcnt(15)""")
    stamp(a, cfg, 24)
    a("s_barrier")
    stamp(a, cfg, 1)
    UR = 60
    for i in range(10):
        for hf in range(2):
            a(f"ds_read_b64_tr_b16 {vr(UR+4*i+2*hf,2)}, v5 offset:{16*i + 640*hf}")
    a("s_waitcnt lgkmcnt(0)")
    for i in range(10): a(f"ds_write_b128 v6, {vr(UR+4*i,4)} offset:{1024*i}")
    for i in range(10): a(f"ds_read_b128 {vr(UR+40+4*i,4)}, v8 offset:{1024*i}")
    for k in range(10):
        a(f"s_waitcnt lgkmcnt({9-k})\nbuffer_store_dwordx4 {vr(UR+40+4*k,4)}, v7, s[{SWS}:{SWS+3}], s{T2} offen sc1\ns_add_u32 s{T2}, s{T2}, 32768")
    a("s_waitcnt vmcnt(10)")
    stamp(a, cfg, 2)
    a("s_barrier")
    x_frags(a, 10)
    a(f"""s_lshl_b32 s{T0}, s{S_XCD}, 8
s_lshl_b32 s{T2}, s{S_J}, 2
s_add_u32 s{T0}, s{T0}, s{T2}
s_add_u32 s{T0}, s{T0}, {W_FU}
v_mov_b32 v6, s{S_NONCE}
v_mov_b32 v7, 0
s_waitcnt lgkmcnt(0)
s_barrier
s_waitcnt vmcnt(0)
s_mov_b64 exec, 1
buffer_store_dword v6, v7, s[{SWS}:{SWS+3}], s{T0} offen sc1
s_mov_b64 exec, -1""")
    stamp(a, cfg, 26)
    a.label("L_expand")
    expand(a, cfg)
    stamp(a, cfg, 3)
    a("s_waitcnt lgkmcnt(0)\ns_barrier")

UTR = 200
def w_tr_addr(a, v, t):
    a(f"""v_lshrrev_b32 v{v}, 5, v0
v_lshlrev_b32 v{v}, 4, v{v}
v_bfe_u32 v{t}, v0, 4, 1
v_lshl_add_u32 v{v}, v{t}, 2, v{v}
v_bfe_u32 v{t}, v0, 2, 2
v_add_u32 v{v}, v{v}, v{t}
v_mul_u32_u24 v{v}, 160, v{v}
v_and_b32 v{t}, 3, v0
v_lshl_add_u32 v{v}, v{t}, 3, v{v}
s_mul_i32 s{T0}, s{S_KH}, 51200
v_add_u32 v{v}, s{T0}, v{v}""")

def qproj(a, cfg):
    WR = 96; ACC = 140
    UT2 = 166
    stamp(a, cfg, 4)
    a(f"s_cmp_lg_u32 s{S_W}, 7\ns_cbranch_scc1 L_q_nou")
    a(f"""s_lshl_b32 s{T0}, s{S_XCD}, 8
s_add_u32 s{T0}, s{T0}, {W_FU}
v_lshl_add_u32 v2, v0, 2, s{T0}""")
    poll(a, "u", 2, 1, 3, lanes=32)
    a(f"""s_lshl_b32 s{T0}, s{S_CH0}, 12
s_add_u32 s{T0}, s{T0}, {W_UT}""")
    for c in range(3):
        if c == 2: a(f"s_cmp_lt_u32 s{S_NCH}, 3\ns_cbranch_scc1 L_q_nou")
        for i in range(4):
            a(f"buffer_load_dwordx4 {vr(UT2+16*c+4*i,4)}, v1, s[{SWS}:{SWS+3}], s{T0} offen offset:{1024*i} sc1")
        a(f"s_add_u32 s{T0}, s{T0}, 4096")
    a.label("L_q_nou")
    stamp(a, cfg, 5)
    w_tr_addr(a, 2, 3)
    def reads(i):
        b = WR + 20*(i & 1)
        for ct in range(5):
            for hf in range(2):
                a(f"ds_read_b64_tr_b16 {vr(b+4*ct+2*hf,2)}, v2 offset:{L_WQ + 5120*i + 1280*hf + 32*ct}")
    reads(0)
    for i in range(10):
        b = WR + 20*(i & 1)
        if i + 1 < 10:
            nb = WR + 20*((i+1) & 1)
            for ct in range(5):
                a(f"s_waitcnt lgkmcnt(8)")
                c = "0" if i == 0 else vr(ACC+4*ct, 4)
                a(f"v_mfma_f32_16x16x32_bf16 {vr(ACC+4*ct,4)}, {vr(b+4*ct,4)}, {vr(XF+4*i,4)}, {c}")
                for hf in range(2):
                    a(f"ds_read_b64_tr_b16 {vr(nb+4*ct+2*hf,2)}, v2 offset:{L_WQ + 5120*(i+1) + 1280*hf + 32*ct}")
        else:
            for ct in range(5):
                a(f"s_waitcnt lgkmcnt({8-2*ct})")
                a(f"v_mfma_f32_16x16x32_bf16 {vr(ACC+4*ct,4)}, {vr(b+4*ct,4)}, {vr(XF+4*i,4)}, {vr(ACC+4*ct,4)}")
    stamp(a, cfg, 6)
    a(f"""s_and_b32 s{T0}, s{S_W}, 3
s_mul_i32 s{T1}, s{T0}, 5120
s_add_u32 s{T1}, s{T1}, {L_QX}
v_add_u32 v3, s{T1}, v1
s_mul_i32 s{T1}, s{T0}, 2560
s_add_u32 s{T1}, s{T1}, {L_QST}
v_and_b32 v4, 15, v0
v_mul_u32_u24 v4, 160, v4
v_lshrrev_b32 v5, 4, v0
v_lshl_add_u32 v4, v5, 3, v4
v_add_u32 v4, s{T1}, v4
s_mov_b32 s{T2}, {hx(f2u(LOG2E/math.sqrt(20.0)))}
s_barrier""")
    stamp(a, cfg, 7)
    a(f"s_cmp_eq_u32 s{S_KH}, 0\ns_cbranch_scc0 L_qx_hi")
    for kh in range(2):
        if kh: a.label("L_qx_hi")
        send = [3, 4] if kh == 0 else [0, 1, 2]
        keep = [0, 1, 2] if kh == 0 else [3, 4]
        for ct in send: a(f"ds_write_b128 v3, {vr(ACC+4*ct,4)} offset:{1024*ct}")
        a("s_waitcnt lgkmcnt(0)\ns_barrier")
        for ct in keep: a(f"ds_read_b128 {vr(WR+4*ct,4)}, v3 offset:{1024*ct}")
        for n, ct in enumerate(keep):
            a(f"s_waitcnt lgkmcnt({len(keep)-1-n})")
            for j in range(4): a(f"v_add_f32 v{WR+4*ct+j}, v{WR+4*ct+j}, v{ACC+4*ct+j}")
            for j in range(4): a(f"v_mul_f32 v{WR+4*ct+j}, s{T2}, v{WR+4*ct+j}")
            a(f"v_cvt_pk_bf16_f32 v{ACC+4*ct}, v{WR+4*ct}, v{WR+4*ct+1}\nv_cvt_pk_bf16_f32 v{ACC+4*ct+1}, v{WR+4*ct+2}, v{WR+4*ct+3}")
        for ct in keep: a(f"ds_write_b64 v4, {vr(ACC+4*ct,2)} offset:{32*ct}")
        if kh == 0: a("s_branch L_qx_done")
    a.label("L_qx_done")
    a(f"""s_cmp_lt_u32 s{S_W}, 5
s_cbranch_scc1 L_q_b3
s_cmp_eq_u32 s{S_W}, 7
s_cbranch_scc1 L_q_w7
s_cmp_eq_u32 s{S_W}, 6
s_cbranch_scc1 L_q_w6
v_lshlrev_b32 v2, 3, v0
v_add_u32 v2, {L_UT}, v2
v_mov_b32 v4, 0
v_mov_b32 v5, 0""")
    for c in range(3): a(f"ds_write_b64 v2, v[4:5] offset:{UT_CH*c}")
    a("s_branch L_q_b3")
    a.label("L_q_w6")
    a(f"""s_lshl_b32 s{T0}, s{S_XCD}, 10
s_add_u32 s{T0}, s{T0}, {W_FKV}
v_add_u32 v3, s{T0}, v1""")
    poll(a, "kv", 3, 4, 4)
    a("s_branch L_q_b3")
    a.label("L_q_w7")
    a(f"v_add_u32 v2, {L_UT + 512}, v1\ns_waitcnt vmcnt(0)")
    for c in range(3):
        for i in range(4): a(f"ds_write_b128 v2, {vr(UT2+16*c+4*i,4)} offset:{UT_CH*c + 1024*i}")
    a.label("L_q_b3")
    for c in range(3):
        a(f"""s_add_u32 s{T2}, s{S_CH0}, {c}
s_min_u32 s{T2}, s{T2}, 639
s_lshl_b32 s{T2}, s{T2}, 1
s_and_b32 s{T2}, s{T2}, 0xfffffffc
s_load_dword s{S_D0+c}, s[{P_DSK}:{P_DSK+1}], s{T2}""")
    attn_init(a, False)
    stamp(a, cfg, 27)
    a("s_waitcnt lgkmcnt(0)\ns_barrier")
    stamp(a, cfg, 8)
    dump_lds(a, cfg, "b3", 81920, 10)

class AR: pass
AR.S = [8, 40]; AR.CZ = 72; AR.OA = 104; AR.OB = 120
AR.K16 = 136; AR.K4 = 140; AR.V0 = 144; AR.V1 = 148
AR.IDX = 152; AR.aK16 = 153; AR.aK4 = 154; AR.aV = 155
AR.QA = 156; AR.QB = 160; AR.Q4 = 164

def attn_init(a, fb):
    R = AR
    a(f"""s_mul_i32 s{T0}, s{S_KH}, {BLK}
v_add_u32 v{R.aK16}, s{T0}, v1
v_lshl_add_u32 v{R.aK4}, v0, 3, s{T0}
v_and_b32 v2, 31, v0
v_lshrrev_b32 v3, 5, v0
v_mul_u32_u24 v3, 320, v3
v_lshl_add_u32 v2, v2, 4, v3
v_add_u32 v{R.aV}, s{T0}, v2
v_mov_b32 v{R.IDX}, 0xdddd""")
    for i in range(32): a(f"v_mov_b32 v{R.OA+i}, 0")
    for i in range(8): a(f"v_mov_b32 v{R.V0+i}, 0")
    a(f"s_mov_b32 exec_lo, 0x00100000\ns_mov_b32 exec_hi, 0x00100000")
    for i in range(8): a(f"v_mov_b32 v{R.V0+i}, 0x3f803f80")
    a("s_mov_b64 exec, -1")

class Dma:
    def __init__(s, items): s.items = list(items)
    def pop(s, a, n=1):
        for _ in range(n):
            if s.items: a(s.items.pop(0))
    def flush(s, a): s.pop(a, len(s.items))

S_DM = 90; S_DO = 91
def kv_dma_items(a, first, n):
    a(f"""s_lshl_b32 s{S_DM}, s{S_W}, 10
s_add_u32 s{S_DM}, s{S_DM}, {first*1024}
s_add_u32 s{S_DO}, s{S_DM}, {W_KV}""")
    return Dma([f"s_mov_b32 m0, s{S_DM}\ns_add_u32 s{S_DM}, s{S_DM}, 8192\nbuffer_load_dwordx4 v1, s[{SWS}:{SWS+3}], s{S_DO} offen sc1 lds\ns_add_u32 s{S_DO}, s{S_DO}, 8192"] * n)

def post_q(a, cfg):
    a(f"""s_and_b32 s{T0}, s{S_W}, 3
s_mul_i32 s{T1}, s{T0}, 2560
s_add_u32 s{T1}, s{T1}, {L_QST}
v_and_b32 v2, 15, v0
v_mul_u32_u24 v2, 160, v2
v_bfe_u32 v3, v0, 4, 1
v_mul_u32_u24 v3, 40, v3
v_add3_u32 v2, v2, v3, s{T1}
v_lshrrev_b32 v3, 5, v0
v_lshl_add_u32 v4, v3, 4, v2
v_mul_u32_u24 v3, 80, v3
v_add_u32 v3, v2, v3
ds_read2_b64 {vr(AR.QA,4)}, v4 offset0:0 offset1:1
ds_read2_b64 {vr(AR.QB,4)}, v4 offset0:10 offset1:11
ds_read_b64 {vr(AR.Q4,2)}, v3 offset:32""")
    if cfg.nonce_update:
        a(f"""s_or_b32 s{T2}, s2, s{S_W}
s_cmp_lg_u32 s{T2}, 0
s_cbranch_scc1 L_pq_done
v_mov_b32 v2, {W_NONCE}
v_mov_b32 v3, s{S_NONCE}
s_mov_b64 exec, 1
buffer_store_dword v3, v2, s[{SWS}:{SWS+3}], 0 offen
s_mov_b64 exec, -1""")
    a.label("L_pq_done")
    for c in range(3):
        a(f"""s_add_u32 s{T2}, s{S_CH0}, {c}
s_min_u32 s{T2}, s{T2}, 639
s_and_b32 s{T2}, s{T2}, 1
s_lshl_b32 s{T2}, s{T2}, 4
s_lshr_b32 s{S_D0+c}, s{S_D0+c}, s{T2}
s_lshl_b32 s{S_D0+c}, s{S_D0+c}, 16""")
    stamp(a, cfg, 9)

def conv(a, cfg):
    ACC = 8; FA = [40, 166]; FB = [72, 198]
    tab = {0: (2, 0, 4), 1: (2, 4, 4), 2: (0, 0, 3), 3: (0, 3, 3), 4: (0, 6, 2), 5: (1, 6, 2), 6: (1, 0, 3), 7: (1, 3, 3)}
    chp = sum(tab[w][0] << (4*w) for w in range(8)); r0p = sum(tab[w][1] << (4*w) for w in range(8)); cnp = sum(tab[w][2] << (4*w) for w in range(8))
    dma = kv_dma_items(a, 0, 10)
    a(f"""s_lshl_b32 s{T0}, s{S_W}, 2
s_lshr_b32 s{T1}, {hx(chp)}, s{T0}
s_and_b32 s{T1}, s{T1}, 15
s_lshr_b32 s{T2}, {hx(r0p)}, s{T0}
s_and_b32 s{T2}, s{T2}, 15
s_lshr_b32 s{T3}, {hx(cnp)}, s{T0}
s_and_b32 s{T3}, s{T3}, 15
s_cmp_ge_u32 s{T1}, s{S_NCH}
s_cbranch_scc1 L_conv_skip
s_mul_i32 s{T4}, s{T1}, {CP_CH}
s_lshl_b32 s{T5}, s{T2}, 6
s_sub_u32 s{T4}, s{T4}, s{T5}
s_add_u32 s{T4}, s{T4}, {L_CP + 2*2032 - 512*7 - 192}
s_mul_i32 s{T6}, s{T1}, {UT_CH}
s_sub_u32 s{T6}, s{T6}, s{T5}
s_add_u32 s{T6}, s{T6}, {L_UT + 480 - 192}
v_and_b32 v2, 15, v0
v_lshrrev_b32 v3, 4, v0
v_sub_u32 v4, 0, v2
v_and_b32 v4, 3, v4
v_add_u32 v5, v2, v4
v_mul_u32_u24 v4, {CP_C}, v4
v_lshlrev_b32 v5, 1, v5
v_sub_u32 v4, v4, v5
v_lshl_add_u32 v4, v3, 4, v4
v_add_u32 v4, s{T4}, v4
v_lshlrev_b32 v5, 5, v2
v_lshl_add_u32 v5, v3, 4, v5
v_add_u32 v5, s{T6}, v5""")
    def reads(task, i):
        st = task & 1; d = 192 - 64*task
        return [f"ds_read_b128 {vr(FB[st]+4*i,4)}, v5 offset:{512*i + d}",
                f"ds_read_b64 {vr(FA[st]+4*i,2)}, v4 offset:{512*(7-i) + d}",
                f"ds_read_b64 {vr(FA[st]+4*i+2,2)}, v4 offset:{512*(7-i) + 8 + d}"]
    allr = [r for i in range(8) for r in reads(0, i)]
    for r in allr[:15]: a(r)
    pend = allr[15:]
    for task in range(4):
        st = task & 1
        queue = [(r, task) for r in pend] + ([(r, task+1) for i in range(8) for r in reads(task+1, i)] if task < 3 else [])
        issued_own = 24 - len(pend); issued_next = 0
        nm = 0
        for i in range(8):
            while issued_own < 3*(i+1):
                a(queue.pop(0)[0]); issued_own += 1
            outstanding_after = issued_own - 3*(i+1) + issued_next
            a(f"s_waitcnt lgkmcnt({min(15, outstanding_after)})")
            for j in range(i + 1):
                c = "0" if task == 0 and j == 0 else vr(ACC+4*i, 4)
                a(f"v_mfma_f32_16x16x32_bf16 {vr(ACC+4*i,4)}, {vr(FA[st]+4*j,4)}, {vr(FB[st]+4*(i-j),4)}, {c}")
                nm += 1
                if queue and (queue[0][1] == task or i >= 3):
                    if issued_own + issued_next - 3*(i+1) < 14 or queue[0][1] != task:
                        r, t = queue.pop(0); a(r)
                        if t == task: issued_own += 1
                        else: issued_next += 1
                if task < 2 and nm % 7 == 3: dma.pop(a)
        pend = [r for r, t in queue]
        if task == 1:
            dma.flush(a)
            a(f"s_cmp_le_u32 s{T3}, 2\ns_cbranch_scc1 L_conv_done")
        if task == 2:
            a(f"s_cmp_le_u32 s{T3}, 3\ns_cbranch_scc1 L_conv_done")
    a("s_branch L_conv_done")
    a.label("L_conv_skip")
    kv_dma_items(a, 0, 10).flush(a)
    for i in range(32): a(f"v_mov_b32 v{ACC+i}, 0")
    a.label("L_conv_done")
    stamp(a, cfg, 10)
    a(f"""v_and_b32 v2, 15, v0
v_lshrrev_b32 v3, 4, v0
v_lshl_add_u32 v2, v3, 2, v2
v_and_b32 v2, 15, v2
v_lshl_add_u32 v2, v3, 4, v2
s_lshl_b32 s{T0}, s{S_W}, 13
s_add_u32 s{T0}, s{T0}, {L_PART}
v_lshl_add_u32 v2, v2, 4, s{T0}
v_lshrrev_b32 v3, 2, v0
v_and_b32 v4, 3, v0
v_lshl_add_u32 v3, v4, 2, v3
v_and_b32 v3, 15, v3
v_lshl_add_u32 v3, v4, 4, v3
s_lshl_b32 s{T0}, s{S_W}, 10
s_add_u32 s{T0}, s{T0}, {L_PART}
v_lshl_add_u32 v3, v3, 4, s{T0}
s_lshl_b32 s{T0}, s{S_W}, 9
v_lshl_add_u32 v4, v0, 3, s{T0}
v_add_u32 v5, {L_UT + 512}, v4
s_lshl_b32 s{T1}, s{S_CH0}, 12
s_add_u32 s{T1}, s{T1}, {W_YT}
s_waitcnt lgkmcnt(0)
s_barrier""")
    for i in range(8): a(f"ds_write_b128 v2, {vr(ACC+4*i,4)} offset:{1024*i}")
    tail_addrs(a)
    a("s_waitcnt lgkmcnt(0)\ns_barrier")
    stamp(a, cfg, 28)
    src = {0: [2, 3, 4], 1: [5, 6, 7], 2: [0, 1]}
    PR = 8
    for c in range(3):
        b = PR + 16*c
        for n, w in enumerate(src[c]): a(f"ds_read_b128 {vr(b+4*n,4)}, v3 offset:{8192*w}")
        a(f"ds_read_b64 {vr(b+12,2)}, v5 offset:{UT_CH*c}")
    for i in range(8): a(f"v_mov_b32 v{AR.S[1]+24+i}, 0")
    for c in range(3):
        if c == 2: a(f"s_cmp_lt_u32 s{S_NCH}, 3\ns_cbranch_scc1 L_y_done")
        b = PR + 16*c
        a(f"s_waitcnt lgkmcnt({[7, 3, 0][c]})")
        a(f"""v_lshlrev_b32 v{b+14}, 16, v{b+12}
v_and_b32 v{b+12}, 0xffff0000, v{b+12}
v_lshlrev_b32 v{b+15}, 16, v{b+13}
v_and_b32 v{b+13}, 0xffff0000, v{b+13}""")
        us = [b+14, b+12, b+15, b+13]
        for j in range(4): a(f"v_add_f32 v{b+j}, v{b+j}, v{b+4+j}")
        if len(src[c]) == 3:
            for j in range(4): a(f"v_add_f32 v{b+j}, v{b+j}, v{b+8+j}")
        for j in range(4): a(f"v_fma_f32 v{b+j}, v{us[j]}, s{S_D0+c}, v{b+j}")
        a(f"""v_cvt_pk_bf16_f32 v{b+4}, v{b}, v{b+1}
v_cvt_pk_bf16_f32 v{b+5}, v{b+2}, v{b+3}
buffer_store_dwordx2 {vr(b+4,2)}, v4, s[{SWS}:{SWS+3}], s{T1} offen sc1
s_add_u32 s{T1}, s{T1}, 4096""")
    a("s_waitcnt vmcnt(3)\ns_branch L_y_b7")
    a.label("L_y_done")
    a("s_waitcnt vmcnt(2) lgkmcnt(0)")
    a.label("L_y_b7")
    a("s_barrier")
    stamp(a, cfg, 11)

A_YR, A_YW, A_YB, A_YG0, A_YG1, A_W, A_OW, A_OB, A_OG, A_XW, A_XR, A_PW, A_PG0, A_PG1, A_YD, A_FO = range(226, 242)
def tail_addrs(a):
    a(f"""v_and_b32 v6, 3, v0
v_lshrrev_b32 v7, 4, v0
v_lshl_add_u32 v6, v7, 2, v6
v_lshrrev_b32 v7, 1, v6
v_lshlrev_b32 v7, 3, v7
v_bfe_u32 v{A_YR}, v0, 2, 2
v_add_u32 v7, v7, v{A_YR}
v_lshlrev_b32 v7, 7, v7
v_and_b32 v6, 1, v6
v_lshl_add_u32 v7, v6, 3, v7
s_lshl_b32 s{T0}, s{S_W}, 4
s_add_u32 s{T0}, s{T0}, {L_YT}
v_add_u32 v{A_YR}, s{T0}, v7
v_lshrrev_b32 v6, 2, v0
v_and_b32 v7, 1, v6
v_and_b32 v{A_YW}, 3, v0
v_lshl_add_u32 v7, v7, 2, v{A_YW}
v_mul_u32_u24 v7, 160, v7
v_lshrrev_b32 v6, 1, v6
v_lshl_add_u32 v7, v6, 4, v7
s_mul_i32 s{T0}, s{S_W}, 1280
s_add_u32 s{T0}, s{T0}, {L_YS}
v_add_u32 v{A_YW}, s{T0}, v7
v_add_u32 v{A_YB}, s{T0}, v1""")
    for d, add in ((A_YG0, 0), (A_YG1, 64)):
        a(f"""v_add_u32 v6, {add}, v0
v_mul_u32_u24 v7, 6554, v6
v_lshrrev_b32 v7, 16, v7
v_mul_u32_u24 v{d}, 10, v7
v_sub_u32 v6, v6, v{d}
v_mul_u32_u24 v7, 2560, v7
v_lshl_add_u32 v{d}, v6, 4, v7""")
    w_tr_addr(a, A_W, 6)
    a(f"""s_mul_i32 s{T0}, s{S_W}, {OT_SZ}
s_add_u32 s{T0}, s{T0}, {L_OT}
v_and_b32 v6, 15, v0
v_mul_u32_u24 v6, 80, v6
v_bfe_u32 v7, v0, 4, 1
v_mul_u32_u24 v7, 40, v7
v_add3_u32 v7, v6, v7, s{T0}
v_lshrrev_b32 v{A_OW}, 5, v0
v_lshl_add_u32 v{A_OW}, v{A_OW}, 3, v7
v_lshrrev_b32 v7, 4, v0
v_lshl_add_u32 v6, v7, 4, v6
v_add_u32 v{A_OB}, s{T0}, v6
s_lshl_b32 s{T0}, s{S_HG}, 1
s_add_u32 s{T0}, s{T0}, s{S_KH}
s_mul_i32 s{T0}, s{T0}, 1280
s_lshl_b32 s{T2}, s{S_RB}, 2
s_add_u32 s{T2}, s{T2}, s{S_RT}
s_mul_i32 s{T2}, s{T2}, 20480
s_add_u32 s{T0}, s{T0}, s{T2}
s_add_u32 s{T0}, s{T0}, {W_O}
v_add_u32 v{A_OG}, s{T0}, v1
s_mul_i32 s{T0}, s{S_W}, 3072
s_add_u32 s{T0}, s{T0}, {L_XCH}
v_add_u32 v{A_XW}, s{T0}, v1
s_xor_b32 s{T0}, s{S_W}, 4
s_mul_i32 s{T0}, s{T0}, 3072
s_add_u32 s{T0}, s{T0}, {L_XCH}
v_add_u32 v{A_XR}, s{T0}, v1
v_lshrrev_b32 v6, 3, v0
v_lshlrev_b32 v6, 12, v6
v_and_b32 v7, 7, v0
v_lshl_add_u32 v{A_YD}, v7, 4, v6
s_and_b32 s{T2}, s{S_W}, 3
s_lshl_b32 s{T0}, s{S_RB}, 8
s_lshl_b32 s{T3}, s{S_KH}, 7
s_add_u32 s{T0}, s{T0}, s{T3}
s_lshl_b32 s{T3}, s{T2}, 2
s_add_u32 s{T0}, s{T0}, s{T3}
s_add_u32 s{T0}, s{T0}, {W_FO}
v_lshl_add_u32 v{A_FO}, v0, 4, s{T0}
s_mul_i32 s{T0}, s{S_W}, {OT_SZ}
s_add_u32 s{T0}, s{T0}, {L_OT}
v_and_b32 v6, 15, v0
s_mul_i32 s{T3}, s{S_KH}, 32
s_sub_u32 s{T3}, 96, s{T3}
v_mul_u32_u24 v6, s{T3}, v6
v_lshrrev_b32 v7, 4, v0
v_lshl_add_u32 v6, v7, 3, v6
v_add_u32 v{A_PW}, s{T0}, v6
s_cmp_eq_u32 s{S_KH}, 0
s_cbranch_scc0 L_ta_hi
v_mul_u32_u24 v6, 10923, v0
v_lshrrev_b32 v6, 16, v6
v_mul_u32_u24 v7, 6, v6
v_sub_u32 v7, v0, v7
v_mul_u32_u24 v6, 2560, v6
v_lshl_add_u32 v{A_PG0}, v7, 4, v6
v_add_u32 v7, 64, v0
v_mul_u32_u24 v6, 10923, v7
v_lshrrev_b32 v6, 16, v6
v_mul_u32_u24 v{A_PG1}, 6, v6
v_sub_u32 v7, v7, v{A_PG1}
v_mul_u32_u24 v6, 2560, v6
v_lshl_add_u32 v{A_PG1}, v7, 4, v6
s_branch L_ta_done""")
    a.label("L_ta_hi")
    a(f"""v_lshrrev_b32 v6, 2, v0
v_mul_u32_u24 v6, 2560, v6
v_and_b32 v7, 3, v0
v_lshl_add_u32 v6, v7, 4, v6
v_add_u32 v{A_PG0}, 96, v6
v_mov_b32 v{A_PG1}, 0""")
    a.label("L_ta_done")

def attn_half(a, cur, par, oK16, oV0, oV1, oK4, cz, extra=None):
    R = AR; S = R.S[cur]; N = R.S[1-cur]
    e = lambda k: a(f"v_exp_f32 v{S+k}, v{S+k} ; PHYS")
    x = extra if extra else (lambda: None)
    def vread(dst, off):
        a(f"s_mov_b64 exec, s[{VM}:{VM+1}]\nds_read_b128 {vr(dst,4)}, v{R.aV} offset:{off}\ns_mov_b64 exec, -1")
    a("s_waitcnt lgkmcnt(1)")
    a(f"v_mfma_f32_32x32x16_bf16 {vr(N,16)}, {vr(R.K16,4)}, {vr(R.QA,4)}, {vr(R.CZ,16) if cz else 0}")
    for k in range(0, 4): e(k)
    a(f"v_smfmac_f32_32x32x32_bf16 {vr(R.OB,16)}, {vr(R.V1,4)}, {vr(N+24,8)}, v{R.IDX}")
    vread(R.V1, oV1)
    for k in range(4, 8): e(k)
    a(f"v_mfma_f32_32x32x16_bf16 {vr(N+16,16)}, {vr(R.K16,4)}, {vr(R.QB,4)}, {vr(R.CZ+16,16) if cz else 0}")
    a(f"ds_read_b128 {vr(R.K16,4)}, v{R.aK16} offset:{oK16}")
    for k in range(8, 12): e(k)
    a("s_waitcnt lgkmcnt(2)")
    a(f"v_smfmac_f32_32x32x32_bf16 {vr(R.OA,16)}, {vr(R.V0,4)}, {vr(S,8)}, v{R.IDX}")
    x()
    for k in range(12, 16): e(k)
    a(f"v_mfma_f32_32x32x4bf16_1k {vr(N,32)}, {vr(R.K4,2)}, {vr(R.Q4,2)}, {vr(N,32)} cbsz:1 abid:{1-par} ; PHYS")
    if oK4 is not None: a(f"ds_read_b64 {vr(R.K4,2)}, v{R.aK4} offset:{oK4}")
    for k in range(16, 20): e(k)
    x()
    for k in range(20, 24): e(k)
    a(f"s_waitcnt lgkmcnt({1 + (oK4 is not None)})")
    a(f"v_smfmac_f32_32x32x32_bf16 {vr(R.OA,16)}, {vr(R.V1,4)}, {vr(S+8,8)}, v{R.IDX}")
    for k in range(24, 28): e(k)
    a(f"v_smfmac_f32_32x32x32_bf16 {vr(R.OB,16)}, {vr(R.V0,4)}, {vr(S+16,8)}, v{R.IDX}")
    vread(R.V0, oV0)
    x()
    for k in range(28, 32): e(k)

def attn_first(a, cz):
    R = AR
    a(f"""ds_read_b128 {vr(R.K16,4)}, v{R.aK16}
ds_read_b64 {vr(R.K4,2)}, v{R.aK4} offset:2048
s_waitcnt lgkmcnt(0)
v_mfma_f32_32x32x16_bf16 {vr(R.S[0],16)}, {vr(R.K16,4)}, {vr(R.QA,4)}, {vr(R.CZ,16) if cz else 0}
v_mfma_f32_32x32x16_bf16 {vr(R.S[0]+16,16)}, {vr(R.K16,4)}, {vr(R.QB,4)}, {vr(R.CZ+16,16) if cz else 0}
ds_read_b128 {vr(R.K16,4)}, v{R.aK16} offset:1024
s_mov_b64 exec, s[{VM}:{VM+1}]
ds_read_b128 {vr(R.V0,4)}, v{R.aV} offset:2560
s_mov_b64 exec, -1
s_nop 7
v_mfma_f32_32x32x4bf16_1k {vr(R.S[0],32)}, {vr(R.K4,2)}, {vr(R.Q4,2)}, {vr(R.S[0],32)} cbsz:1 abid:0
s_nop 15
s_nop 2""")

def attn_body(a, cz, extra=None, prio=True):
    R = AR; ST = 2*BLK
    for b in range(4):
        base = b*ST; nxt = base + ST
        if prio: a(f"s_setprio {3-b}")
        attn_half(a, 0, 0, nxt, base + 2560 + 1280, base + 2560 + 640, nxt + 2048, cz, extra)
        attn_half(a, 1, 1, nxt + 1024, nxt + 2560, base + 2560 + 1920, None, cz, extra)
    a(f"""v_add_u32 v{R.aK16}, {4*ST}, v{R.aK16}
v_add_u32 v{R.aK4}, {4*ST}, v{R.aK4}
v_add_u32 v{R.aV}, {4*ST}, v{R.aV}""")

def tail_dma_setup(a):
    a(f"""s_cmp_ge_u32 s{S_W}, 5
s_cbranch_scc1 L_td_y""")
    srd(a, SA, P_WO, 640*1280)
    a(f"""s_mul_i32 s{S_DO}, s{S_HG}, 160
s_lshl_b32 s{S_DM}, s{S_W}, 10""")
    for t in range(5):
        a(f"s_cmp_eq_u32 s{S_W}, {t}\ns_cbranch_scc1 L_td_t{t}")
    for t in range(5):
        a.label(f"L_td_t{t}")
        a(f"v_mov_b32 v{VX}, v{WO5+t}\ns_branch L_td_done")
    a.label("L_td_y")

def attention(a, cfg):
    R = AR
    dma = kv_dma_items(a, 80, 10)
    attn_first(a, False)
    stamp(a, cfg, 12)
    attn_body(a, False, lambda: dma.pop(a))
    a(f"""s_lshl_b32 s{T0}, s{S_XCD}, 10
s_lshl_b32 s{T1}, s{S_J}, 5
s_add_u32 s{T0}, s{T0}, s{T1}
s_lshl_b32 s{T1}, s{S_W}, 2
s_add_u32 s{T0}, s{T0}, s{T1}
s_add_u32 s{T0}, s{T0}, {W_FY}
v_mov_b32 v2, s{S_NONCE}
v_mov_b32 v3, 0
s_mov_b32 s{S_IT}, 0
s_waitcnt vmcnt(0)
s_mov_b64 exec, 1
buffer_store_dword v2, v3, s[{SWS}:{SWS+3}], s{T0} offen sc1
s_mov_b64 exec, -1
s_barrier""")
    a.label("L_attn_loop")
    attn_body(a, False)
    a(f"""s_add_u32 s{S_IT}, s{S_IT}, 1
s_cmp_lt_u32 s{S_IT}, 2
s_cbranch_scc1 L_attn_loop""")
    a(f"""s_cmp_lg_u32 s{S_W}, 7
s_cbranch_scc1 L_attn_nopoll
s_lshl_b32 s{T0}, s{S_XCD}, 10
s_add_u32 s{T0}, s{T0}, {W_FY}
v_add_u32 v2, s{T0}, v1""")
    poll(a, "y", 2, 4, 4)
    a.label("L_attn_nopoll")
    a("s_barrier")
    a.label("L_tail_dma")
    tail_dma_body(a, cfg)

def tail_dma_items(a, tag):
    a(f"s_cmp_ge_u32 s{S_W}, 5\ns_cbranch_scc1 L_td_y{tag}")
    srd(a, SA, P_WO, 640*1280)
    a(f"""s_mul_i32 s{S_DO}, s{S_HG}, 160
s_lshl_b32 s{S_DM}, s{S_W}, 10
s_mov_b32 s92, 40960
s_mov_b32 s93, 5120
s_mov_b32 s94, 20""")
    for t in range(5):
        a(f"s_cmp_lg_u32 s{S_W}, {t}\ns_cbranch_scc1 L_td_n{t}{tag}\nv_mov_b32 v{VX}, v{WO5+t}")
        a.label(f"L_td_n{t}{tag}")
    a(f"s_branch L_td_done{tag}")
    a.label(f"L_td_y{tag}")
    srd(a, SA, P_WS, WS_SZ)
    a(f"""s_sub_u32 s{T2}, s{S_W}, 5
s_mul_i32 s{S_DO}, s{S_XCD}, {80*4096}
s_lshl_b32 s{T1}, s{S_J}, 7
s_add_u32 s{S_DO}, s{S_DO}, s{T1}
s_lshl_b32 s{T1}, s{T2}, 15
s_add_u32 s{S_DO}, s{S_DO}, s{T1}
s_add_u32 s{S_DO}, s{S_DO}, {W_YT}
s_lshl_b32 s{S_DM}, s{T2}, 10
s_add_u32 s{S_DM}, s{S_DM}, {L_YT}
s_mov_b32 s92, {3*32768}
s_mov_b32 s93, 3072
s_cmp_eq_u32 s{T2}, 0
s_cselect_b32 s94, 4, 3
v_mov_b32 v{VX}, v{A_YD}""")
    a.label(f"L_td_done{tag}")
    n = [0]
    def item():
        n[0] += 1
        return f"""s_cmp_lt_u32 s94, {n[0]}
s_cbranch_scc1 L_tds{tag}_{n[0]}
s_mov_b32 m0, s{S_DM}
s_add_u32 s{S_DM}, s{S_DM}, s93
buffer_load_dwordx4 v{VX}, s[{SA}:{SA+3}], s{S_DO} offen sc1 lds
s_add_u32 s{S_DO}, s{S_DO}, s92
L_tds{tag}_{n[0]}:"""
    return Dma([item() for _ in range(20)])

def tail_dma_body(a, cfg):
    R = AR
    dma = tail_dma_items(a, "m")
    attn_body(a, False, lambda: dma.pop(a))
    dma.flush(a)
    a(f"v_smfmac_f32_32x32x32_bf16 {vr(R.OB,16)}, {vr(R.V1,4)}, {vr(R.S[1]+24,8)}, v{R.IDX}\ns_setprio 0")

def o_finish(a, cfg):
    R = AR
    X = 8; Y = 24
    a.label("L_ofin")
    stamp(a, cfg, 13)
    a(f"""v_mov_b32 v4, {L_DEC}
v_mov_b32 v5, 0
s_mov_b32 s{T0}, {hx(f2u(2.0**-40))}
s_mov_b32 s{T1}, {hx(f2u(2.0**40))}
s_waitcnt vmcnt(0) lgkmcnt(0)
s_nop 4
s_barrier""")
    stamp(a, cfg, 29)
    a(f"ds_write_b32 v4, v5\ns_cmp_eq_u32 s{S_KH}, 0\ns_cbranch_scc0 L_ox_hi")
    for kh in range(2):
        if kh: a.label("L_ox_hi")
        send, keep = (R.OB, R.OA) if kh == 0 else (R.OA, R.OB)
        for q in range(3): a(f"ds_write_b128 v{A_XW}, {vr(send+4*q,4)} offset:{1024*q}")
        a("s_waitcnt lgkmcnt(0)\ns_barrier")
        for q in (2, 0, 1): a(f"ds_read_b128 {vr(X+4*q,4)}, v{A_XR} offset:{1024*q}")
        a(f"s_waitcnt lgkmcnt(2)\nv_add_f32 v{Y}, v{X+8}, v{keep+8}\nv_add_f32 v{Y+1}, v{X+8}, v{keep+8}")
        for j in range(4): a(f"v_add_f32 v{X+8+j}, v{X+8+j}, v{keep+8+j}")
        a(f"v_permlane32_swap_b32 v{Y}, v{Y+1}\ns_waitcnt lgkmcnt(0)")
        for j in range(8): a(f"v_add_f32 v{X+j}, v{X+j}, v{keep+j}")
        if kh == 0: a("s_branch L_ox_done")
    a.label("L_ox_done")
    a(f"""v_rcp_f32 v{Y}, v{Y+1}
v_cmp_le_f32 vcc, s{T0}, v{Y+1}
v_cmp_ge_f32 s[{T2}:{T3}], s{T1}, v{Y+1}""")
    for k in range(12): a(f"v_mul_f32 v{X+k}, v{X+k}, v{Y}")
    for k in range(6): a(f"v_cvt_pk_bf16_f32 v{Y+2+k}, v{X+2*k}, v{X+2*k+1}")
    a(f"""ds_write_b64 v{A_OW}, {vr(Y+2,2)}
ds_write_b64 v{A_OW}, {vr(Y+4,2)} offset:16
s_mov_b32 exec_hi, 0
ds_write_b64 v{A_OW}, {vr(Y+6,2)} offset:32
s_mov_b32 exec_hi, -1
ds_read_b128 {vr(X,4)}, v{A_OB}
ds_read_b128 {vr(X+4,4)}, v{A_OB} offset:64
s_and_b64 vcc, vcc, s[{T2}:{T3}]
s_cmp_eq_u64 vcc, -1
s_cbranch_scc1 L_ox_ok
s_cmp_lg_u32 s{S_FB}, 0
s_cbranch_scc1 L_ox_ok
v_mov_b32 v5, 1
ds_write_b32 v4, v5
s_waitcnt lgkmcnt(0)""")
    a.label("L_ox_ok")
    a(f"""s_waitcnt lgkmcnt(1)
buffer_store_dwordx4 {vr(X,4)}, v{A_OG}, s[{SWS}:{SWS+3}], 0 offen sc1
s_mov_b64 exec, 0xffff
s_waitcnt lgkmcnt(0)
buffer_store_dwordx4 {vr(X+4,4)}, v{A_OG}, s[{SWS}:{SWS+3}], 0 offen offset:1024 sc1
s_mov_b64 exec, -1
s_barrier""")
    stamp(a, cfg, 14)
    a(f"ds_read_b32 v5, v4")

def fallback(a, cfg):
    R = AR
    a.label("L_fallback")
    a(f"s_mov_b32 s{S_FB}, 1\ns_waitcnt vmcnt(0) lgkmcnt(0)\ns_barrier")
    kv_dma_items(a, 0, 20).flush(a)
    a(f"""v_mov_b32 v{R.aK16}, v1
v_lshlrev_b32 v{R.aK4}, 3, v0
v_mov_b32 v2, 0xff7fffff
v_mov_b32 v3, 0xff7fffff
s_mov_b32 s{S_IT}, 0
s_waitcnt vmcnt(0)
s_barrier""")
    a.label("L_fb_loop")
    for par in range(2):
        a(f"""ds_read_b128 {vr(R.K16,4)}, v{R.aK16} offset:{1024*par}
ds_read_b64 {vr(R.K4,2)}, v{R.aK4} offset:2048
s_waitcnt lgkmcnt(0)
v_mfma_f32_32x32x16_bf16 {vr(R.S[0],16)}, {vr(R.K16,4)}, {vr(R.QA,4)}, 0
v_mfma_f32_32x32x16_bf16 {vr(R.S[0]+16,16)}, {vr(R.K16,4)}, {vr(R.QB,4)}, 0
s_nop 9
v_mfma_f32_32x32x4bf16_1k {vr(R.S[0],32)}, {vr(R.K4,2)}, {vr(R.Q4,2)}, {vr(R.S[0],32)} cbsz:1 abid:{par}
s_nop 15
s_nop 3""")
        for k in range(0, 16, 2):
            a(f"v_max3_f32 v2, v2, v{R.S[0]+k}, v{R.S[0]+k+1}\nv_max3_f32 v3, v3, v{R.S[0]+16+k}, v{R.S[0]+17+k}")
    a(f"""v_add_u32 v{R.aK16}, {BLK}, v{R.aK16}
v_add_u32 v{R.aK4}, {BLK}, v{R.aK4}
s_add_u32 s{S_IT}, s{S_IT}, 1
s_cmp_lt_u32 s{S_IT}, 32
s_cbranch_scc1 L_fb_loop
v_mov_b32 v4, v2
v_mov_b32 v5, v3
s_nop 1
v_permlane32_swap_b32 v2, v4
v_permlane32_swap_b32 v3, v5
v_max_f32 v2, v2, v4
v_max_f32 v3, v3, v5""")
    for i in range(16): a(f"v_sub_f32 v{R.CZ+i}, 0, v2\nv_sub_f32 v{R.CZ+16+i}, 0, v3")
    attn_init(a, True)
    for i in range(8): a(f"v_mov_b32 v{R.S[1]+24+i}, 0")
    attn_first(a, True)
    a(f"s_mov_b32 s{S_IT}, 0")
    a.label("L_fb_attn")
    attn_body(a, True, prio=False)
    a(f"""s_add_u32 s{S_IT}, s{S_IT}, 1
s_cmp_lt_u32 s{S_IT}, 4
s_cbranch_scc1 L_fb_attn
v_smfmac_f32_32x32x32_bf16 {vr(R.OB,16)}, {vr(R.V1,4)}, {vr(R.S[1]+24,8)}, v{R.IDX}
s_waitcnt lgkmcnt(0)
s_barrier""")
    tail_dma_items(a, "f").flush(a)
    a("s_branch L_ofin")

def out_proj(a, cfg):
    WF = 40; OF = 186; ACC = 8
    NPRE = 7
    def wreads(i, b, cts=range(5)):
        for ct in cts:
            for hf in range(2):
                a(f"ds_read_b64_tr_b16 {vr(b+4*ct+2*hf,2)}, v{A_W} offset:{5120*i + 1280*hf + 32*ct}")
    a(f"""s_lshl_b32 s{T0}, s{S_HG}, 1
s_add_u32 s{T0}, s{T0}, s{S_KH}
s_lshl_b32 s{T0}, s{T0}, 2
s_add_u32 s{T0}, s{T0}, s{S_RT}
s_lshl_b32 s{T0}, s{T0}, 2
s_lshl_b32 s{T1}, s{S_RB}, 8
s_add_u32 s{T0}, s{T0}, s{T1}
s_add_u32 s{T0}, s{T0}, {W_FO}
ds_read_b64_tr_b16 v[8:9], v{A_YR}
ds_read_b64_tr_b16 v[10:11], v{A_YR} offset:512
ds_read_b64_tr_b16 v[12:13], v{A_YR} offset:8192
ds_read_b64_tr_b16 v[14:15], v{A_YR} offset:8704
v_mov_b32 v2, s{S_NONCE}
v_mov_b32 v3, 0
s_waitcnt lgkmcnt(4)
v_readfirstlane_b32 s{T2}, v5
s_waitcnt lgkmcnt(2)
ds_write_b128 v{A_YW}, v[8:11]
s_mov_b64 exec, 0xffff
s_waitcnt lgkmcnt(1)
ds_write_b128 v{A_YW}, v[12:15] offset:128
s_mov_b64 exec, -1
s_cmp_lg_u32 s{T2}, 0
s_cbranch_scc1 L_fallback
ds_read_b128 v[16:19], v{A_YB}
ds_read_b128 v[20:23], v{A_YB} offset:1024""")
    wreads(0, WF)
    a(f"""s_waitcnt vmcnt(0)
s_mov_b64 exec, 1
buffer_store_dword v2, v3, s[{SWS}:{SWS+3}], s{T0} offen sc1
s_mov_b64 exec, -1""")
    stamp(a, cfg, 15)
    a(f"""s_lshl_b32 s{T0}, s{S_J}, 6
s_lshl_b32 s{T1}, s{S_W}, 3
s_add_u32 s{T0}, s{T0}, s{T1}
s_mul_i32 s{T0}, s{T0}, 2560
s_mul_i32 s{T1}, s{S_XCD}, 160
s_add_u32 s{T0}, s{T0}, s{T1}
s_add_u32 s{T0}, s{T0}, 1280
s_waitcnt lgkmcnt(10)
buffer_store_dwordx4 v[16:19], v{A_YG0}, s[{SOUT}:{SOUT+3}], s{T0} offen
s_mov_b64 exec, 0xffff
buffer_store_dwordx4 v[20:23], v{A_YG1}, s[{SOUT}:{SOUT+3}], s{T0} offen
s_mov_b64 exec, -1""")
    for i in range(1, NPRE): wreads(i, WF + 20*i)
    a(f"""s_and_b32 s{T2}, s{S_W}, 3
s_lshl_b32 s{T0}, s{S_RB}, 2
s_add_u32 s{T0}, s{T0}, s{T2}
s_mul_i32 s{T3}, s{T0}, {16*2560}
s_mul_i32 s{T0}, s{T0}, 20480
s_mul_i32 s{T1}, s{S_KH}, 10240
s_add_u32 s{T0}, s{T0}, s{T1}
s_add_u32 s{T0}, s{T0}, {W_O}
s_add_u32 s{T1}, s{T0}, 4096
s_add_u32 s{T2}, s{T0}, 8192
s_mul_i32 s{T4}, s{S_HG}, 160
s_add_u32 s{T3}, s{T3}, s{T4}
s_mul_i32 s{T4}, s{S_W}, {OT_SZ}
s_add_u32 s{T4}, s{T4}, {L_OT}
v_add_u32 v7, s{T4}, v1""")
    stamp(a, cfg, 17)
    poll(a, "o", A_FO, 1, 4, lanes=8)
    stamp(a, cfg, 18)
    for i in range(10):
        a(f"buffer_load_dwordx4 {vr(OF+4*i,4)}, v1, s[{SWS}:{SWS+3}], s{(T0, T1, T2)[i >> 2]} offen offset:{1024*(i & 3)} sc1")
    a("s_waitcnt lgkmcnt(0)")
    for i in range(10):
        b = WF + 20*(i if i < NPRE else i - NPRE)
        a(f"s_waitcnt vmcnt({9-i})" + (f" lgkmcnt({min(15, 10*(9-i))})" if i >= NPRE else ""))
        for ct in range(5):
            c = "0" if i == 0 else vr(ACC+4*ct, 4)
            a(f"v_mfma_f32_16x16x32_bf16 {vr(ACC+4*ct,4)}, {vr(b+4*ct,4)}, {vr(OF+4*i,4)}, {c}")
        if i < 10 - NPRE: wreads(NPRE + i, b)
    stamp(a, cfg, 19)
    a(f"s_cmp_eq_u32 s{S_KH}, 0\ns_cbranch_scc0 L_px_hi")
    X = 40
    for kh in range(2):
        if kh: a.label("L_px_hi")
        send = [3, 4] if kh == 0 else [0, 1, 2]
        keep = [0, 1, 2] if kh == 0 else [3, 4]
        a("s_nop 5" if kh == 0 else "s_nop 5")
        for n, ct in enumerate(send): a(f"ds_write_b128 v{A_XW}, {vr(ACC+4*ct,4)} offset:{1024*n}")
        a("s_waitcnt lgkmcnt(0)\ns_barrier")
        for n, ct in enumerate(keep): a(f"ds_read_b128 {vr(X+4*n,4)}, v{A_XR} offset:{1024*n}")
        for n, ct in enumerate(keep):
            a(f"s_waitcnt lgkmcnt({len(keep)-1})")
            for j in range(4): a(f"v_add_f32 v{X+4*n+j}, v{X+4*n+j}, v{ACC+4*ct+j}")
            a(f"v_cvt_pk_bf16_f32 v{X+16+2*n}, v{X+4*n}, v{X+4*n+1}\nv_cvt_pk_bf16_f32 v{X+17+2*n}, v{X+4*n+2}, v{X+4*n+3}")
            a(f"ds_write_b64 v{A_PW}, {vr(X+16+2*n,2)} offset:{32*n}")
        a(f"ds_read_b128 {vr(X+24,4)}, v7")
        if kh == 0:
            a(f"""ds_read_b128 {vr(X+28,4)}, v7 offset:1024
s_waitcnt lgkmcnt(1)
buffer_store_dwordx4 {vr(X+24,4)}, v{A_PG0}, s[{SOUT}:{SOUT+3}], s{T3} offen
s_mov_b32 exec_hi, 0
s_waitcnt lgkmcnt(0)
buffer_store_dwordx4 {vr(X+28,4)}, v{A_PG1}, s[{SOUT}:{SOUT+3}], s{T3} offen
s_mov_b32 exec_hi, -1
s_branch L_px_done""")
        else:
            a(f"s_waitcnt lgkmcnt(0)\nbuffer_store_dwordx4 {vr(X+24,4)}, v{A_PG0}, s[{SOUT}:{SOUT+3}], s{T3} offen")
    a.label("L_px_done")
    if cfg.stamps:
        a("s_waitcnt vmcnt(0)")
        stamp(a, cfg, 20)
        stamp_flush(a, cfg)

def build(cfg):
    a = Asm()
    prologue(a, cfg)
    srd(a, SOUT, P_OUT, 2048*1280*2)
    a(f"""s_cmp_eq_u32 s{S_W}, 0
s_cbranch_scc1 L_role0
s_cmp_lt_u32 s{S_W}, 7
s_cbranch_scc1 L_rolek""")
    role_w7(a, cfg)
    a("s_branch L_join")
    a.label("L_rolek"); role_k(a, cfg)
    a.label("L_role0"); role_w0(a, cfg)
    a.label("L_join")
    a("s_setprio 0")
    qproj(a, cfg)
    post_q(a, cfg)
    conv(a, cfg)
    attention(a, cfg)
    o_finish(a, cfg)
    out_proj(a, cfg)
    a.label("L_end")
    a("s_endpgm")
    fallback(a, cfg)
    probs = check(a.lines)
    for p in probs: print("HAZARD", p, file=sys.stderr)
    head = open("cdna_kernels/%s.s.ref" % NAME).read().split("; Override")[0]
    txt = head + f"""; @launch grid=(256,1,1) block=(512,1,1) lds=163840
.amdgcn_target "amdgcn-amd-amdhsa--gfx950"
.text
.globl {NAME}_kernel
.p2align 8
.type {NAME}_kernel,@function
{NAME}_kernel:
""" + a.text() + f""".section .rodata,"a"
.p2align 6
.amdhsa_kernel {NAME}_kernel
  .amdhsa_next_free_vgpr 256
  .amdhsa_next_free_sgpr 96
  .amdhsa_accum_offset 256
  .amdhsa_group_segment_fixed_size 0
  .amdhsa_kernarg_size 120
  .amdhsa_user_sgpr_count 2
  .amdhsa_user_sgpr_kernarg_segment_ptr 1
  .amdhsa_system_sgpr_workgroup_id_x 1
  .amdhsa_float_denorm_mode_32 3
.end_amdhsa_kernel
"""
    return txt, len(probs)

if __name__ == "__main__":
    cfg = Cfg()
    out = sys.argv[1]
    for o in sys.argv[2:]:
        if o == "stamps": cfg.stamps = True
        if o == "dbg": cfg.dbg = True
    txt, n = build(cfg)
    open(out, "w").write(txt)
    print("written", out, len(txt), "bytes; hazards:", n)
```

```python
import sys, struct, math
from asmlib import Asm, vr, sr, check
NAME = "concat_heads__grouped_kv_mqa__ssm_conv_s4d__prompt"
def f2u(x): return struct.unpack("<I", struct.pack("<f", x))[0]
def hx(x): return "0x%08x" % (x & 0xffffffff)

L_WQ = 0; L_X = 0; L_WK = 102400; L_SCR = 128000; SCR_SZ = 4352; L_UST = 81920; NWQA = 2
L_CP = 102400; CP_CH = 16640; CP_C = 4160
L_TBL = 154112; TBL_SZ = 1552; L_QST = 152320
L_UT = 81920; UT_CH = 4608; L_PART = 95744; L_QX = 0
L_YT = 102400; L_XCH = 122880; L_OT = 147456; OT_SZ = 1536; L_DEC = 159744; L_YS = 112640
BLK = 5120
W_NONCE = 0; W_FU = 0x1000; W_FKV = 0x2000; W_FY = 0x4000; W_FO = 0x6000
W_KV = 0x10000; W_UT = 0x40000; W_YT = 0x2C0000; W_O = 0x540000; W_DBG = 0x800000; W_STAMP = 0xF00000; WS_SZ = 0x1000000
P_X, P_WQ, P_WK, P_WV, P_WO, P_U, P_LAR, P_AIM, P_CR, P_CI, P_LDT, P_DSK, P_OUT, P_DBG, P_WS = range(4, 34, 2)
SA, SB, SWS, SOUT = 36, 40, 44, 48
S_W, S_XCD, S_J, S_RB, S_HG, S_NONCE, S_CH0, S_NCH = 52, 53, 54, 55, 56, 57, 58, 59
VM = 60
T0, T1, T2, T3, T4, T5, T6, T7 = range(62, 70)
S_RT, S_KH, S_FB, S_IT = 70, 71, 72, 73
EX = 74
S_LDT = 76; S_D0 = 77
S_C1, S_C2, S_C3, S_C4 = 80, 81, 82, 83
ST0 = 84
SPIN_MAX = 100000

class Cfg:
    dbg = False; stamps = False; dbgstamp = None; stop_after = None; nonce_update = True

def srd(a, base, ptr, size):
    a(f"s_mov_b32 s{base}, s{ptr}\ns_mov_b32 s{base+1}, s{ptr+1}\ns_mov_b32 s{base+2}, {size}\ns_mov_b32 s{base+3}, 0x00020000")

_stamp_n = [0]
def stamp(a, cfg, idx, cyc=False):
    if not cfg.stamps or cyc: return
    a(f"""s_memrealtime s[{ST0}:{ST0+1}]
s_memtime s[86:87]
s_waitcnt lgkmcnt(0)
v_writelane_b32 v255, s{ST0}, {idx}
v_writelane_b32 v255, s86, {idx+32}""")
def stamp_flush(a, cfg):
    if not cfg.stamps: return
    a(f"""s_lshl_b32 s86, s2, 3
s_add_u32 s86, s86, s{S_W}
s_lshl_b32 s86, s86, 8
s_add_u32 s86, s86, {W_STAMP}
v_lshlrev_b32 v254, 2, v0
buffer_store_dword v255, v254, s[{SWS}:{SWS+3}], s86 offen""")

SEL = [0, 24, 1, 2, 4, 8, 10, 11, 12, 13, 14, 15, 18, 19, 20]
def stamp_debug(a, cfg):
    if not cfg.dbgstamp: return
    a(f"""s_cmp_lg_u32 s2, {cfg.dbgstamp[0]}
s_cbranch_scc1 L_dbgst_done
s_cmp_lg_u32 s{S_W}, {cfg.dbgstamp[1]}
s_cbranch_scc1 L_dbgst_done
v_readlane_b32 s86, v255, 21
v_mov_b32 v254, 0""")
    for k, i in enumerate(SEL):
        a(f"v_readlane_b32 s87, v255, {i}\ns_nop 3\ns_sub_u32 s87, s87, s86\nv_writelane_b32 v254, s87, {k}")
    srd(a, SA, P_DBG, 256)
    a(f"""v_lshlrev_b32 v253, 2, v0
s_mov_b64 exec, 0xffff
buffer_store_dword v254, v253, s[{SA}:{SA+3}], 0 offen
s_mov_b64 exec, -1""")
    a.label("L_dbgst_done")

def dump_lds(a, cfg, tag, lo, n8):
    if not cfg.dbg: return
    a(f"""s_cmp_ge_u32 s2, 4
s_cbranch_scc1 L_dump_{tag}
s_lshl_b32 s86, s{S_W}, 10
s_mul_i32 s87, s2, {n8*8192}
s_add_u32 s87, s87, {W_DBG}
s_add_u32 s87, s87, s86
s_add_u32 s86, s86, {lo}
v_add_u32 v250, s86, v1
s_mov_b32 s88, 0""")
    a.label(f"L_dumpl_{tag}")
    a(f"""ds_read_b128 v[252:255], v250
s_waitcnt lgkmcnt(0)
buffer_store_dwordx4 v[252:255], v1, s[{SWS}:{SWS+3}], s87 offen
s_waitcnt vmcnt(0)
v_add_u32 v250, 8192, v250
s_add_u32 s87, s87, 8192
s_add_u32 s88, s88, 1
s_cmp_lt_u32 s88, {n8}
s_cbranch_scc1 L_dumpl_{tag}""")
    a.label(f"L_dump_{tag}")

def poll(a, tag, vaddr, nload, vt, lanes=64):
    sfx = {1: "dword", 2: "dwordx2", 4: "dwordx4"}[nload]
    if lanes < 64: a(f"s_mov_b32 exec_lo, {hx((1 << lanes) - 1)}\ns_mov_b32 exec_hi, 0")
    a(f"s_mov_b32 s{T7}, 0")
    a.label(f"L_poll_{tag}")
    a(f"buffer_load_{sfx} {vr(vt, nload)}, v{vaddr}, s[{SWS}:{SWS+3}], 0 offen sc1")
    a("s_waitcnt vmcnt(0)")
    for i in range(nload): a(f"v_xor_b32 v{vt+i}, s{S_NONCE}, v{vt+i}")
    if nload == 2: a(f"v_or_b32 v{vt}, v{vt}, v{vt+1}")
    if nload == 4: a(f"v_or_b32 v{vt}, v{vt}, v{vt+1}\nv_or3_b32 v{vt}, v{vt}, v{vt+2}, v{vt+3}")
    a(f"""v_cmp_ne_u32 vcc, 0, v{vt}
s_add_u32 s{T7}, s{T7}, 1
s_nop 2
s_cmp_eq_u64 vcc, 0
s_cbranch_scc1 L_polld_{tag}
s_cmp_lt_u32 s{T7}, {SPIN_MAX}
s_cbranch_scc1 L_poll_{tag}""")
    a.label(f"L_polld_{tag}")
    if lanes < 64: a("s_mov_b64 exec, -1")

def div10_offsets(a, vdst, cbase_s, cbase_imm, vt, perm):
    if cbase_s is not None: a(f"v_add_u32 v{vt}, s{cbase_s}, v0")
    else: a(f"v_add_u32 v{vt}, {cbase_imm}, v0")
    a(f"""v_mul_u32_u24 v{vt+1}, 6554, v{vt}
v_lshrrev_b32 v{vt+1}, 16, v{vt+1}
v_mul_u32_u24 v{vt+2}, 10, v{vt+1}
v_sub_u32 v{vt}, v{vt}, v{vt+2}""")
    if perm:
        a(f"""v_lshrrev_b32 v{vt+2}, 2, v{vt+1}
v_lshrrev_b32 v{vt+3}, 3, v{vt+1}
v_xor_b32 v{vt+2}, v{vt+2}, v{vt+3}
v_and_b32 v{vt+2}, 1, v{vt+2}
v_mul_u32_u24 v{vt+2}, 12, v{vt+2}
v_xor_b32 v{vt+1}, v{vt+1}, v{vt+2}""")
    a(f"""v_mul_u32_u24 v{vt+1}, 1280, v{vt+1}
v_lshl_add_u32 v{vdst}, v{vt}, 4, v{vt+1}""")

XF = 16
VX = 250
WO5 = 245

def prologue(a, cfg):
    a(f"""s_cmp_ge_u32 s2, 256
s_cbranch_scc1 L_end""")
    stamp(a, cfg, 21)
    a(f"""s_load_dwordx16 s[4:19], s[0:1], 0
s_load_dwordx8 s[20:27], s[0:1], 64
s_load_dwordx4 s[28:31], s[0:1], 96
s_load_dwordx2 s[32:33], s[0:1], 112
v_lshrrev_b32 v1, 6, v0
v_and_b32 v0, 63, v0
s_and_b32 s{S_XCD}, s2, 7
v_readfirstlane_b32 s{S_W}, v1
s_lshr_b32 s{S_J}, s2, 3
s_lshr_b32 s{T0}, s{S_J}, 3
s_lshl_b32 s{S_RB}, s{S_XCD}, 2
s_add_u32 s{S_RB}, s{S_RB}, s{T0}
s_and_b32 s{S_HG}, s{S_J}, 7
s_mul_i32 s{T0}, s{S_J}, 3
s_lshl_b32 s{T1}, s{S_J}, 1
s_add_u32 s{T1}, s{T1}, 16
s_cmp_lt_u32 s{S_J}, 16
s_cselect_b32 s{T0}, s{T0}, s{T1}
s_cselect_b32 s{S_NCH}, 3, 2
s_mul_i32 s{S_CH0}, s{S_XCD}, 80
s_add_u32 s{S_CH0}, s{S_CH0}, s{T0}
s_lshr_b32 s{T0}, s{S_HG}, 1
s_add_u32 s{S_RT}, s{T0}, s{S_W}
s_and_b32 s{S_RT}, s{S_RT}, 3
s_lshr_b32 s{S_KH}, s{S_W}, 2
s_mov_b32 s{S_FB}, 0
s_mov_b32 s{VM}, 0x000fffff
s_mov_b32 s{VM+1}, 0x000fffff
v_lshlrev_b32 v1, 4, v0
v_lshrrev_b32 v2, 3, v0
v_and_b32 v3, 7, v0
v_xor_b32 v3, v3, v2
v_mul_u32_u24 v2, 1280, v2
v_lshl_add_u32 v{VX}, v3, 4, v2
s_cmp_ge_u32 s{S_W}, 4
s_cbranch_scc1 L_pro_noprio
s_setprio 2""")
    a.label("L_pro_noprio")
    a(f"""s_waitcnt lgkmcnt(0)
s_load_dword s{S_NONCE}, s[{P_WS}:{P_WS+1}], {W_NONCE}""")
    srd(a, SWS, P_WS, WS_SZ)
    srd(a, SA, P_X, 2048*1280)
    stamp(a, cfg, 0)

def x_dma(a, s_ro, c0, cstep, n, s_c0=None):
    a(f"""s_lshl_b32 s{T0}, s{S_RB}, 3
s_add_u32 s{T0}, s{T0}, s{s_ro}
s_mul_i32 s{T0}, s{T0}, {8*1280}
s_lshl_b32 s{T1}, s{s_ro}, 10""")
    if s_c0 is not None:
        a(f"""s_lshl_b32 s{T2}, s{s_c0}, 7
s_add_u32 s{T0}, s{T0}, s{T2}
s_lshl_b32 s{T2}, s{s_c0}, 13
s_add_u32 s{T1}, s{T1}, s{T2}""")
    a(f"s_add_u32 m0, s{T1}, {L_X + 8192*c0}\ns_add_u32 s{T0}, s{T0}, {128*c0}")
    for i in range(n):
        a(f"buffer_load_dwordx4 v{VX}, s[{SA}:{SA+3}], s{T0} offen lds")
        if i < n - 1: a(f"s_add_u32 m0, m0, {8192*cstep}\ns_add_u32 s{T0}, s{T0}, {128*cstep}")

def crit_loads(a):
    a(f"""s_and_b32 s{T3}, s{S_HG}, 6
s_and_b32 s{T4}, s{S_W}, 1
s_add_u32 s{T3}, s{T3}, s{T4}
s_lshr_b32 s{T4}, s{S_W}, 1""")
    x_dma(a, T3, 0, 2, 5, s_c0=T4)
    a(f"""s_bitcmp1_b32 s{S_HG}, 0
s_cselect_b32 s{SB}, s{P_WV}, s{P_WK}
s_cselect_b32 s{SB+1}, s{P_WV+1}, s{P_WK+1}
s_mov_b32 s{SB+2}, 25600
s_mov_b32 s{SB+3}, 0x00020000
s_lshl_b32 s{T0}, s{S_W}, 10
s_add_u32 m0, s{T0}, {L_WK}
s_nop 0""")
    for i in range(7):
        if i == 6: a(f"s_cmp_lg_u32 s{S_W}, 0\ns_cbranch_scc1 L_wk_done")
        a(f"buffer_load_dwordx4 v1, s[{SB}:{SB+3}], s{T0} offen lds")
        if i < 6: a(f"s_add_u32 m0, m0, 4096\ns_add_u32 s{T0}, s{T0}, 4096")
    a.label("L_wk_done")

def rest_x(a):
    a(f"""s_and_b32 s{T5}, s{S_HG}, 6
s_add_u32 s{T5}, s{T5}, 2
s_sub_u32 s{T4}, s{S_W}, 4
s_add_u32 s{T3}, s{T5}, s{T4}
s_and_b32 s{T3}, s{T3}, 7""")
    x_dma(a, T3, 0, 1, 10)
    a(f"""s_lshr_b32 s{T3}, s{T4}, 1
s_add_u32 s{T3}, s{T3}, s{T5}
s_add_u32 s{T3}, s{T3}, 4
s_and_b32 s{T3}, s{T3}, 7
s_and_b32 s{T4}, s{T4}, 1
s_mul_i32 s{T4}, s{T4}, 5""")
    x_dma(a, T3, 0, 1, 5, s_c0=T4)

def typed_offsets(a):
    for t in range(5): div10_offsets(a, WO5+t, None, 64*t, 2, True)

def wq_dma(a, tag, first, last):
    a(f"""s_add_u32 s{T2}, s{S_W}, {first - 1}
s_cmp_ge_u32 s{T2}, {last}
s_cbranch_scc1 L_wq_{tag}_done
s_mul_i32 s{T3}, s{T2}, 40960
s_mul_i32 s{T4}, s{S_HG}, 160
s_add_u32 s{T3}, s{T3}, s{T4}
s_mul_i32 m0, s{T2}, 5120""")
    a.label(f"L_wq_{tag}")
    for t in range(5):
        a(f"s_nop 0\nbuffer_load_dwordx4 v{WO5+t}, s[{SB}:{SB+3}], s{T3} offen lds\ns_add_u32 m0, m0, {1024 if t < 4 else 3*5120 - 4096}")
    a(f"""s_add_u32 s{T3}, s{T3}, {3*40960}
s_add_u32 s{T2}, s{T2}, 3
s_cmp_lt_u32 s{T2}, {last}
s_cbranch_scc1 L_wq_{tag}""")
    a.label(f"L_wq_{tag}_done")

def x_frags(a, n):
    a(f"""v_and_b32 v2, 15, v0
v_lshrrev_b32 v3, 4, v0
v_and_b32 v4, 7, v2
v_xor_b32 v3, v3, v4
v_lshlrev_b32 v2, 7, v2
v_lshl_add_u32 v2, v3, 4, v2
s_lshl_b32 s{T0}, s{S_RT}, 11
s_mul_i32 s{T1}, s{S_KH}, 40960
s_add_u32 s{T0}, s{T0}, s{T1}
v_add_u32 v2, s{T0}, v2
v_xor_b32 v3, 64, v2""")
    for i in range(min(n, 10) if n == 10 else 10):
        a(f"ds_read_b128 {vr(XF+4*i,4)}, v{2 + (i & 1)} offset:{L_X + 8192*(i >> 1)}")
    if n == 20:
        a("v_add_u32 v4, 40960, v2\nv_add_u32 v5, 40960, v3")
        for i in range(10):
            a(f"ds_read_b128 {vr(XF+40+4*i,4)}, v{4 + (i & 1)} offset:{L_X + 8192*(i >> 1)}")

def finish_nonce(a):
    a(f"s_waitcnt lgkmcnt(0)\ns_mul_i32 s{S_NONCE}, s{S_NONCE}, 0x9E3779B1\ns_add_u32 s{S_NONCE}, s{S_NONCE}, 0x7F4A7C15")

def kv_proj(a, cfg):
    WR = 96
    ACC = 124
    x_frags(a, 20)
    a(f"""v_lshrrev_b32 v6, 4, v0
v_lshlrev_b32 v6, 3, v6
v_bfe_u32 v7, v0, 2, 2
v_add_u32 v6, v6, v7
v_mul_u32_u24 v6, 40, v6
v_and_b32 v7, 3, v0
v_lshl_add_u32 v6, v7, 3, v6
v_add_u32 v6, {L_WK}, v6""")
    def reads(s):
        b = WR + 8*(s % 3)
        for ct in range(2):
            for hf in range(2):
                a(f"ds_read_b64_tr_b16 {vr(b+4*ct+2*hf,2)}, v6 offset:{1280*s + 160*hf + 32*ct}")
    a(f"s_bitcmp1_b32 s{S_HG}, 0\ns_cbranch_scc1 L_kv_v")
    for kind in range(2):
        if kind: a.label("L_kv_v")
        reads(0); reads(1)
        for s in range(20):
            if s + 2 < 20: reads(s + 2)
            n_after = 4*min(2, 19 - s)
            a(f"s_waitcnt lgkmcnt({n_after})")
            b = WR + 8*(s % 3)
            for ct in range(2):
                c = "0" if s == 0 else vr(ACC+4*ct, 4)
                A, B = vr(b+4*ct, 4), vr(XF+4*s, 4)
                if kind: A, B = B, A
                a(f"v_mfma_f32_16x16x32_bf16 {vr(ACC+4*ct,4)}, {A}, {B}, {c}")
        a(f"""s_mul_i32 s{T0}, s{S_RB}, {BLK}
s_add_u32 s{T0}, s{T0}, {W_KV}
v_and_b32 v3, 15, v0
v_lshrrev_b32 v4, 4, v0""")
        if kind == 0:
            a(f"""s_lshr_b32 s{T1}, s{S_RT}, 1
s_lshl_b32 s{T1}, s{T1}, 10
s_and_b32 s{T2}, s{S_RT}, 1
s_lshl_b32 s{T2}, s{T2}, 8
s_add_u32 s{T1}, s{T1}, s{T2}
s_add_u32 s{T1}, s{T1}, s{T0}
v_lshrrev_b32 v5, 1, v4
v_lshlrev_b32 v5, 9, v5
v_lshl_add_u32 v5, v3, 4, v5
v_and_b32 v6, 1, v4
v_lshl_add_u32 v5, v6, 3, v5
s_lshl_b32 s{T2}, s{S_RT}, 7
s_add_u32 s{T2}, s{T2}, s{T0}
s_add_u32 s{T2}, s{T2}, 2048
v_lshlrev_b32 v6, 3, v3
v_cmp_gt_u32 vcc, 16, v0""")
        else:
            a(f"""s_mul_i32 s{T1}, s{S_RT}, 640
s_add_u32 s{T1}, s{T1}, s{T0}
s_add_u32 s{T1}, s{T1}, 2560
s_add_u32 s{T2}, s{T1}, 256
v_lshrrev_b32 v5, 1, v4
v_mul_u32_u24 v5, 320, v5
v_lshl_add_u32 v5, v3, 4, v5
v_and_b32 v6, 1, v4
v_lshl_add_u32 v5, v6, 3, v5
v_mov_b32 v6, v5
v_cmp_gt_u32 vcc, 4, v3""")
        a(f"""v_cvt_pk_bf16_f32 v8, v{ACC}, v{ACC+1}
v_cvt_pk_bf16_f32 v9, v{ACC+2}, v{ACC+3}
v_cvt_pk_bf16_f32 v10, v{ACC+4}, v{ACC+5}
v_cvt_pk_bf16_f32 v11, v{ACC+6}, v{ACC+7}
buffer_store_dwordx2 v[8:9], v5, s[{SWS}:{SWS+3}], s{T1} offen sc1
s_and_saveexec_b64 s[{EX}:{EX+1}], vcc
buffer_store_dwordx2 v[10:11], v6, s[{SWS}:{SWS+3}], s{T2} offen sc1
s_mov_b64 exec, s[{EX}:{EX+1}]""")
        if kind == 0: a("s_branch L_kv_done")
    a.label("L_kv_done")

def role_w0(a, cfg):
    crit_loads(a)
    stamp(a, cfg, 22)
    typed_offsets(a)
    finish_nonce(a)
    a("s_waitcnt vmcnt(0)")
    stamp(a, cfg, 24)
    a("s_barrier")
    stamp(a, cfg, 1)
    kv_proj(a, cfg)
    stamp(a, cfg, 2)
    a("s_barrier\ns_barrier")
    a(f"""v_lshlrev_b32 v2, 10, v0
s_lshl_b32 s{T0}, s2, 2
s_add_u32 s{T0}, s{T0}, {W_FKV}
v_mov_b32 v3, s{S_NONCE}
s_waitcnt vmcnt(0)
s_mov_b64 exec, 0xff
buffer_store_dword v3, v2, s[{SWS}:{SWS+3}], s{T0} offen sc1
s_mov_b64 exec, -1""")
    stamp(a, cfg, 3)
    a("s_barrier")

def cmul(a, d, x, y, t):
    a(f"v_pk_mul_f32 {vr(t,2)}, {vr(x,2)}, {vr(y,2)} op_sel:[0,0] op_sel_hi:[0,1]")
    return f"v_pk_fma_f32 {vr(d,2)}, {vr(x,2)}, {vr(y,2)}, {vr(t,2)} op_sel:[1,1,0] op_sel_hi:[1,0,1] neg_lo:[1,0,0]"
def cmul_multi(a, items, tmps):
    for k in range(0, len(items), len(tmps)):
        grp = items[k:k+len(tmps)]
        second = [cmul(a, d, x, y, t) for (d, x, y), t in zip(grp, tmps)]
        for s in second: a(s)

LOG2E = 1.4426950408889634
def acc_exp(a, d, x, t):
    a(f"""v_mul_f32 v{t}, s{S_C1}, {x}
v_fma_f32 v{t+1}, {x}, s{S_C1}, -v{t}
v_fma_f32 v{t+1}, {x}, s{S_C2}, v{t+1}
v_exp_f32 v{t}, v{t}
v_fma_f32 v{t+1}, v{t+1}, s{S_C3}, 1.0
v_mul_f32 v{d}, v{t}, v{t+1}""")

KP = 56
def kgen_loads(a):
    a(f"""s_sub_u32 s{T4}, s{S_W}, 1
s_lshr_b32 s{T2}, s{T4}, 1
s_add_u32 s{T2}, s{T2}, s{S_CH0}
s_min_u32 s{T2}, s{T2}, 639
s_lshl_b32 s{T3}, s{T2}, 8
s_and_b32 s{T4}, s{T4}, 1
s_lshl_b32 s{T4}, s{T4}, 7
s_add_u32 s{T3}, s{T3}, s{T4}
v_lshlrev_b32 v2, 1, v0""")
    for i, p in enumerate((P_LAR, P_AIM, P_CR, P_CI)):
        srd(a, SB, p, 640*256)
        a(f"buffer_load_ushort v{KP+i}, v2, s[{SB}:{SB+3}], s{T3} offen")
    a(f"""s_lshl_b32 s{T3}, s{T2}, 1
s_and_b32 s{T3}, s{T3}, 0xfffffffc
s_load_dword s{S_LDT}, s[{P_LDT}:{P_LDT+1}], s{T3}
s_mov_b32 s{T6}, s{T2}""")

def kgen(a, cfg):
    W1, W2, V8, V2, WW = 60, 62, 64, 66, 68
    G = 70
    FA, FB = 86, 88
    TM = [90, 92, 94, 96]
    PK = 98
    BF = 104
    AF = 120
    ACC = 136
    DT, ER, TH = 148, 149, 150
    AW, AR = 2, 3
    hi = f2u(LOG2E); lo = f2u(LOG2E - struct.unpack("<f", struct.pack("<I", hi))[0])
    a(f"""s_sub_u32 s{T5}, s{S_W}, 1
s_lshr_b32 s{T2}, s{T5}, 1
s_cmp_ge_u32 s{T2}, s{S_NCH}
s_cbranch_scc1 L_kgen_done
s_mov_b32 s{S_C1}, {hx(hi)}
s_mov_b32 s{S_C2}, {hx(lo)}
s_mov_b32 s{S_C3}, {hx(f2u(math.log(2)))}
s_mov_b32 s{S_C4}, {hx(f2u(1/(2*math.pi)))}
s_bitcmp1_b32 s{T6}, 0
s_cbranch_scc0 L_kg_lo
s_lshr_b32 s{S_LDT}, s{S_LDT}, 16""")
    a.label("L_kg_lo")
    a(f"""s_lshl_b32 s{S_LDT}, s{S_LDT}, 16
s_mul_i32 s{T3}, s{T5}, {SCR_SZ}
s_add_u32 s{T3}, s{T3}, {L_SCR}
v_lshl_add_u32 v{AW}, v0, 2, s{T3}
v_and_b32 v4, 15, v0
v_mul_u32_u24 v4, 272, v4
v_lshrrev_b32 v5, 4, v0
v_lshl_add_u32 v4, v5, 4, v4
v_add_u32 v{AR}, s{T3}, v4
v_mov_b32 v6, s{S_LDT}""")
    acc_exp(a, DT, "v6", 4)
    a(f"v_cvt_pk_bf16_f32 v{DT}, v{DT}, v{DT}\nv_lshlrev_b32 v{DT}, 16, v{DT}")
    for i in range(4): a(f"v_lshlrev_b32 v{PK+i}, 16, v{KP+i}")
    acc_exp(a, ER, f"v{PK}", 4)
    a(f"""v_cvt_pk_bf16_f32 v{ER}, v{ER}, v{ER}
v_mul_f32 v{TH}, v{PK+1}, v{DT}
v_lshlrev_b32 v{ER}, 16, v{ER}
v_mul_f32 v{G}, v{PK+2}, v{DT}
v_mul_f32 v{ER}, v{ER}, v{DT}
v_mul_f32 v{G+1}, v{PK+3}, v{DT}
v_mul_f32 v{ER}, s{S_C1}, -v{ER}
v_mul_f32 v{TH}, s{S_C4}, v{TH}
v_add_f32 v{G}, v{G}, v{G}
v_add_f32 v{G+1}, v{G+1}, v{G+1}""")
    for k, (dst, p) in enumerate(((W1, 1.0), (V8, 8.0), (WW, 128.0))):
        t = TM[k]
        if p == 1.0:
            a(f"v_exp_f32 v{t}, v{ER}\nv_fract_f32 v{t+1}, v{TH}")
        else:
            a(f"v_mul_f32 v{t}, {hx(f2u(p))}, v{ER}\nv_mul_f32 v{t+1}, {hx(f2u(p))}, v{TH}\nv_exp_f32 v{t}, v{t}\nv_fract_f32 v{t+1}, v{t+1}")
        a(f"s_nop 0\nv_cos_f32 v{dst}, v{t+1}\nv_sin_f32 v{dst+1}, v{t+1}\ns_nop 0\nv_mul_f32 v{dst}, v{dst}, v{t}\nv_mul_f32 v{dst+1}, v{dst+1}, v{t}")
    pk = [0]
    def put(row, src, neg):
        r = PK + (pk[0] & 3); pk[0] += 1
        a(f"v_cvt_pk_bf16_f32 v{r}, v{src}, {'-' if neg else ''}v{src+1}\nds_write_b32 v{AW}, v{r} offset:{272*row}")
    a(f"v_mov_b32 v{PK}, 0x3f80\nds_write_b32 v{AW}, v{PK}")
    pk[0] = 1
    cmul_multi(a, [(W2, W1, W1), (V2, V8, V8), (G+2, G, W1)], TM)
    put(1, V8, True); put(2, V2, True)
    fa, fb = V8, V2
    for k in range(7):
        items = [(FA, fa, V2)]
        if k < 6: items.append((FB, fb, V2))
        if k < 3: items += [(G+4+4*k, G+4*k, W2), (G+6+4*k, G+2+4*k, W2)]
        cmul_multi(a, items, TM)
        put(3+2*k, FA, True)
        if k < 6: put(4+2*k, FB, True)
        fa, fb = FA, FB
    for ks in range(4): a(f"ds_read_b128 {vr(BF+4*ks,4)}, v{AR} offset:{64*ks}")
    def tile(T):
        for ks in range(4): a(f"ds_read_b128 {vr(AF+4*ks,4)}, v{AR} offset:{64*ks}")
    def mm(T):
        for ks in range(4):
            a(f"s_waitcnt lgkmcnt({3-ks})\nv_mfma_f32_16x16x32_bf16 {vr(ACC+4*T,4)}, {vr(AF+4*ks,4)}, {vr(BF+4*ks,4)}, {vr(ACC+4*T,4) if ks else 0}")
    for g in range(8): put(g, G+2*g, False)
    cmul_multi(a, [(G+2*g, G+2*g, WW) for g in range(8)], TM)
    for g in range(8): put(8+g, G+2*g, False)
    tile(0)
    ev = [0, 2, 4, 6]
    cmul_multi(a, [(G+2*g, G+2*g, WW) for g in ev], TM)
    mm(0)
    for i, g in enumerate(ev): put(i, G+2*g, False)
    cmul_multi(a, [(G+2*g, G+2*g, WW) for g in ev], TM)
    for i, g in enumerate(ev): put(4+i, G+2*g, False)
    for al in range(4):
        cmul_multi(a, [(G, G, WW), (G+8, G+8, WW)], TM)
        put(8+2*al, G, False); put(9+2*al, G+8, False)
    tile(1)
    cmul_multi(a, [(G, G, WW), (W2, WW, WW)], TM)
    mm(1)
    cmul_multi(a, [(G+2, G, WW)], TM)
    put(0, G, False); put(1, G+2, False)
    for k in range(1, 4):
        cmul_multi(a, [(G, G, W2), (G+2, G+2, W2)], TM)
        put(2*k, G, False); put(2*k+1, G+2, False)
    cmul_multi(a, [(G, G, W2)], TM)
    put(8, G, False)
    tile(2)
    mm(2)
    a(f"""s_bitcmp1_b32 s{T5}, 0
s_cbranch_scc0 L_kgen_done
v_add_u32 v4, s{T3}, v1
s_nop 7""")
    for q in range(3): a(f"ds_write_b128 v4, {vr(ACC+4*q,4)} offset:{1024*q}")
    a.label("L_kgen_done")

def kgen_table(a, cfg):
    PK = 98; ACC = 136; AF = 120
    a(f"""s_sub_u32 s{T5}, s{S_W}, 1
s_lshr_b32 s{T2}, s{T5}, 1
s_cmp_ge_u32 s{T2}, s{S_NCH}
s_cbranch_scc1 L_ktab_done
s_bitcmp1_b32 s{T5}, 0
s_cbranch_scc1 L_ktab_done
s_add_u32 s{T3}, s{T5}, 1
s_mul_i32 s{T3}, s{T3}, {SCR_SZ}
s_add_u32 s{T3}, s{T3}, {L_SCR}
v_add_u32 v4, s{T3}, v1""")
    for q in range(3): a(f"ds_read_b128 {vr(AF+4*q,4)}, v4 offset:{1024*q}")
    a(f"""s_mul_i32 s{T3}, s{T2}, {TBL_SZ}
s_add_u32 s{T3}, s{T3}, {L_TBL}
v_and_b32 v4, 15, v0
v_lshrrev_b32 v5, 4, v0
v_lshrrev_b32 v6, 1, v5
v_and_b32 v7, 1, v5
v_lshlrev_b32 v8, 8, v6
v_lshl_add_u32 v8, v7, 3, v8
v_lshl_add_u32 v8, v4, 4, v8
v_add_u32 v8, s{T3}, v8
v_lshlrev_b32 v9, 7, v5
v_lshl_add_u32 v9, v4, 3, v9
v_add_u32 v10, 4, v9
v_lshlrev_b32 v11, 7, v7
v_lshl_add_u32 v11, v4, 2, v11
v_add_u32 v11, 256, v11
v_add_u32 v12, 64, v11
v_cmp_lt_u32 vcc, 1, v5
v_lshlrev_b32 v13, 7, v5
v_lshl_add_u32 v13, v4, 1, v13
v_cndmask_b32 v9, v9, v11, vcc
v_cndmask_b32 v10, v10, v12, vcc
v_add_u32 v13, s{T3}, v13
v_add_u32 v9, s{T3}, v9
v_add_u32 v10, s{T3}, v10
v_mov_b32 v14, 0
v_mov_b32 v15, 0
v_mov_b32 v4, s{T3}""")
    a("s_waitcnt lgkmcnt(0)")
    for i in range(12): a(f"v_add_f32 v{ACC+i}, v{ACC+i}, v{AF+i}")
    for i in range(6): a(f"v_cvt_pk_bf16_f32 v{PK+i}, v{ACC+2*i}, v{ACC+2*i+1}")
    a(f"""ds_write_b64 v4, v[14:15]
ds_write_b64 v8, v[{PK}:{PK+1}] offset:8
ds_write_b32 v9, v{PK+2} offset:{8+512}
ds_write_b32 v10, v{PK+3} offset:{8+512}
ds_write_b16 v13, v{PK+4} offset:{8+1024}
ds_write_b16_d16_hi v13, v{PK+4} offset:{8+1024+32}
ds_write_b16 v13, v{PK+5} offset:{8+1024+64}
ds_write_b16_d16_hi v13, v{PK+5} offset:{8+1024+96}""")
    a.label("L_ktab_done")

def expand(a, cfg):
    AD = 60; E = 72; O = 80; LF = 86
    a(f"""s_sub_u32 s{T2}, s{S_W}, 4
s_lshl_b32 s{T3}, s{T2}, 9
s_sub_u32 s{T3}, 2048, s{T3}
v_lshlrev_b32 v4, 3, v0
v_sub_u32 v4, s{T3}, v4
v_cvt_f32_u32 v5, v4
s_mov_b32 s{T4}, {hx(L_TBL + 8 - 2*17024)}
s_mov_b32 s{T5}, {L_TBL + 8 + 256}
v_lshlrev_b32 v6, 1, v4
v_add_u32 v6, {L_TBL + 8}, v6""")
    for e in range(12):
        a(f"v_subrev_f32 v{LF+e}, {hx(f2u(float(e)))}, v5")
        if e >= 9: a(f"v_max_f32 v{LF+e}, 0, v{LF+e}")
    for k in range(6): a(f"v_cvt_pk_bf16_f32 v{E+k}, v{LF+2*k}, v{LF+2*k+1}")
    for e in range(12):
        a(f"v_mad_u32_u16 v{AD+e}, v{E+(e>>1)}, 2, s{T4} op_sel:[{e&1},0,0,0]")
        a(f"v_subrev_u32 v{LF+e}, {2*e}, v6")
    for e in range(12): a(f"v_med3_i32 v{AD+e}, v{AD+e}, v{LF+e}, s{T5}")
    a(f"""s_lshl_b32 s{T3}, s{T2}, 10
s_add_u32 s{T3}, s{T3}, {L_CP}
v_lshl_add_u32 v4, v0, 4, s{T3}""")
    for c in range(3):
        for e in range(12):
            a(f"ds_read_u16{'_d16_hi' if e & 1 else ''} v{(LF if e & 1 else E)+(e>>1)}, v{AD+e} offset:{c*TBL_SZ}")
        a(f"v_add_u32 v5, {c*CP_CH + 2*CP_C}, v4\nv_add_u32 v6, {c*CP_CH + 3*CP_C}, v4\ns_waitcnt lgkmcnt(0)")
        for k in range(6): a(f"v_or_b32 v{E+k}, v{E+k}, v{LF+k}")
        for k in range(5): a(f"v_alignbit_b32 v{O+k}, v{E+k+1}, v{E+k}, 16")
        a(f"""ds_write_b128 v4, {vr(E,4)} offset:{c*CP_CH}
ds_write2_b32 v5, v{E+1}, v{E+2} offset0:0 offset1:1
ds_write2_b32 v5, v{E+3}, v{E+4} offset0:2 offset1:3
ds_write_b128 v4, {vr(O,4)} offset:{c*CP_CH + CP_C}
ds_write2_b32 v6, v{O+1}, v{O+2} offset0:0 offset1:1
ds_write2_b32 v6, v{O+3}, v{O+4} offset0:2 offset1:3""")
    a(f"""s_cmp_lg_u32 s{S_W}, 7
s_cbranch_scc1 L_exp_done
v_lshrrev_b32 v5, 3, v0
v_mul_u32_u24 v6, {CP_CH}, v5
v_bfe_u32 v7, v0, 1, 2
v_mul_u32_u24 v7, {CP_C}, v7
v_and_b32 v8, 1, v0
v_lshl_add_u32 v7, v8, 4, v7
v_add_u32 v6, v6, v7
v_add_u32 v6, {L_CP + 4096}, v6
v_mov_b32 v8, 0
v_mov_b32 v9, 0
v_mov_b32 v10, 0
v_mov_b32 v11, 0
v_mul_u32_u24 v12, {TBL_SZ}, v0
v_add_u32 v12, {L_TBL + 8}, v12
v_mul_u32_u24 v13, {CP_CH}, v0
s_mov_b64 exec, 7
ds_read_u16 v12, v12
s_mov_b64 exec, 0xffffff
ds_write_b128 v6, v[8:11]
s_mov_b64 exec, 7
v_add_u32 v13, {L_CP + 4096}, v13
s_waitcnt lgkmcnt(0)
ds_write_b16 v13, v12
s_mov_b64 exec, -1""")
    a.label("L_exp_done")

def role_k(a, cfg):
    a(f"s_cmp_ge_u32 s{S_W}, 4\ns_cbranch_scc1 L_k_hi")
    crit_loads(a.sub("k"))
    kgen_loads(a)
    typed_offsets(a)
    srd(a, SB, P_WQ, 640*1280)
    wq_dma(a, "a", 20 - NWQA, 20)
    finish_nonce(a)
    a(f"s_cmp_eq_u32 s{S_W}, 3\ns_cbranch_scc1 L_k_w3\ns_waitcnt vmcnt(5)\ns_branch L_k_b0")
    a.label("L_k_w3")
    a("s_waitcnt vmcnt(0)\ns_branch L_k_b0")
    a.label("L_k_hi")
    kgen_loads(a)
    a(f"""s_cmp_lg_u32 s{S_W}, 6
s_cbranch_scc1 L_k_nopf
s_mul_i32 s{T0}, s{S_J}, 25600
v_lshlrev_b32 v2, 7, v0""")
    srd(a, SB, P_WQ, 640*1280)
    for i in range(4):
        a(f"buffer_load_dword v6, v2, s[{SB}:{SB+3}], s{T0} offen\ns_add_u32 s{T0}, s{T0}, 8192")
    a(f"""v_lshlrev_b32 v2, 21, v0
s_mov_b64 exec, 15
buffer_load_dword v6, v2, s[{SWS}:{SWS+3}], 0 offen offset:2048
buffer_load_dword v6, v2, s[{SOUT}:{SOUT+3}], 0 offen
s_mov_b64 exec, -1""")
    a.label("L_k_nopf")
    rest_x(a)
    typed_offsets(a)
    finish_nonce(a)
    a("s_waitcnt vmcnt(15)")
    a.label("L_k_b0")
    stamp(a, cfg, 24)
    a("s_barrier")
    stamp(a, cfg, 1)
    a("s_setprio 0")
    kgen(a, cfg)
    a("s_waitcnt vmcnt(0) lgkmcnt(0)")
    stamp(a, cfg, 2)
    a("s_barrier")
    x_frags(a, 10)
    kgen_table(a, cfg)
    a("s_waitcnt lgkmcnt(0)\ns_barrier")
    stamp(a, cfg, 26)
    a(f"s_cmp_ge_u32 s{S_W}, 4\ns_cbranch_scc1 L_expand")
    wq_dma(a, "b", 0, 20 - NWQA)
    stamp(a, cfg, 3)
    a("s_waitcnt vmcnt(0)")
    stamp(a, cfg, 25)
    a("s_barrier\ns_branch L_join")

def role_w7(a, cfg):
    for i in range(5): div10_offsets(a, 8+i, None, 64*i, 2, False)
    srd(a, SB, P_U, 2048*1280)
    a(f"""s_mul_i32 s{T2}, s{S_J}, {64*1280}
s_mul_i32 s{T3}, s{S_XCD}, 160
s_add_u32 s{T2}, s{T2}, s{T3}
s_add_u32 s{T3}, s{T2}, 40960
s_mov_b32 m0, {L_UST}
s_nop 0""")
    for i in range(10):
        a(f"buffer_load_dwordx4 v{8+i%5}, s[{SB}:{SB+3}], s{T2 if i < 5 else T3} offen lds")
        if i < 9: a(f"s_add_u32 m0, m0, 1024\ns_nop 0")
    rest_x(a)
    stamp(a, cfg, 22)
    typed_offsets(a)
    finish_nonce(a)
    a(f"""v_and_b32 v2, 3, v0
v_lshrrev_b32 v3, 4, v0
v_lshl_add_u32 v2, v3, 2, v2
v_and_b32 v3, 7, v2
v_lshrrev_b32 v4, 3, v2
v_bfe_u32 v5, v0, 2, 2
v_lshl_add_u32 v5, v3, 3, v5
v_mul_u32_u24 v5, 160, v5
v_lshl_add_u32 v5, v4, 3, v5
v_add_u32 v5, {L_UST}, v5
v_lshrrev_b32 v6, 2, v0
v_and_b32 v7, 7, v6
v_lshrrev_b32 v6, 3, v6
v_and_b32 v3, 3, v0
v_lshl_add_u32 v6, v6, 2, v3
v_xor_b32 v7, v7, v6
v_lshlrev_b32 v6, 7, v6
v_lshl_add_u32 v6, v7, 4, v6
v_add_u32 v6, {L_UST}, v6
v_lshrrev_b32 v7, 3, v0
v_and_b32 v3, 7, v0
v_xor_b32 v3, v3, v7
v_lshlrev_b32 v7, 12, v7
v_lshl_add_u32 v7, v3, 4, v7
v_add_u32 v8, {L_UST}, v1
s_mul_i32 s{T2}, s{S_XCD}, {80*4096}
s_lshl_b32 s{T3}, s{S_J}, 7
s_add_u32 s{T2}, s{T2}, s{T3}
s_add_u32 s{T2}, s{T2}, {W_UT}
s_waitcnt vmcnt(15)""")
    stamp(a, cfg, 24)
    a("s_barrier")
    stamp(a, cfg, 1)
    UR = 60
    for i in range(10):
        for hf in range(2):
            a(f"ds_read_b64_tr_b16 {vr(UR+4*i+2*hf,2)}, v5 offset:{16*i + 640*hf}")
    a("s_waitcnt lgkmcnt(0)")
    for i in range(10): a(f"ds_write_b128 v6, {vr(UR+4*i,4)} offset:{1024*i}")
    for i in range(10): a(f"ds_read_b128 {vr(UR+40+4*i,4)}, v8 offset:{1024*i}")
    for k in range(10):
        a(f"s_waitcnt lgkmcnt({9-k})\nbuffer_store_dwordx4 {vr(UR+40+4*k,4)}, v7, s[{SWS}:{SWS+3}], s{T2} offen sc1\ns_add_u32 s{T2}, s{T2}, 32768")
    a("s_waitcnt vmcnt(10)")
    stamp(a, cfg, 2)
    a("s_barrier")
    x_frags(a, 10)
    a(f"""s_lshl_b32 s{T0}, s{S_XCD}, 8
s_lshl_b32 s{T2}, s{S_J}, 2
s_add_u32 s{T0}, s{T0}, s{T2}
s_add_u32 s{T0}, s{T0}, {W_FU}
v_mov_b32 v6, s{S_NONCE}
v_mov_b32 v7, 0
s_waitcnt lgkmcnt(0)
s_barrier
s_waitcnt vmcnt(0)
s_mov_b64 exec, 1
buffer_store_dword v6, v7, s[{SWS}:{SWS+3}], s{T0} offen sc1
s_mov_b64 exec, -1""")
    stamp(a, cfg, 26)
    a.label("L_expand")
    expand(a, cfg)
    stamp(a, cfg, 3)
    a("s_waitcnt lgkmcnt(0)\ns_barrier")

UTR = 200
def w_tr_addr(a, v, t):
    a(f"""v_lshrrev_b32 v{v}, 5, v0
v_lshlrev_b32 v{v}, 4, v{v}
v_bfe_u32 v{t}, v0, 4, 1
v_lshl_add_u32 v{v}, v{t}, 2, v{v}
v_bfe_u32 v{t}, v0, 2, 2
v_add_u32 v{v}, v{v}, v{t}
v_mul_u32_u24 v{v}, 160, v{v}
v_and_b32 v{t}, 3, v0
v_lshl_add_u32 v{v}, v{t}, 3, v{v}
s_mul_i32 s{T0}, s{S_KH}, 51200
v_add_u32 v{v}, s{T0}, v{v}""")

def qproj(a, cfg):
    WR = 96; ACC = 140
    UT2 = 166
    stamp(a, cfg, 4)
    a(f"s_cmp_lg_u32 s{S_W}, 7\ns_cbranch_scc1 L_q_nou")
    a(f"""s_lshl_b32 s{T0}, s{S_XCD}, 8
s_add_u32 s{T0}, s{T0}, {W_FU}
v_lshl_add_u32 v2, v0, 2, s{T0}""")
    poll(a, "u", 2, 1, 3, lanes=32)
    a(f"""s_lshl_b32 s{T0}, s{S_CH0}, 12
s_add_u32 s{T0}, s{T0}, {W_UT}""")
    for c in range(3):
        if c == 2: a(f"s_cmp_lt_u32 s{S_NCH}, 3\ns_cbranch_scc1 L_q_nou")
        for i in range(4):
            a(f"buffer_load_dwordx4 {vr(UT2+16*c+4*i,4)}, v1, s[{SWS}:{SWS+3}], s{T0} offen offset:{1024*i} sc1")
        a(f"s_add_u32 s{T0}, s{T0}, 4096")
    a.label("L_q_nou")
    stamp(a, cfg, 5)
    w_tr_addr(a, 2, 3)
    def reads(i):
        b = WR + 20*(i & 1)
        for ct in range(5):
            for hf in range(2):
                a(f"ds_read_b64_tr_b16 {vr(b+4*ct+2*hf,2)}, v2 offset:{L_WQ + 5120*i + 1280*hf + 32*ct}")
    reads(0)
    for i in range(10):
        b = WR + 20*(i & 1)
        if i + 1 < 10:
            nb = WR + 20*((i+1) & 1)
            for ct in range(5):
                a(f"s_waitcnt lgkmcnt(8)")
                c = "0" if i == 0 else vr(ACC+4*ct, 4)
                a(f"v_mfma_f32_16x16x32_bf16 {vr(ACC+4*ct,4)}, {vr(b+4*ct,4)}, {vr(XF+4*i,4)}, {c}")
                for hf in range(2):
                    a(f"ds_read_b64_tr_b16 {vr(nb+4*ct+2*hf,2)}, v2 offset:{L_WQ + 5120*(i+1) + 1280*hf + 32*ct}")
        else:
            for ct in range(5):
                a(f"s_waitcnt lgkmcnt({8-2*ct})")
                a(f"v_mfma_f32_16x16x32_bf16 {vr(ACC+4*ct,4)}, {vr(b+4*ct,4)}, {vr(XF+4*i,4)}, {vr(ACC+4*ct,4)}")
    stamp(a, cfg, 6)
    a(f"""s_and_b32 s{T0}, s{S_W}, 3
s_mul_i32 s{T1}, s{T0}, 5120
s_add_u32 s{T1}, s{T1}, {L_QX}
v_add_u32 v3, s{T1}, v1
s_mul_i32 s{T1}, s{T0}, 2560
s_add_u32 s{T1}, s{T1}, {L_QST}
v_and_b32 v4, 15, v0
v_mul_u32_u24 v4, 160, v4
v_lshrrev_b32 v5, 4, v0
v_lshl_add_u32 v4, v5, 3, v4
v_add_u32 v4, s{T1}, v4
s_mov_b32 s{T2}, {hx(f2u(LOG2E/math.sqrt(20.0)))}
s_barrier""")
    stamp(a, cfg, 7)
    a(f"s_cmp_eq_u32 s{S_KH}, 0\ns_cbranch_scc0 L_qx_hi")
    for kh in range(2):
        if kh: a.label("L_qx_hi")
        send = [3, 4] if kh == 0 else [0, 1, 2]
        keep = [0, 1, 2] if kh == 0 else [3, 4]
        for ct in send: a(f"ds_write_b128 v3, {vr(ACC+4*ct,4)} offset:{1024*ct}")
        a("s_waitcnt lgkmcnt(0)\ns_barrier")
        for ct in keep: a(f"ds_read_b128 {vr(WR+4*ct,4)}, v3 offset:{1024*ct}")
        for n, ct in enumerate(keep):
            a(f"s_waitcnt lgkmcnt({len(keep)-1-n})")
            for j in range(4): a(f"v_add_f32 v{WR+4*ct+j}, v{WR+4*ct+j}, v{ACC+4*ct+j}")
            for j in range(4): a(f"v_mul_f32 v{WR+4*ct+j}, s{T2}, v{WR+4*ct+j}")
            a(f"v_cvt_pk_bf16_f32 v{ACC+4*ct}, v{WR+4*ct}, v{WR+4*ct+1}\nv_cvt_pk_bf16_f32 v{ACC+4*ct+1}, v{WR+4*ct+2}, v{WR+4*ct+3}")
        for ct in keep: a(f"ds_write_b64 v4, {vr(ACC+4*ct,2)} offset:{32*ct}")
        if kh == 0: a("s_branch L_qx_done")
    a.label("L_qx_done")
    a(f"""s_cmp_lt_u32 s{S_W}, 5
s_cbranch_scc1 L_q_b3
s_cmp_eq_u32 s{S_W}, 7
s_cbranch_scc1 L_q_w7
s_cmp_eq_u32 s{S_W}, 6
s_cbranch_scc1 L_q_w6
v_lshlrev_b32 v2, 3, v0
v_add_u32 v2, {L_UT}, v2
v_mov_b32 v4, 0
v_mov_b32 v5, 0""")
    for c in range(3): a(f"ds_write_b64 v2, v[4:5] offset:{UT_CH*c}")
    a("s_branch L_q_b3")
    a.label("L_q_w6")
    a(f"""s_lshl_b32 s{T0}, s{S_XCD}, 10
s_add_u32 s{T0}, s{T0}, {W_FKV}
v_add_u32 v3, s{T0}, v1""")
    poll(a, "kv", 3, 4, 4)
    a("s_branch L_q_b3")
    a.label("L_q_w7")
    a(f"v_add_u32 v2, {L_UT + 512}, v1\ns_waitcnt vmcnt(0)")
    for c in range(3):
        for i in range(4): a(f"ds_write_b128 v2, {vr(UT2+16*c+4*i,4)} offset:{UT_CH*c + 1024*i}")
    a.label("L_q_b3")
    for c in range(3):
        a(f"""s_add_u32 s{T2}, s{S_CH0}, {c}
s_min_u32 s{T2}, s{T2}, 639
s_lshl_b32 s{T2}, s{T2}, 1
s_and_b32 s{T2}, s{T2}, 0xfffffffc
s_load_dword s{S_D0+c}, s[{P_DSK}:{P_DSK+1}], s{T2}""")
    attn_init(a, False)
    stamp(a, cfg, 27)
    a("s_waitcnt lgkmcnt(0)\ns_barrier")
    stamp(a, cfg, 8)
    dump_lds(a, cfg, "b3", 81920, 10)

class AR: pass
AR.S = [8, 40]; AR.CZ = 72; AR.OA = 104; AR.OB = 120
AR.K16 = 136; AR.K4 = 140; AR.V0 = 144; AR.V1 = 148
AR.IDX = 152; AR.aK16 = 153; AR.aK4 = 154; AR.aV = 155
AR.QA = 156; AR.QB = 160; AR.Q4 = 164

def attn_init(a, fb):
    R = AR
    a(f"""s_mul_i32 s{T0}, s{S_KH}, {BLK}
v_add_u32 v{R.aK16}, s{T0}, v1
v_lshl_add_u32 v{R.aK4}, v0, 3, s{T0}
v_and_b32 v2, 31, v0
v_lshrrev_b32 v3, 5, v0
v_mul_u32_u24 v3, 320, v3
v_lshl_add_u32 v2, v2, 4, v3
v_add_u32 v{R.aV}, s{T0}, v2
v_mov_b32 v{R.IDX}, 0xdddd""")
    for i in range(32): a(f"v_mov_b32 v{R.OA+i}, 0")
    for i in range(8): a(f"v_mov_b32 v{R.V0+i}, 0")
    a(f"s_mov_b32 exec_lo, 0x00100000\ns_mov_b32 exec_hi, 0x00100000")
    for i in range(8): a(f"v_mov_b32 v{R.V0+i}, 0x3f803f80")
    a("s_mov_b64 exec, -1")

class Dma:
    def __init__(s, items): s.items = list(items)
    def pop(s, a, n=1):
        for _ in range(n):
            if s.items: a(s.items.pop(0))
    def flush(s, a): s.pop(a, len(s.items))

S_DM = 90; S_DO = 91
def kv_dma_items(a, first, n):
    a(f"""s_lshl_b32 s{S_DM}, s{S_W}, 10
s_add_u32 s{S_DM}, s{S_DM}, {first*1024}
s_add_u32 s{S_DO}, s{S_DM}, {W_KV}""")
    return Dma([f"s_mov_b32 m0, s{S_DM}\ns_add_u32 s{S_DM}, s{S_DM}, 8192\nbuffer_load_dwordx4 v1, s[{SWS}:{SWS+3}], s{S_DO} offen sc1 lds\ns_add_u32 s{S_DO}, s{S_DO}, 8192"] * n)

def post_q(a, cfg):
    a(f"""s_and_b32 s{T0}, s{S_W}, 3
s_mul_i32 s{T1}, s{T0}, 2560
s_add_u32 s{T1}, s{T1}, {L_QST}
v_and_b32 v2, 15, v0
v_mul_u32_u24 v2, 160, v2
v_bfe_u32 v3, v0, 4, 1
v_mul_u32_u24 v3, 40, v3
v_add3_u32 v2, v2, v3, s{T1}
v_lshrrev_b32 v3, 5, v0
v_lshl_add_u32 v4, v3, 4, v2
v_mul_u32_u24 v3, 80, v3
v_add_u32 v3, v2, v3
ds_read2_b64 {vr(AR.QA,4)}, v4 offset0:0 offset1:1
ds_read2_b64 {vr(AR.QB,4)}, v4 offset0:10 offset1:11
ds_read_b64 {vr(AR.Q4,2)}, v3 offset:32""")
    if cfg.nonce_update:
        a(f"""s_or_b32 s{T2}, s2, s{S_W}
s_cmp_lg_u32 s{T2}, 0
s_cbranch_scc1 L_pq_done
v_mov_b32 v2, {W_NONCE}
v_mov_b32 v3, s{S_NONCE}
s_mov_b64 exec, 1
buffer_store_dword v3, v2, s[{SWS}:{SWS+3}], 0 offen
s_mov_b64 exec, -1""")
    a.label("L_pq_done")
    for c in range(3):
        a(f"""s_add_u32 s{T2}, s{S_CH0}, {c}
s_min_u32 s{T2}, s{T2}, 639
s_and_b32 s{T2}, s{T2}, 1
s_lshl_b32 s{T2}, s{T2}, 4
s_lshr_b32 s{S_D0+c}, s{S_D0+c}, s{T2}
s_lshl_b32 s{S_D0+c}, s{S_D0+c}, 16""")
    stamp(a, cfg, 9)

def conv(a, cfg):
    ACC = 8; FA = [40, 166]; FB = [72, 198]
    tab = {0: (2, 0, 4), 1: (2, 4, 4), 2: (0, 0, 3), 3: (0, 3, 3), 4: (0, 6, 2), 5: (1, 6, 2), 6: (1, 0, 3), 7: (1, 3, 3)}
    chp = sum(tab[w][0] << (4*w) for w in range(8)); r0p = sum(tab[w][1] << (4*w) for w in range(8)); cnp = sum(tab[w][2] << (4*w) for w in range(8))
    dma = kv_dma_items(a, 0, 10)
    a(f"""s_lshl_b32 s{T0}, s{S_W}, 2
s_lshr_b32 s{T1}, {hx(chp)}, s{T0}
s_and_b32 s{T1}, s{T1}, 15
s_lshr_b32 s{T2}, {hx(r0p)}, s{T0}
s_and_b32 s{T2}, s{T2}, 15
s_lshr_b32 s{T3}, {hx(cnp)}, s{T0}
s_and_b32 s{T3}, s{T3}, 15
s_cmp_ge_u32 s{T1}, s{S_NCH}
s_cbranch_scc1 L_conv_skip
s_mul_i32 s{T4}, s{T1}, {CP_CH}
s_lshl_b32 s{T5}, s{T2}, 6
s_sub_u32 s{T4}, s{T4}, s{T5}
s_add_u32 s{T4}, s{T4}, {L_CP + 2*2032 - 512*7 - 192}
s_mul_i32 s{T6}, s{T1}, {UT_CH}
s_sub_u32 s{T6}, s{T6}, s{T5}
s_add_u32 s{T6}, s{T6}, {L_UT + 480 - 192}
v_and_b32 v2, 15, v0
v_lshrrev_b32 v3, 4, v0
v_sub_u32 v4, 0, v2
v_and_b32 v4, 3, v4
v_add_u32 v5, v2, v4
v_mul_u32_u24 v4, {CP_C}, v4
v_lshlrev_b32 v5, 1, v5
v_sub_u32 v4, v4, v5
v_lshl_add_u32 v4, v3, 4, v4
v_add_u32 v4, s{T4}, v4
v_lshlrev_b32 v5, 5, v2
v_lshl_add_u32 v5, v3, 4, v5
v_add_u32 v5, s{T6}, v5""")
    def reads(task, i):
        st = task & 1; d = 192 - 64*task
        return [f"ds_read_b128 {vr(FB[st]+4*i,4)}, v5 offset:{512*i + d}",
                f"ds_read_b64 {vr(FA[st]+4*i,2)}, v4 offset:{512*(7-i) + d}",
                f"ds_read_b64 {vr(FA[st]+4*i+2,2)}, v4 offset:{512*(7-i) + 8 + d}"]
    allr = [r for i in range(8) for r in reads(0, i)]
    for r in allr[:15]: a(r)
    pend = allr[15:]
    for task in range(4):
        st = task & 1
        queue = [(r, task) for r in pend] + ([(r, task+1) for i in range(8) for r in reads(task+1, i)] if task < 3 else [])
        issued_own = 24 - len(pend); issued_next = 0
        nm = 0
        for i in range(8):
            while issued_own < 3*(i+1):
                a(queue.pop(0)[0]); issued_own += 1
            outstanding_after = issued_own - 3*(i+1) + issued_next
            a(f"s_waitcnt lgkmcnt({min(15, outstanding_after)})")
            for j in range(i + 1):
                c = "0" if task == 0 and j == 0 else vr(ACC+4*i, 4)
                a(f"v_mfma_f32_16x16x32_bf16 {vr(ACC+4*i,4)}, {vr(FA[st]+4*j,4)}, {vr(FB[st]+4*(i-j),4)}, {c}")
                nm += 1
                if queue and (queue[0][1] == task or i >= 3):
                    if issued_own + issued_next - 3*(i+1) < 14 or queue[0][1] != task:
                        r, t = queue.pop(0); a(r)
                        if t == task: issued_own += 1
                        else: issued_next += 1
                if task < 2 and nm % 7 == 3: dma.pop(a)
        pend = [r for r, t in queue]
        if task == 1:
            dma.flush(a)
            a(f"s_cmp_le_u32 s{T3}, 2\ns_cbranch_scc1 L_conv_done")
        if task == 2:
            a(f"s_cmp_le_u32 s{T3}, 3\ns_cbranch_scc1 L_conv_done")
    a("s_branch L_conv_done")
    a.label("L_conv_skip")
    kv_dma_items(a, 0, 10).flush(a)
    for i in range(32): a(f"v_mov_b32 v{ACC+i}, 0")
    a.label("L_conv_done")
    stamp(a, cfg, 10)
    a(f"""v_and_b32 v2, 15, v0
v_lshrrev_b32 v3, 4, v0
v_lshl_add_u32 v2, v3, 2, v2
v_and_b32 v2, 15, v2
v_lshl_add_u32 v2, v3, 4, v2
s_lshl_b32 s{T0}, s{S_W}, 13
s_add_u32 s{T0}, s{T0}, {L_PART}
v_lshl_add_u32 v2, v2, 4, s{T0}
v_lshrrev_b32 v3, 2, v0
v_and_b32 v4, 3, v0
v_lshl_add_u32 v3, v4, 2, v3
v_and_b32 v3, 15, v3
v_lshl_add_u32 v3, v4, 4, v3
s_lshl_b32 s{T0}, s{S_W}, 10
s_add_u32 s{T0}, s{T0}, {L_PART}
v_lshl_add_u32 v3, v3, 4, s{T0}
s_lshl_b32 s{T0}, s{S_W}, 9
v_lshl_add_u32 v4, v0, 3, s{T0}
v_add_u32 v5, {L_UT + 512}, v4
s_lshl_b32 s{T1}, s{S_CH0}, 12
s_add_u32 s{T1}, s{T1}, {W_YT}
s_waitcnt lgkmcnt(0)
s_barrier""")
    for i in range(8): a(f"ds_write_b128 v2, {vr(ACC+4*i,4)} offset:{1024*i}")
    tail_addrs(a)
    a("s_waitcnt lgkmcnt(0)\ns_barrier")
    stamp(a, cfg, 28)
    src = {0: [2, 3, 4], 1: [5, 6, 7], 2: [0, 1]}
    PR = 8
    for c in range(3):
        b = PR + 16*c
        for n, w in enumerate(src[c]): a(f"ds_read_b128 {vr(b+4*n,4)}, v3 offset:{8192*w}")
        a(f"ds_read_b64 {vr(b+12,2)}, v5 offset:{UT_CH*c}")
    for i in range(8): a(f"v_mov_b32 v{AR.S[1]+24+i}, 0")
    for c in range(3):
        if c == 2: a(f"s_cmp_lt_u32 s{S_NCH}, 3\ns_cbranch_scc1 L_y_done")
        b = PR + 16*c
        a(f"s_waitcnt lgkmcnt({[7, 3, 0][c]})")
        a(f"""v_lshlrev_b32 v{b+14}, 16, v{b+12}
v_and_b32 v{b+12}, 0xffff0000, v{b+12}
v_lshlrev_b32 v{b+15}, 16, v{b+13}
v_and_b32 v{b+13}, 0xffff0000, v{b+13}""")
        us = [b+14, b+12, b+15, b+13]
        for j in range(4): a(f"v_add_f32 v{b+j}, v{b+j}, v{b+4+j}")
        if len(src[c]) == 3:
            for j in range(4): a(f"v_add_f32 v{b+j}, v{b+j}, v{b+8+j}")
        for j in range(4): a(f"v_fma_f32 v{b+j}, v{us[j]}, s{S_D0+c}, v{b+j}")
        a(f"""v_cvt_pk_bf16_f32 v{b+4}, v{b}, v{b+1}
v_cvt_pk_bf16_f32 v{b+5}, v{b+2}, v{b+3}
buffer_store_dwordx2 {vr(b+4,2)}, v4, s[{SWS}:{SWS+3}], s{T1} offen sc1
s_add_u32 s{T1}, s{T1}, 4096""")
    a("s_waitcnt vmcnt(3)\ns_branch L_y_b7")
    a.label("L_y_done")
    a("s_waitcnt vmcnt(2) lgkmcnt(0)")
    a.label("L_y_b7")
    a("s_barrier")
    stamp(a, cfg, 11)

A_YR, A_YW, A_YB, A_YG0, A_YG1, A_W, A_OW, A_OB, A_OG, A_XW, A_XR, A_PW, A_PG0, A_PG1, A_YD, A_FO = range(226, 242)
def tail_addrs(a):
    a(f"""v_and_b32 v6, 3, v0
v_lshrrev_b32 v7, 4, v0
v_lshl_add_u32 v6, v7, 2, v6
v_lshrrev_b32 v7, 1, v6
v_lshlrev_b32 v7, 3, v7
v_bfe_u32 v{A_YR}, v0, 2, 2
v_add_u32 v7, v7, v{A_YR}
v_lshlrev_b32 v7, 7, v7
v_and_b32 v6, 1, v6
v_lshl_add_u32 v7, v6, 3, v7
s_lshl_b32 s{T0}, s{S_W}, 4
s_add_u32 s{T0}, s{T0}, {L_YT}
v_add_u32 v{A_YR}, s{T0}, v7
v_lshrrev_b32 v6, 2, v0
v_and_b32 v7, 1, v6
v_and_b32 v{A_YW}, 3, v0
v_lshl_add_u32 v7, v7, 2, v{A_YW}
v_mul_u32_u24 v7, 160, v7
v_lshrrev_b32 v6, 1, v6
v_lshl_add_u32 v7, v6, 4, v7
s_mul_i32 s{T0}, s{S_W}, 1280
s_add_u32 s{T0}, s{T0}, {L_YS}
v_add_u32 v{A_YW}, s{T0}, v7
v_add_u32 v{A_YB}, s{T0}, v1""")
    for d, add in ((A_YG0, 0), (A_YG1, 64)):
        a(f"""v_add_u32 v6, {add}, v0
v_mul_u32_u24 v7, 6554, v6
v_lshrrev_b32 v7, 16, v7
v_mul_u32_u24 v{d}, 10, v7
v_sub_u32 v6, v6, v{d}
v_mul_u32_u24 v7, 2560, v7
v_lshl_add_u32 v{d}, v6, 4, v7""")
    w_tr_addr(a, A_W, 6)
    a(f"""s_mul_i32 s{T0}, s{S_W}, {OT_SZ}
s_add_u32 s{T0}, s{T0}, {L_OT}
v_and_b32 v6, 15, v0
v_mul_u32_u24 v6, 80, v6
v_bfe_u32 v7, v0, 4, 1
v_mul_u32_u24 v7, 40, v7
v_add3_u32 v7, v6, v7, s{T0}
v_lshrrev_b32 v{A_OW}, 5, v0
v_lshl_add_u32 v{A_OW}, v{A_OW}, 3, v7
v_lshrrev_b32 v7, 4, v0
v_lshl_add_u32 v6, v7, 4, v6
v_add_u32 v{A_OB}, s{T0}, v6
s_lshl_b32 s{T0}, s{S_HG}, 1
s_add_u32 s{T0}, s{T0}, s{S_KH}
s_mul_i32 s{T0}, s{T0}, 1280
s_lshl_b32 s{T2}, s{S_RB}, 2
s_add_u32 s{T2}, s{T2}, s{S_RT}
s_mul_i32 s{T2}, s{T2}, 20480
s_add_u32 s{T0}, s{T0}, s{T2}
s_add_u32 s{T0}, s{T0}, {W_O}
v_add_u32 v{A_OG}, s{T0}, v1
s_mul_i32 s{T0}, s{S_W}, 3072
s_add_u32 s{T0}, s{T0}, {L_XCH}
v_add_u32 v{A_XW}, s{T0}, v1
s_xor_b32 s{T0}, s{S_W}, 4
s_mul_i32 s{T0}, s{T0}, 3072
s_add_u32 s{T0}, s{T0}, {L_XCH}
v_add_u32 v{A_XR}, s{T0}, v1
v_lshrrev_b32 v6, 3, v0
v_lshlrev_b32 v6, 12, v6
v_and_b32 v7, 7, v0
v_lshl_add_u32 v{A_YD}, v7, 4, v6
s_and_b32 s{T2}, s{S_W}, 3
s_lshl_b32 s{T0}, s{S_RB}, 8
s_lshl_b32 s{T3}, s{S_KH}, 7
s_add_u32 s{T0}, s{T0}, s{T3}
s_lshl_b32 s{T3}, s{T2}, 2
s_add_u32 s{T0}, s{T0}, s{T3}
s_add_u32 s{T0}, s{T0}, {W_FO}
v_lshl_add_u32 v{A_FO}, v0, 4, s{T0}
s_mul_i32 s{T0}, s{S_W}, {OT_SZ}
s_add_u32 s{T0}, s{T0}, {L_OT}
v_and_b32 v6, 15, v0
s_mul_i32 s{T3}, s{S_KH}, 32
s_sub_u32 s{T3}, 96, s{T3}
v_mul_u32_u24 v6, s{T3}, v6
v_lshrrev_b32 v7, 4, v0
v_lshl_add_u32 v6, v7, 3, v6
v_add_u32 v{A_PW}, s{T0}, v6
s_cmp_eq_u32 s{S_KH}, 0
s_cbranch_scc0 L_ta_hi
v_mul_u32_u24 v6, 10923, v0
v_lshrrev_b32 v6, 16, v6
v_mul_u32_u24 v7, 6, v6
v_sub_u32 v7, v0, v7
v_mul_u32_u24 v6, 2560, v6
v_lshl_add_u32 v{A_PG0}, v7, 4, v6
v_add_u32 v7, 64, v0
v_mul_u32_u24 v6, 10923, v7
v_lshrrev_b32 v6, 16, v6
v_mul_u32_u24 v{A_PG1}, 6, v6
v_sub_u32 v7, v7, v{A_PG1}
v_mul_u32_u24 v6, 2560, v6
v_lshl_add_u32 v{A_PG1}, v7, 4, v6
s_branch L_ta_done""")
    a.label("L_ta_hi")
    a(f"""v_lshrrev_b32 v6, 2, v0
v_mul_u32_u24 v6, 2560, v6
v_and_b32 v7, 3, v0
v_lshl_add_u32 v6, v7, 4, v6
v_add_u32 v{A_PG0}, 96, v6
v_mov_b32 v{A_PG1}, 0""")
    a.label("L_ta_done")

def attn_half(a, cur, par, oK16, oV0, oV1, oK4, cz, extra=None):
    R = AR; S = R.S[cur]; N = R.S[1-cur]
    e = lambda k: a(f"v_exp_f32 v{S+k}, v{S+k} ; PHYS")
    x = extra if extra else (lambda: None)
    def vread(dst, off):
        a(f"s_mov_b64 exec, s[{VM}:{VM+1}]\nds_read_b128 {vr(dst,4)}, v{R.aV} offset:{off}\ns_mov_b64 exec, -1")
    a("s_waitcnt lgkmcnt(1)")
    a(f"v_mfma_f32_32x32x16_bf16 {vr(N,16)}, {vr(R.K16,4)}, {vr(R.QA,4)}, {vr(R.CZ,16) if cz else 0}")
    for k in range(0, 4): e(k)
    a(f"v_smfmac_f32_32x32x32_bf16 {vr(R.OB,16)}, {vr(R.V1,4)}, {vr(N+24,8)}, v{R.IDX}")
    vread(R.V1, oV1)
    for k in range(4, 8): e(k)
    a(f"v_mfma_f32_32x32x16_bf16 {vr(N+16,16)}, {vr(R.K16,4)}, {vr(R.QB,4)}, {vr(R.CZ+16,16) if cz else 0}")
    a(f"ds_read_b128 {vr(R.K16,4)}, v{R.aK16} offset:{oK16}")
    for k in range(8, 12): e(k)
    a("s_waitcnt lgkmcnt(2)")
    a(f"v_smfmac_f32_32x32x32_bf16 {vr(R.OA,16)}, {vr(R.V0,4)}, {vr(S,8)}, v{R.IDX}")
    x()
    for k in range(12, 16): e(k)
    a(f"v_mfma_f32_32x32x4bf16_1k {vr(N,32)}, {vr(R.K4,2)}, {vr(R.Q4,2)}, {vr(N,32)} cbsz:1 abid:{1-par} ; PHYS")
    if oK4 is not None: a(f"ds_read_b64 {vr(R.K4,2)}, v{R.aK4} offset:{oK4}")
    for k in range(16, 20): e(k)
    x()
    for k in range(20, 24): e(k)
    a(f"s_waitcnt lgkmcnt({1 + (oK4 is not None)})")
    a(f"v_smfmac_f32_32x32x32_bf16 {vr(R.OA,16)}, {vr(R.V1,4)}, {vr(S+8,8)}, v{R.IDX}")
    for k in range(24, 28): e(k)
    a(f"v_smfmac_f32_32x32x32_bf16 {vr(R.OB,16)}, {vr(R.V0,4)}, {vr(S+16,8)}, v{R.IDX}")
    vread(R.V0, oV0)
    x()
    for k in range(28, 32): e(k)

def attn_first(a, cz):
    R = AR
    a(f"""ds_read_b128 {vr(R.K16,4)}, v{R.aK16}
ds_read_b64 {vr(R.K4,2)}, v{R.aK4} offset:2048
s_waitcnt lgkmcnt(0)
v_mfma_f32_32x32x16_bf16 {vr(R.S[0],16)}, {vr(R.K16,4)}, {vr(R.QA,4)}, {vr(R.CZ,16) if cz else 0}
v_mfma_f32_32x32x16_bf16 {vr(R.S[0]+16,16)}, {vr(R.K16,4)}, {vr(R.QB,4)}, {vr(R.CZ+16,16) if cz else 0}
ds_read_b128 {vr(R.K16,4)}, v{R.aK16} offset:1024
s_mov_b64 exec, s[{VM}:{VM+1}]
ds_read_b128 {vr(R.V0,4)}, v{R.aV} offset:2560
s_mov_b64 exec, -1
s_nop 7
v_mfma_f32_32x32x4bf16_1k {vr(R.S[0],32)}, {vr(R.K4,2)}, {vr(R.Q4,2)}, {vr(R.S[0],32)} cbsz:1 abid:0
s_nop 15
s_nop 2""")

def attn_body(a, cz, extra=None, prio=True):
    R = AR; ST = 2*BLK
    for b in range(4):
        base = b*ST; nxt = base + ST
        if prio: a(f"s_setprio {3-b}")
        attn_half(a, 0, 0, nxt, base + 2560 + 1280, base + 2560 + 640, nxt + 2048, cz, extra)
        attn_half(a, 1, 1, nxt + 1024, nxt + 2560, base + 2560 + 1920, None, cz, extra)
    a(f"""v_add_u32 v{R.aK16}, {4*ST}, v{R.aK16}
v_add_u32 v{R.aK4}, {4*ST}, v{R.aK4}
v_add_u32 v{R.aV}, {4*ST}, v{R.aV}""")

def tail_dma_setup(a):
    a(f"""s_cmp_ge_u32 s{S_W}, 5
s_cbranch_scc1 L_td_y""")
    srd(a, SA, P_WO, 640*1280)
    a(f"""s_mul_i32 s{S_DO}, s{S_HG}, 160
s_lshl_b32 s{S_DM}, s{S_W}, 10""")
    for t in range(5):
        a(f"s_cmp_eq_u32 s{S_W}, {t}\ns_cbranch_scc1 L_td_t{t}")
    for t in range(5):
        a.label(f"L_td_t{t}")
        a(f"v_mov_b32 v{VX}, v{WO5+t}\ns_branch L_td_done")
    a.label("L_td_y")

def attention(a, cfg):
    R = AR
    dma = kv_dma_items(a, 80, 10)
    attn_first(a, False)
    stamp(a, cfg, 12)
    attn_body(a, False, lambda: dma.pop(a))
    a(f"""s_lshl_b32 s{T0}, s{S_XCD}, 10
s_lshl_b32 s{T1}, s{S_J}, 5
s_add_u32 s{T0}, s{T0}, s{T1}
s_lshl_b32 s{T1}, s{S_W}, 2
s_add_u32 s{T0}, s{T0}, s{T1}
s_add_u32 s{T0}, s{T0}, {W_FY}
v_mov_b32 v2, s{S_NONCE}
v_mov_b32 v3, 0
s_mov_b32 s{S_IT}, 0
s_waitcnt vmcnt(0)
s_mov_b64 exec, 1
buffer_store_dword v2, v3, s[{SWS}:{SWS+3}], s{T0} offen sc1
s_mov_b64 exec, -1
s_barrier""")
    a.label("L_attn_loop")
    attn_body(a, False)
    a(f"""s_add_u32 s{S_IT}, s{S_IT}, 1
s_cmp_lt_u32 s{S_IT}, 2
s_cbranch_scc1 L_attn_loop""")
    a(f"""s_cmp_lg_u32 s{S_W}, 7
s_cbranch_scc1 L_attn_nopoll
s_lshl_b32 s{T0}, s{S_XCD}, 10
s_add_u32 s{T0}, s{T0}, {W_FY}
v_add_u32 v2, s{T0}, v1""")
    poll(a, "y", 2, 4, 4)
    a.label("L_attn_nopoll")
    a("s_barrier")
    a.label("L_tail_dma")
    tail_dma_body(a, cfg)

def tail_dma_items(a, tag):
    a(f"s_cmp_ge_u32 s{S_W}, 5\ns_cbranch_scc1 L_td_y{tag}")
    srd(a, SA, P_WO, 640*1280)
    a(f"""s_mul_i32 s{S_DO}, s{S_HG}, 160
s_lshl_b32 s{S_DM}, s{S_W}, 10
s_mov_b32 s92, 40960
s_mov_b32 s93, 5120
s_mov_b32 s94, 20""")
    for t in range(5):
        a(f"s_cmp_lg_u32 s{S_W}, {t}\ns_cbranch_scc1 L_td_n{t}{tag}\nv_mov_b32 v{VX}, v{WO5+t}")
        a.label(f"L_td_n{t}{tag}")
    a(f"s_branch L_td_done{tag}")
    a.label(f"L_td_y{tag}")
    srd(a, SA, P_WS, WS_SZ)
    a(f"""s_sub_u32 s{T2}, s{S_W}, 5
s_mul_i32 s{S_DO}, s{S_XCD}, {80*4096}
s_lshl_b32 s{T1}, s{S_J}, 7
s_add_u32 s{S_DO}, s{S_DO}, s{T1}
s_lshl_b32 s{T1}, s{T2}, 15
s_add_u32 s{S_DO}, s{S_DO}, s{T1}
s_add_u32 s{S_DO}, s{S_DO}, {W_YT}
s_lshl_b32 s{S_DM}, s{T2}, 10
s_add_u32 s{S_DM}, s{S_DM}, {L_YT}
s_mov_b32 s92, {3*32768}
s_mov_b32 s93, 3072
s_cmp_eq_u32 s{T2}, 0
s_cselect_b32 s94, 4, 3
v_mov_b32 v{VX}, v{A_YD}""")
    a.label(f"L_td_done{tag}")
    n = [0]
    def item():
        n[0] += 1
        return f"""s_cmp_lt_u32 s94, {n[0]}
s_cbranch_scc1 L_tds{tag}_{n[0]}
s_mov_b32 m0, s{S_DM}
s_add_u32 s{S_DM}, s{S_DM}, s93
buffer_load_dwordx4 v{VX}, s[{SA}:{SA+3}], s{S_DO} offen sc1 lds
s_add_u32 s{S_DO}, s{S_DO}, s92
L_tds{tag}_{n[0]}:"""
    return Dma([item() for _ in range(20)])

def tail_dma_body(a, cfg):
    R = AR
    dma = tail_dma_items(a, "m")
    attn_body(a, False, lambda: dma.pop(a))
    dma.flush(a)
    a(f"v_smfmac_f32_32x32x32_bf16 {vr(R.OB,16)}, {vr(R.V1,4)}, {vr(R.S[1]+24,8)}, v{R.IDX}\ns_setprio 0")

def o_finish(a, cfg):
    R = AR
    X = 8; Y = 24
    a.label("L_ofin")
    stamp(a, cfg, 13)
    a(f"""v_mov_b32 v4, {L_DEC}
v_mov_b32 v5, 0
s_mov_b32 s{T0}, {hx(f2u(2.0**-40))}
s_mov_b32 s{T1}, {hx(f2u(2.0**40))}
s_waitcnt vmcnt(0) lgkmcnt(0)
s_nop 4
s_barrier""")
    stamp(a, cfg, 29)
    a(f"ds_write_b32 v4, v5\ns_cmp_eq_u32 s{S_KH}, 0\ns_cbranch_scc0 L_ox_hi")
    for kh in range(2):
        if kh: a.label("L_ox_hi")
        send, keep = (R.OB, R.OA) if kh == 0 else (R.OA, R.OB)
        for q in range(3): a(f"ds_write_b128 v{A_XW}, {vr(send+4*q,4)} offset:{1024*q}")
        a("s_waitcnt lgkmcnt(0)\ns_barrier")
        for q in (2, 0, 1): a(f"ds_read_b128 {vr(X+4*q,4)}, v{A_XR} offset:{1024*q}")
        a(f"s_waitcnt lgkmcnt(2)\nv_add_f32 v{Y}, v{X+8}, v{keep+8}\nv_add_f32 v{Y+1}, v{X+8}, v{keep+8}")
        for j in range(4): a(f"v_add_f32 v{X+8+j}, v{X+8+j}, v{keep+8+j}")
        a(f"v_permlane32_swap_b32 v{Y}, v{Y+1}\ns_waitcnt lgkmcnt(0)")
        for j in range(8): a(f"v_add_f32 v{X+j}, v{X+j}, v{keep+j}")
        if kh == 0: a("s_branch L_ox_done")
    a.label("L_ox_done")
    a(f"""v_rcp_f32 v{Y}, v{Y+1}
v_cmp_le_f32 vcc, s{T0}, v{Y+1}
v_cmp_ge_f32 s[{T2}:{T3}], s{T1}, v{Y+1}""")
    for k in range(12): a(f"v_mul_f32 v{X+k}, v{X+k}, v{Y}")
    for k in range(6): a(f"v_cvt_pk_bf16_f32 v{Y+2+k}, v{X+2*k}, v{X+2*k+1}")
    a(f"""ds_write_b64 v{A_OW}, {vr(Y+2,2)}
ds_write_b64 v{A_OW}, {vr(Y+4,2)} offset:16
s_mov_b32 exec_hi, 0
ds_write_b64 v{A_OW}, {vr(Y+6,2)} offset:32
s_mov_b32 exec_hi, -1
ds_read_b128 {vr(X,4)}, v{A_OB}
ds_read_b128 {vr(X+4,4)}, v{A_OB} offset:64
s_and_b64 vcc, vcc, s[{T2}:{T3}]
s_cmp_eq_u64 vcc, -1
s_cbranch_scc1 L_ox_ok
s_cmp_lg_u32 s{S_FB}, 0
s_cbranch_scc1 L_ox_ok
v_mov_b32 v5, 1
ds_write_b32 v4, v5
s_waitcnt lgkmcnt(0)""")
    a.label("L_ox_ok")
    a(f"""s_waitcnt lgkmcnt(1)
buffer_store_dwordx4 {vr(X,4)}, v{A_OG}, s[{SWS}:{SWS+3}], 0 offen sc1
s_mov_b64 exec, 0xffff
s_waitcnt lgkmcnt(0)
buffer_store_dwordx4 {vr(X+4,4)}, v{A_OG}, s[{SWS}:{SWS+3}], 0 offen offset:1024 sc1
s_mov_b64 exec, -1
s_barrier""")
    stamp(a, cfg, 14)
    a(f"ds_read_b32 v5, v4")

def fallback(a, cfg):
    R = AR
    a.label("L_fallback")
    a(f"s_mov_b32 s{S_FB}, 1\ns_waitcnt vmcnt(0) lgkmcnt(0)\ns_barrier")
    kv_dma_items(a, 0, 20).flush(a)
    a(f"""v_mov_b32 v{R.aK16}, v1
v_lshlrev_b32 v{R.aK4}, 3, v0
v_mov_b32 v2, 0xff7fffff
v_mov_b32 v3, 0xff7fffff
s_mov_b32 s{S_IT}, 0
s_waitcnt vmcnt(0)
s_barrier""")
    a.label("L_fb_loop")
    for par in range(2):
        a(f"""ds_read_b128 {vr(R.K16,4)}, v{R.aK16} offset:{1024*par}
ds_read_b64 {vr(R.K4,2)}, v{R.aK4} offset:2048
s_waitcnt lgkmcnt(0)
v_mfma_f32_32x32x16_bf16 {vr(R.S[0],16)}, {vr(R.K16,4)}, {vr(R.QA,4)}, 0
v_mfma_f32_32x32x16_bf16 {vr(R.S[0]+16,16)}, {vr(R.K16,4)}, {vr(R.QB,4)}, 0
s_nop 9
v_mfma_f32_32x32x4bf16_1k {vr(R.S[0],32)}, {vr(R.K4,2)}, {vr(R.Q4,2)}, {vr(R.S[0],32)} cbsz:1 abid:{par}
s_nop 15
s_nop 3""")
        for k in range(0, 16, 2):
            a(f"v_max3_f32 v2, v2, v{R.S[0]+k}, v{R.S[0]+k+1}\nv_max3_f32 v3, v3, v{R.S[0]+16+k}, v{R.S[0]+17+k}")
    a(f"""v_add_u32 v{R.aK16}, {BLK}, v{R.aK16}
v_add_u32 v{R.aK4}, {BLK}, v{R.aK4}
s_add_u32 s{S_IT}, s{S_IT}, 1
s_cmp_lt_u32 s{S_IT}, 32
s_cbranch_scc1 L_fb_loop
v_mov_b32 v4, v2
v_mov_b32 v5, v3
s_nop 1
v_permlane32_swap_b32 v2, v4
v_permlane32_swap_b32 v3, v5
v_max_f32 v2, v2, v4
v_max_f32 v3, v3, v5""")
    for i in range(16): a(f"v_sub_f32 v{R.CZ+i}, 0, v2\nv_sub_f32 v{R.CZ+16+i}, 0, v3")
    attn_init(a, True)
    for i in range(8): a(f"v_mov_b32 v{R.S[1]+24+i}, 0")
    attn_first(a, True)
    a(f"s_mov_b32 s{S_IT}, 0")
    a.label("L_fb_attn")
    attn_body(a, True, prio=False)
    a(f"""s_add_u32 s{S_IT}, s{S_IT}, 1
s_cmp_lt_u32 s{S_IT}, 4
s_cbranch_scc1 L_fb_attn
v_smfmac_f32_32x32x32_bf16 {vr(R.OB,16)}, {vr(R.V1,4)}, {vr(R.S[1]+24,8)}, v{R.IDX}
s_waitcnt lgkmcnt(0)
s_barrier""")
    tail_dma_items(a, "f").flush(a)
    a("s_branch L_ofin")

def out_proj(a, cfg):
    WF = 40; OF = 186; ACC = 8
    NPRE = 7
    def wreads(i, b, cts=range(5)):
        for ct in cts:
            for hf in range(2):
                a(f"ds_read_b64_tr_b16 {vr(b+4*ct+2*hf,2)}, v{A_W} offset:{5120*i + 1280*hf + 32*ct}")
    a(f"""s_lshl_b32 s{T0}, s{S_HG}, 1
s_add_u32 s{T0}, s{T0}, s{S_KH}
s_lshl_b32 s{T0}, s{T0}, 2
s_add_u32 s{T0}, s{T0}, s{S_RT}
s_lshl_b32 s{T0}, s{T0}, 2
s_lshl_b32 s{T1}, s{S_RB}, 8
s_add_u32 s{T0}, s{T0}, s{T1}
s_add_u32 s{T0}, s{T0}, {W_FO}
ds_read_b64_tr_b16 v[8:9], v{A_YR}
ds_read_b64_tr_b16 v[10:11], v{A_YR} offset:512
ds_read_b64_tr_b16 v[12:13], v{A_YR} offset:8192
ds_read_b64_tr_b16 v[14:15], v{A_YR} offset:8704
v_mov_b32 v2, s{S_NONCE}
v_mov_b32 v3, 0
s_waitcnt lgkmcnt(4)
v_readfirstlane_b32 s{T2}, v5
s_waitcnt lgkmcnt(2)
ds_write_b128 v{A_YW}, v[8:11]
s_mov_b64 exec, 0xffff
s_waitcnt lgkmcnt(1)
ds_write_b128 v{A_YW}, v[12:15] offset:128
s_mov_b64 exec, -1
s_cmp_lg_u32 s{T2}, 0
s_cbranch_scc1 L_fallback
ds_read_b128 v[16:19], v{A_YB}
ds_read_b128 v[20:23], v{A_YB} offset:1024""")
    wreads(0, WF)
    a(f"""s_waitcnt vmcnt(0)
s_mov_b64 exec, 1
buffer_store_dword v2, v3, s[{SWS}:{SWS+3}], s{T0} offen sc1
s_mov_b64 exec, -1""")
    stamp(a, cfg, 15)
    a(f"""s_lshl_b32 s{T0}, s{S_J}, 6
s_lshl_b32 s{T1}, s{S_W}, 3
s_add_u32 s{T0}, s{T0}, s{T1}
s_mul_i32 s{T0}, s{T0}, 2560
s_mul_i32 s{T1}, s{S_XCD}, 160
s_add_u32 s{T0}, s{T0}, s{T1}
s_add_u32 s{T0}, s{T0}, 1280
s_waitcnt lgkmcnt(10)
buffer_store_dwordx4 v[16:19], v{A_YG0}, s[{SOUT}:{SOUT+3}], s{T0} offen
s_mov_b64 exec, 0xffff
buffer_store_dwordx4 v[20:23], v{A_YG1}, s[{SOUT}:{SOUT+3}], s{T0} offen
s_mov_b64 exec, -1""")
    for i in range(1, NPRE): wreads(i, WF + 20*i)
    a(f"""s_and_b32 s{T2}, s{S_W}, 3
s_lshl_b32 s{T0}, s{S_RB}, 2
s_add_u32 s{T0}, s{T0}, s{T2}
s_mul_i32 s{T3}, s{T0}, {16*2560}
s_mul_i32 s{T0}, s{T0}, 20480
s_mul_i32 s{T1}, s{S_KH}, 10240
s_add_u32 s{T0}, s{T0}, s{T1}
s_add_u32 s{T0}, s{T0}, {W_O}
s_add_u32 s{T1}, s{T0}, 4096
s_add_u32 s{T2}, s{T0}, 8192
s_mul_i32 s{T4}, s{S_HG}, 160
s_add_u32 s{T3}, s{T3}, s{T4}
s_mul_i32 s{T4}, s{S_W}, {OT_SZ}
s_add_u32 s{T4}, s{T4}, {L_OT}
v_add_u32 v7, s{T4}, v1""")
    stamp(a, cfg, 17)
    poll(a, "o", A_FO, 1, 4, lanes=8)
    stamp(a, cfg, 18)
    for i in range(10):
        a(f"buffer_load_dwordx4 {vr(OF+4*i,4)}, v1, s[{SWS}:{SWS+3}], s{(T0, T1, T2)[i >> 2]} offen offset:{1024*(i & 3)} sc1")
    a("s_waitcnt lgkmcnt(0)")
    for i in range(10):
        b = WF + 20*(i if i < NPRE else i - NPRE)
        a(f"s_waitcnt vmcnt({9-i})" + (f" lgkmcnt({min(15, 10*(9-i))})" if i >= NPRE else ""))
        for ct in range(5):
            c = "0" if i == 0 else vr(ACC+4*ct, 4)
            a(f"v_mfma_f32_16x16x32_bf16 {vr(ACC+4*ct,4)}, {vr(b+4*ct,4)}, {vr(OF+4*i,4)}, {c}")
        if i < 10 - NPRE: wreads(NPRE + i, b)
    stamp(a, cfg, 19)
    a(f"s_cmp_eq_u32 s{S_KH}, 0\ns_cbranch_scc0 L_px_hi")
    X = 40
    for kh in range(2):
        if kh: a.label("L_px_hi")
        send = [3, 4] if kh == 0 else [0, 1, 2]
        keep = [0, 1, 2] if kh == 0 else [3, 4]
        a("s_nop 5" if kh == 0 else "s_nop 5")
        for n, ct in enumerate(send): a(f"ds_write_b128 v{A_XW}, {vr(ACC+4*ct,4)} offset:{1024*n}")
        a("s_waitcnt lgkmcnt(0)\ns_barrier")
        for n, ct in enumerate(keep): a(f"ds_read_b128 {vr(X+4*n,4)}, v{A_XR} offset:{1024*n}")
        for n, ct in enumerate(keep):
            a(f"s_waitcnt lgkmcnt({len(keep)-1})")
            for j in range(4): a(f"v_add_f32 v{X+4*n+j}, v{X+4*n+j}, v{ACC+4*ct+j}")
            a(f"v_cvt_pk_bf16_f32 v{X+16+2*n}, v{X+4*n}, v{X+4*n+1}\nv_cvt_pk_bf16_f32 v{X+17+2*n}, v{X+4*n+2}, v{X+4*n+3}")
            a(f"ds_write_b64 v{A_PW}, {vr(X+16+2*n,2)} offset:{32*n}")
        a(f"ds_read_b128 {vr(X+24,4)}, v7")
        if kh == 0:
            a(f"""ds_read_b128 {vr(X+28,4)}, v7 offset:1024
s_waitcnt lgkmcnt(1)
buffer_store_dwordx4 {vr(X+24,4)}, v{A_PG0}, s[{SOUT}:{SOUT+3}], s{T3} offen
s_mov_b32 exec_hi, 0
s_waitcnt lgkmcnt(0)
buffer_store_dwordx4 {vr(X+28,4)}, v{A_PG1}, s[{SOUT}:{SOUT+3}], s{T3} offen
s_mov_b32 exec_hi, -1
s_branch L_px_done""")
        else:
            a(f"s_waitcnt lgkmcnt(0)\nbuffer_store_dwordx4 {vr(X+24,4)}, v{A_PG0}, s[{SOUT}:{SOUT+3}], s{T3} offen")
    a.label("L_px_done")
    if cfg.stamps:
        a("s_waitcnt vmcnt(0)")
        stamp(a, cfg, 20)
        stamp_flush(a, cfg)
        stamp_debug(a, cfg)

def build(cfg):
    a = Asm()
    prologue(a, cfg)
    srd(a, SOUT, P_OUT, 2048*1280*2)
    a(f"""s_cmp_eq_u32 s{S_W}, 0
s_cbranch_scc1 L_role0
s_cmp_lt_u32 s{S_W}, 7
s_cbranch_scc1 L_rolek""")
    role_w7(a, cfg)
    a("s_branch L_join")
    a.label("L_rolek"); role_k(a, cfg)
    a.label("L_role0"); role_w0(a, cfg)
    a.label("L_join")
    a("s_setprio 0")
    qproj(a, cfg)
    post_q(a, cfg)
    conv(a, cfg)
    attention(a, cfg)
    o_finish(a, cfg)
    out_proj(a, cfg)
    a.label("L_end")
    a("s_endpgm")
    fallback(a, cfg)
    probs = check(a.lines)
    for p in probs: print("HAZARD", p, file=sys.stderr)
    head = open("cdna_kernels/%s.s.ref" % NAME).read().split("; Override")[0]
    txt = head + f"""; @launch grid=(256,1,1) block=(512,1,1) lds=163840
.amdgcn_target "amdgcn-amd-amdhsa--gfx950"
.text
.globl {NAME}_kernel
.p2align 8
.type {NAME}_kernel,@function
{NAME}_kernel:
""" + a.text() + f""".section .rodata,"a"
.p2align 6
.amdhsa_kernel {NAME}_kernel
  .amdhsa_next_free_vgpr 256
  .amdhsa_next_free_sgpr 96
  .amdhsa_accum_offset 256
  .amdhsa_group_segment_fixed_size 0
  .amdhsa_kernarg_size 120
  .amdhsa_user_sgpr_count 2
  .amdhsa_user_sgpr_kernarg_segment_ptr 1
  .amdhsa_system_sgpr_workgroup_id_x 1
  .amdhsa_float_denorm_mode_32 3
.end_amdhsa_kernel
"""
    return txt, len(probs)

if __name__ == "__main__":
    cfg = Cfg()
    out = sys.argv[1]
    for o in sys.argv[2:]:
        if o == "stamps": cfg.stamps = True
        if o == "dbg": cfg.dbg = True
        if o.startswith("dbgstamp="): cfg.stamps = True; cfg.dbgstamp = [int(x) for x in o[9:].split(",")]
    txt, n = build(cfg)
    open(out, "w").write(txt)
    print("written", out, len(txt), "bytes; hazards:", n)
```

```python
import sys, struct, math
from asmlib import Asm, vr, sr, check
NAME = "concat_heads__grouped_kv_mqa__ssm_conv_s4d__prompt"
def f2u(x): return struct.unpack("<I", struct.pack("<f", x))[0]
def hx(x): return "0x%08x" % (x & 0xffffffff)

L_WQ = 0; L_X = 0; L_WK = 102400; L_SCR = 128000; SCR_SZ = 4352; L_UST = 141056; NWQA = 4
L_CP = 102400; CP_CH = 16640; CP_C = 4160
L_TBL = 154112; TBL_SZ = 1552; L_QST = 152320
L_UT = 81920; UT_CH = 4608; L_PART = 95744; L_QX = 0
L_YT = 102400; L_XCH = 122880; L_OT = 147456; OT_SZ = 1536; L_DEC = 159744; L_YS = 112640
BLK = 5120
W_NONCE = 0; W_FU = 0x1000; W_FKV = 0x2000; W_FY = 0x4000; W_FO = 0x6000
W_KV = 0x10000; W_UT = 0x40000; W_YT = 0x2C0000; W_O = 0x540000; W_DBG = 0x800000; W_STAMP = 0xF00000; WS_SZ = 0x1000000
P_X, P_WQ, P_WK, P_WV, P_WO, P_U, P_LAR, P_AIM, P_CR, P_CI, P_LDT, P_DSK, P_OUT, P_DBG, P_WS = range(4, 34, 2)
SA, SB, SWS, SOUT = 36, 40, 44, 48
S_W, S_XCD, S_J, S_RB, S_HG, S_NONCE, S_CH0, S_NCH = 52, 53, 54, 55, 56, 57, 58, 59
VM = 60
T0, T1, T2, T3, T4, T5, T6, T7 = range(62, 70)
S_RT, S_KH, S_FB, S_IT = 70, 71, 72, 73
EX = 74
S_LDT = 76; S_D0 = 77
S_C1, S_C2, S_C3, S_C4 = 80, 81, 82, 83
ST0 = 84
SPIN_MAX = 100000
SLEEP = 1
QPRIO = 0; KPRIO = 1

class Cfg:
    dbg = False; stamps = False; dbgstamp = None; stop_after = None; nonce_update = True

def srd(a, base, ptr, size):
    a(f"s_mov_b32 s{base}, s{ptr}\ns_mov_b32 s{base+1}, s{ptr+1}\ns_mov_b32 s{base+2}, {size}\ns_mov_b32 s{base+3}, 0x00020000")

_stamp_n = [0]
def stamp(a, cfg, idx, cyc=False):
    if not cfg.stamps or cyc: return
    a(f"""s_memrealtime s[{ST0}:{ST0+1}]
s_memtime s[86:87]
s_waitcnt lgkmcnt(0)
v_writelane_b32 v255, s{ST0}, {idx}
v_writelane_b32 v255, s86, {idx+32}""")
def stamp_flush(a, cfg):
    if not cfg.stamps: return
    a(f"""s_lshl_b32 s86, s2, 3
s_add_u32 s86, s86, s{S_W}
s_lshl_b32 s86, s86, 8
s_add_u32 s86, s86, {W_STAMP}
v_lshlrev_b32 v254, 2, v0
buffer_store_dword v255, v254, s[{SWS}:{SWS+3}], s86 offen""")

SEL = [0, 24, 1, 2, 4, 8, 10, 11, 12, 13, 14, 15, 18, 19, 20]
def stamp_debug(a, cfg):
    if not cfg.dbgstamp: return
    a(f"""s_cmp_lg_u32 s2, {cfg.dbgstamp[0]}
s_cbranch_scc1 L_dbgst_done
s_cmp_lg_u32 s{S_W}, {cfg.dbgstamp[1]}
s_cbranch_scc1 L_dbgst_done
v_readlane_b32 s86, v255, 21
v_mov_b32 v254, 0""")
    for k, i in enumerate(SEL):
        a(f"v_readlane_b32 s87, v255, {i}\ns_nop 3\ns_sub_u32 s87, s87, s86\nv_writelane_b32 v254, s87, {k}")
    srd(a, SA, P_DBG, 256)
    a(f"""v_lshlrev_b32 v253, 2, v0
s_mov_b64 exec, 0xffff
buffer_store_dword v254, v253, s[{SA}:{SA+3}], 0 offen
s_mov_b64 exec, -1""")
    a.label("L_dbgst_done")

def dump_lds(a, cfg, tag, lo, n8):
    if not cfg.dbg: return
    a(f"""s_cmp_ge_u32 s2, 4
s_cbranch_scc1 L_dump_{tag}
s_lshl_b32 s86, s{S_W}, 10
s_mul_i32 s87, s2, {n8*8192}
s_add_u32 s87, s87, {W_DBG}
s_add_u32 s87, s87, s86
s_add_u32 s86, s86, {lo}
v_add_u32 v250, s86, v1
s_mov_b32 s88, 0""")
    a.label(f"L_dumpl_{tag}")
    a(f"""ds_read_b128 v[252:255], v250
s_waitcnt lgkmcnt(0)
buffer_store_dwordx4 v[252:255], v1, s[{SWS}:{SWS+3}], s87 offen
s_waitcnt vmcnt(0)
v_add_u32 v250, 8192, v250
s_add_u32 s87, s87, 8192
s_add_u32 s88, s88, 1
s_cmp_lt_u32 s88, {n8}
s_cbranch_scc1 L_dumpl_{tag}""")
    a.label(f"L_dump_{tag}")

def poll(a, tag, vaddr, nload, vt, lanes=64):
    sfx = {1: "dword", 2: "dwordx2", 4: "dwordx4"}[nload]
    if lanes < 64: a(f"s_mov_b32 exec_lo, {hx((1 << lanes) - 1)}\ns_mov_b32 exec_hi, 0")
    a(f"s_mov_b32 s{T7}, 0")
    a.label(f"L_poll_{tag}")
    a(f"buffer_load_{sfx} {vr(vt, nload)}, v{vaddr}, s[{SWS}:{SWS+3}], 0 offen sc1")
    a("s_waitcnt vmcnt(0)")
    for i in range(nload): a(f"v_xor_b32 v{vt+i}, s{S_NONCE}, v{vt+i}")
    if nload == 2: a(f"v_or_b32 v{vt}, v{vt}, v{vt+1}")
    if nload == 4: a(f"v_or_b32 v{vt}, v{vt}, v{vt+1}\nv_or3_b32 v{vt}, v{vt}, v{vt+2}, v{vt+3}")
    a(f"""v_cmp_ne_u32 vcc, 0, v{vt}
s_add_u32 s{T7}, s{T7}, 1
s_nop 2
s_cmp_eq_u64 vcc, 0
s_cbranch_scc1 L_polld_{tag}
s_cmp_lt_u32 s{T7}, {SPIN_MAX}
s_cbranch_scc1 L_poll_{tag}""")
    a.label(f"L_polld_{tag}")
    if lanes < 64: a("s_mov_b64 exec, -1")

def div10_offsets(a, vdst, cbase_s, cbase_imm, vt, perm):
    if cbase_s is not None: a(f"v_add_u32 v{vt}, s{cbase_s}, v0")
    else: a(f"v_add_u32 v{vt}, {cbase_imm}, v0")
    a(f"""v_mul_u32_u24 v{vt+1}, 6554, v{vt}
v_lshrrev_b32 v{vt+1}, 16, v{vt+1}
v_mul_u32_u24 v{vt+2}, 10, v{vt+1}
v_sub_u32 v{vt}, v{vt}, v{vt+2}""")
    if perm:
        a(f"""v_lshrrev_b32 v{vt+2}, 2, v{vt+1}
v_lshrrev_b32 v{vt+3}, 3, v{vt+1}
v_xor_b32 v{vt+2}, v{vt+2}, v{vt+3}
v_and_b32 v{vt+2}, 1, v{vt+2}
v_mul_u32_u24 v{vt+2}, 12, v{vt+2}
v_xor_b32 v{vt+1}, v{vt+1}, v{vt+2}""")
    a(f"""v_mul_u32_u24 v{vt+1}, 1280, v{vt+1}
v_lshl_add_u32 v{vdst}, v{vt}, 4, v{vt+1}""")

XF = 16
VX = 250
WT = 245
C_A, C_B, C_PW, C_PR, C_UG, C_UL = 242, 243, 244, 251, 252, 253
Q_W, A_WQ, V_NON, Q_R, Q_R4 = 13, 14, 15, 224, 225
E_W, E_R = 248, 249
L_EV = 162560
EV_CRIT, EV_X, EV_FR, EV_WQ, EV_TBL, EV_WQA, EV_EXP, EV_KV = 0, 1, 2, 3, 7, 8, 9, 10
X_F0, X_F1 = 246, 247
EXI = 186
def ev_signal(a, e):
    a(f"s_mov_b64 exec, 1\nds_write_b32 v{E_W}, v{V_NON} offset:{32*e}\ns_mov_b64 exec, -1")
_evn = [0]
def ev_wait(a, e, mask):
    _evn[0] += 1; n = _evn[0]
    a(f"s_mov_b32 s{T7}, 0")
    a.label(f"L_ev_{n}")
    a(f"""ds_read_b32 v2, v{E_R} offset:{32*e}
s_add_u32 s{T7}, s{T7}, 1
s_waitcnt lgkmcnt(0)
v_cmp_eq_u32 vcc, v2, v{V_NON}
s_cmp_ge_u32 s{T7}, {SPIN_MAX}
s_cbranch_scc1 L_evd_{n}
s_nop 1
s_and_b32 s{T0}, vcc_lo, {mask}
s_cmp_eq_u32 s{T0}, {mask}
s_cbranch_scc1 L_evd_{n}
s_sleep {SLEEP}
s_branch L_ev_{n}""")
    a.label(f"L_evd_{n}")

def prologue(a, cfg):
    a(f"""s_cmp_ge_u32 s2, 256
s_cbranch_scc1 L_end""")
    stamp(a, cfg, 21)
    a(f"""s_load_dwordx16 s[4:19], s[0:1], 0
s_load_dwordx2 s[32:33], s[0:1], 112
s_load_dwordx8 s[20:27], s[0:1], 64
s_load_dwordx4 s[28:31], s[0:1], 96
v_lshrrev_b32 v1, 6, v0
v_and_b32 v0, 63, v0
s_and_b32 s{S_XCD}, s2, 7
v_readfirstlane_b32 s{S_W}, v1
s_lshr_b32 s{S_J}, s2, 3
s_lshr_b32 s{T0}, s{S_J}, 3
s_lshl_b32 s{S_RB}, s{S_XCD}, 2
s_add_u32 s{S_RB}, s{S_RB}, s{T0}
s_and_b32 s{S_HG}, s{S_J}, 7
v_lshlrev_b32 v1, 4, v0
v_lshrrev_b32 v2, 3, v0
v_and_b32 v3, 7, v0
v_xor_b32 v3, v3, v2
v_mul_u32_u24 v2, 1280, v2
v_lshl_add_u32 v{VX}, v3, 4, v2
v_mov_b32 v{WT}, 0
s_mul_i32 s{T0}, s{S_J}, 3
s_lshl_b32 s{T1}, s{S_J}, 1
s_add_u32 s{T1}, s{T1}, 16
s_cmp_lt_u32 s{S_J}, 16
s_cselect_b32 s{T0}, s{T0}, s{T1}
s_cselect_b32 s{S_NCH}, 3, 2
s_mul_i32 s{S_CH0}, s{S_XCD}, 80
s_add_u32 s{S_CH0}, s{S_CH0}, s{T0}
s_lshr_b32 s{T0}, s{S_HG}, 1
s_add_u32 s{S_RT}, s{T0}, s{S_W}
s_and_b32 s{S_RT}, s{S_RT}, 3
s_lshr_b32 s{S_KH}, s{S_W}, 2
s_mov_b32 s{S_FB}, 0
s_mov_b32 s{VM}, 0x000fffff
s_mov_b32 s{VM+1}, 0x000fffff
s_mul_i32 s{T5}, s{S_RB}, {64*1280}""")

def x_loop(a, tag, n_s, n_imm):
    a(f"s_mov_b32 s{T2}, {n_imm}" if n_s is None else f"s_mov_b32 s{T2}, s{n_s}")
    a.label(f"L_xl_{tag}")
    a(f"""s_mul_i32 s{T0}, s{T3}, {8*1280}
s_lshl_b32 s{T1}, s{T4}, 7
s_add_u32 s{T0}, s{T0}, s{T1}
s_lshl_b32 s{T1}, s{T4}, 3
s_add_u32 s{T1}, s{T1}, s{T3}
s_lshl_b32 m0, s{T1}, 10
s_add_u32 s{T0}, s{T0}, s{T5}
buffer_load_dwordx4 v{VX}, s[{SA}:{SA+3}], s{T0} offen lds
s_add_u32 s{T4}, s{T4}, 1
s_cmp_eq_u32 s{T4}, 10
s_cselect_b32 s{T4}, 0, s{T4}
s_addc_u32 s{T3}, s{T3}, 0
s_and_b32 s{T3}, s{T3}, 7
s_sub_u32 s{T2}, s{T2}, 1
s_cmp_lg_u32 s{T2}, 0
s_cbranch_scc1 L_xl_{tag}""")

def crit_loads(a):
    a(f"""s_and_b32 s{T3}, s{S_HG}, 6
s_and_b32 s{T4}, s{S_W}, 1
s_add_u32 s{T3}, s{T3}, s{T4}
s_lshr_b32 s{T4}, s{S_W}, 1
s_mul_i32 s{T0}, s{T3}, {8*1280}
s_lshl_b32 s{T1}, s{T4}, 7
s_add_u32 s{T0}, s{T0}, s{T1}
s_add_u32 s{T0}, s{T0}, s{T5}
s_lshl_b32 s{T1}, s{T4}, 3
s_add_u32 s{T1}, s{T1}, s{T3}
s_lshl_b32 m0, s{T1}, 10
s_bitcmp1_b32 s{S_HG}, 0""")
    for i in range(5):
        a(f"buffer_load_dwordx4 v{VX}, s[{SA}:{SA+3}], s{T0} offen lds")
        if i < 4: a(f"s_add_u32 m0, m0, 16384\ns_add_u32 s{T0}, s{T0}, 256")
    a(f"""s_bitcmp1_b32 s{S_HG}, 0
s_cselect_b32 s{SB}, s{P_WV}, s{P_WK}
s_cselect_b32 s{SB+1}, s{P_WV+1}, s{P_WK+1}
s_mov_b32 s{SB+2}, 25600
s_mov_b32 s{SB+3}, 0x00020000
s_lshl_b32 s{T0}, s{S_W}, 10
s_add_u32 m0, s{T0}, {L_WK}
s_nop 0""")
    for i in range(7):
        if i == 6: a(f"s_cmp_lg_u32 s{S_W}, 0\ns_cbranch_scc1 L_wk_done")
        a(f"buffer_load_dwordx4 v1, s[{SB}:{SB+3}], s{T0} offen lds")
        if i < 6: a(f"s_add_u32 m0, m0, 4096\ns_add_u32 s{T0}, s{T0}, 4096")
    a.label("L_wk_done")

REST = {1: (0, 10), 2: (10, 10), 3: (20, 10), 4: (30, 6), 5: (36, 8), 6: (44, 8), 7: (52, 8)}
def rest_x(a, tag):
    q0 = sum(REST[w][0] << (8*(w-4)) for w in range(4, 8)); n = sum(REST[w][1] << (8*(w-4)) for w in range(4, 8))
    if tag == "lo":
        a(f"s_sub_u32 s{T3}, s{S_W}, 1\ns_mov_b32 s{T4}, 0\ns_mov_b32 s{T6}, 10")
    else:
        a(f"""s_sub_u32 s{T2}, s{S_W}, 4
s_lshl_b32 s{T2}, s{T2}, 3
s_lshr_b32 s{T4}, {hx(q0)}, s{T2}
s_and_b32 s{T4}, s{T4}, 255
s_lshr_b32 s{T6}, {hx(n)}, s{T2}
s_and_b32 s{T6}, s{T6}, 255
s_mul_i32 s{T3}, s{T4}, 205
s_lshr_b32 s{T3}, s{T3}, 11
s_mul_i32 s{T1}, s{T3}, 10
s_sub_u32 s{T4}, s{T4}, s{T1}""")
    a(f"""s_and_b32 s{T1}, s{S_HG}, 6
s_add_u32 s{T3}, s{T3}, s{T1}
s_add_u32 s{T3}, s{T3}, 2
s_and_b32 s{T3}, s{T3}, 7""")
    x_loop(a, tag, T6, None)

def wq_items(a, first, n):
    srd(a, SB, P_WQ, 640*1280)
    a(f"""s_lshl_b32 s{S_DM}, s{S_W}, 10
s_add_u32 s{S_DM}, s{S_DM}, {first*5120}
s_mul_i32 s{S_DO}, s{S_HG}, 160
s_add_u32 s{S_DO}, s{S_DO}, {first*40960}""")
    return Dma([f"s_mov_b32 m0, s{S_DM}\ns_add_u32 s{S_DM}, s{S_DM}, 5120\nbuffer_load_dwordx4 v{WT}, s[{SB}:{SB+3}], s{S_DO} offen lds\ns_add_u32 s{S_DO}, s{S_DO}, 40960"] * n)

def typed_offset(a):
    a(f"s_lshl_b32 s{T2}, s{S_W}, 6")
    div10_offsets(a, WT, T2, None, 2, True)

A_YR, A_YW, A_YB, A_YG0, A_YG1, A_W, A_OW, A_OB, A_OG, A_XW, A_XR, A_PW, A_PG0, A_PG1, A_YD, A_FO = range(226, 242)
def w_tr_addr(a, v, t):
    a(f"""v_lshrrev_b32 v{v}, 5, v0
v_lshlrev_b32 v{v}, 4, v{v}
v_bfe_u32 v{t}, v0, 4, 1
v_lshl_add_u32 v{v}, v{t}, 2, v{v}
v_bfe_u32 v{t}, v0, 2, 2
v_add_u32 v{v}, v{v}, v{t}
v_mul_u32_u24 v{v}, 160, v{v}
v_and_b32 v{t}, 3, v0
v_lshl_add_u32 v{v}, v{t}, 3, v{v}
s_mul_i32 s{T0}, s{S_KH}, 51200
v_add_u32 v{v}, s{T0}, v{v}""")

CONV_TAB = {0: (2, 0, 4), 1: (2, 4, 4), 2: (0, 0, 3), 3: (0, 3, 3), 4: (0, 6, 2), 5: (1, 6, 2), 6: (1, 0, 3), 7: (1, 3, 3)}
S_CCH, S_CCN = 95, 34
def conv_addrs(a):
    chp = sum(CONV_TAB[w][0] << (4*w) for w in range(8)); r0p = sum(CONV_TAB[w][1] << (4*w) for w in range(8)); cnp = sum(CONV_TAB[w][2] << (4*w) for w in range(8))
    a(f"""v_and_b32 v2, 15, v0
v_lshrrev_b32 v3, 4, v0
s_lshl_b32 s{T0}, s{S_W}, 2
s_lshr_b32 s{S_CCH}, {hx(chp)}, s{T0}
s_and_b32 s{S_CCH}, s{S_CCH}, 15
s_lshr_b32 s{T2}, {hx(r0p)}, s{T0}
s_and_b32 s{T2}, s{T2}, 15
s_lshr_b32 s{S_CCN}, {hx(cnp)}, s{T0}
s_and_b32 s{S_CCN}, s{S_CCN}, 15
s_mul_i32 s{T4}, s{S_CCH}, {CP_CH}
s_lshl_b32 s{T5}, s{T2}, 6
s_sub_u32 s{T4}, s{T4}, s{T5}
s_add_u32 s{T4}, s{T4}, {L_CP + 2*2032 - 512*7 - 192}
s_mul_i32 s{T6}, s{S_CCH}, {UT_CH}
s_sub_u32 s{T6}, s{T6}, s{T5}
s_add_u32 s{T6}, s{T6}, {L_UT + 480 - 192}
v_sub_u32 v4, 0, v2
v_and_b32 v4, 3, v4
v_add_u32 v5, v2, v4
v_mul_u32_u24 v4, {CP_C}, v4
v_lshlrev_b32 v5, 1, v5
v_sub_u32 v4, v4, v5
v_lshl_add_u32 v4, v3, 4, v4
v_add_u32 v{C_A}, s{T4}, v4
v_lshlrev_b32 v5, 5, v2
v_lshl_add_u32 v5, v3, 4, v5
v_add_u32 v{C_B}, s{T6}, v5
v_lshl_add_u32 v4, v3, 2, v2
v_and_b32 v4, 15, v4
v_lshl_add_u32 v4, v3, 4, v4
s_lshl_b32 s{T0}, s{S_W}, 13
s_add_u32 s{T0}, s{T0}, {L_PART}
v_lshl_add_u32 v{C_PW}, v4, 4, s{T0}
v_lshrrev_b32 v4, 2, v0
v_and_b32 v5, 3, v0
v_lshl_add_u32 v4, v5, 2, v4
v_and_b32 v4, 15, v4
v_lshl_add_u32 v4, v5, 4, v4
s_lshl_b32 s{T0}, s{S_W}, 10
s_add_u32 s{T0}, s{T0}, {L_PART}
v_lshl_add_u32 v{C_PR}, v4, 4, s{T0}
s_lshl_b32 s{T0}, s{S_W}, 9
v_lshl_add_u32 v{C_UG}, v0, 3, s{T0}
v_add_u32 v{C_UL}, {L_UT + 512}, v{C_UG}
s_and_b32 s{T0}, s{S_W}, 3
s_mul_i32 s{T1}, s{T0}, 2560
s_add_u32 s{T1}, s{T1}, {L_QST}
v_mul_u32_u24 v2, 160, v2
v_add_u32 v2, s{T1}, v2
v_and_b32 v3, 1, v3
v_mul_u32_u24 v3, 40, v3
v_add_u32 v2, v2, v3
v_lshrrev_b32 v3, 5, v0
v_lshl_add_u32 v{Q_R}, v3, 4, v2
v_mul_u32_u24 v3, 80, v3
v_add_u32 v{Q_R4}, v2, v3
s_lshl_b32 s{T0}, s{S_W}, 2
s_add_u32 s{T0}, s{T0}, {L_EV}
v_mov_b32 v{E_W}, s{T0}
v_and_b32 v2, 7, v0
v_lshlrev_b32 v2, 2, v2
v_add_u32 v{E_R}, {L_EV}, v2""")

def q_addrs(a):
    typed_offset(a)
    a(f"""v_lshrrev_b32 v2, 5, v0
v_lshlrev_b32 v2, 4, v2
v_bfe_u32 v3, v0, 4, 1
v_lshl_add_u32 v2, v3, 2, v2
v_bfe_u32 v3, v0, 2, 2
v_add_u32 v2, v2, v3
v_mul_u32_u24 v2, 160, v2
v_and_b32 v3, 3, v0
v_lshl_add_u32 v2, v3, 3, v2
s_bitcmp0_b32 s{S_W}, 0
s_cselect_b32 s{T1}, 96, 0
v_add_u32 v{A_WQ}, s{T1}, v2
v_and_b32 v2, 15, v0
v_lshrrev_b32 v3, 4, v0
v_and_b32 v4, 7, v2
v_xor_b32 v4, v3, v4
v_lshlrev_b32 v5, 7, v2
v_lshl_add_u32 v{X_F0}, v4, 4, v5
v_xor_b32 v{X_F1}, 64, v{X_F0}
s_lshr_b32 s{T0}, s{S_W}, 1
s_mul_i32 s{T0}, s{T0}, 5120
s_add_u32 s{T0}, s{T0}, s{T1}
s_add_u32 s{T0}, s{T0}, {L_QST}
v_mul_u32_u24 v2, 160, v2
v_lshl_add_u32 v2, v3, 3, v2
v_add_u32 v{Q_W}, s{T0}, v2""")

ORDER = [16, 17, 18, 19] + list(range(16))
def xf(i, s):
    n = ORDER.index(s)
    if i == 0: return XF + 4*n
    return 144 + 4*n if n < 4 else (96 + 4*(n - 4) if n < 16 else 160 + 4*(n - 16))
def x_frags(a, i, kv=False):
    a(f"s_lshr_b32 s{T0}, s{S_HG}, 1")
    if not kv:
        a(f"""s_and_b32 s{T1}, s{S_W}, 2
s_add_u32 s{T0}, s{T0}, s{T1}
s_add_u32 s{T0}, s{T0}, {i}
s_and_b32 s{T0}, s{T0}, 3""")
    a(f"""s_lshl_b32 s{T0}, s{T0}, 11
s_add_u32 s{T1}, s{T0}, 40960
v_add_u32 v2, s{T0}, v{X_F0}
v_add_u32 v3, s{T0}, v{X_F1}
v_add_u32 v4, s{T1}, v{X_F0}
v_add_u32 v5, s{T1}, v{X_F1}""")
    for s in range(20):
        a(f"ds_read_b128 {vr(xf(i, s),4)}, v{2 + (s & 1) + 2*(s >= 10)} offset:{L_X + 8192*((s % 10) >> 1)}")

def finish_nonce(a):
    a(f"s_waitcnt lgkmcnt(0)\ns_mul_i32 s{S_NONCE}, s{S_NONCE}, 0x9E3779B1\ns_add_u32 s{S_NONCE}, s{S_NONCE}, 0x7F4A7C15\nv_mov_b32 v{V_NON}, s{S_NONCE}")

def kv_proj(a, cfg):
    WR = 176
    ACC = 200
    x_frags(a, 0, kv=True)
    def reads(s):
        b = WR + 4*(s % 4)
        for hf in range(2):
            a(f"ds_read_b64_tr_b16 {vr(b+2*hf,2)}, v6 offset:{1280*s + 160*hf}")
    a(f"s_bitcmp1_b32 s{S_HG}, 0\ns_cbranch_scc1 L_kv_v")
    for kind in range(2):
        if kind: a.label("L_kv_v")
        reads(0); reads(1); reads(2)
        for s in range(20):
            if s + 3 < 20: reads(s + 3)
            a(f"s_waitcnt lgkmcnt({2*min(3, 19 - s)})")
            b = WR + 4*(s % 4)
            A, B = vr(b, 4), vr(xf(0, s), 4)
            if kind: A, B = B, A
            a(f"v_mfma_f32_16x16x32_bf16 {vr(ACC,4)}, {A}, {B}, {vr(ACC,4) if s else 0}")
        ev_signal(a, EV_TBL)
        a(f"""s_mul_i32 s{T0}, s{S_RB}, {BLK}
s_add_u32 s{T0}, s{T0}, {W_KV}
s_lshr_b32 s{T3}, s{S_HG}, 1
v_and_b32 v3, 15, v0
v_lshrrev_b32 v4, 4, v0""")
        if kind == 0:
            a(f"""s_lshr_b32 s{T1}, s{T3}, 1
s_lshl_b32 s{T1}, s{T1}, 10
s_and_b32 s{T2}, s{T3}, 1
s_lshl_b32 s{T2}, s{T2}, 8
s_add_u32 s{T1}, s{T1}, s{T2}
s_add_u32 s{T1}, s{T1}, s{T0}
v_lshrrev_b32 v5, 1, v4
v_lshlrev_b32 v5, 9, v5
v_lshl_add_u32 v5, v3, 4, v5
v_and_b32 v6, 1, v4
v_lshl_add_u32 v5, v6, 3, v5
s_lshl_b32 s{T2}, s{T3}, 7
s_add_u32 s{T2}, s{T2}, s{T0}
s_add_u32 s{T2}, s{T2}, 2048
v_lshlrev_b32 v6, 3, v3
v_cmp_gt_u32 vcc, 16, v0""")
        else:
            a(f"""s_mul_i32 s{T1}, s{T3}, 640
s_add_u32 s{T1}, s{T1}, s{T0}
s_add_u32 s{T1}, s{T1}, 2560
s_add_u32 s{T2}, s{T1}, 256
v_lshrrev_b32 v5, 1, v4
v_mul_u32_u24 v5, 320, v5
v_lshl_add_u32 v5, v3, 4, v5
v_and_b32 v6, 1, v4
v_lshl_add_u32 v5, v6, 3, v5
v_mov_b32 v6, v5
v_cmp_gt_u32 vcc, 4, v3""")
        if kind == 0: a("s_branch L_kv_st")
    a.label("L_kv_st")
    a(f"""v_cvt_pk_bf16_f32 v208, v{ACC}, v{ACC+1}
v_cvt_pk_bf16_f32 v209, v{ACC+2}, v{ACC+3}
s_cmp_lg_u32 s{S_W}, 0
s_cbranch_scc1 L_kv_st1
buffer_store_dwordx2 v[208:209], v5, s[{SWS}:{SWS+3}], s{T1} offen sc1
s_branch L_kv_done""")
    a.label("L_kv_st1")
    a(f"""s_and_saveexec_b64 s[{EX}:{EX+1}], vcc
buffer_store_dwordx2 v[208:209], v6, s[{SWS}:{SWS+3}], s{T2} offen sc1
s_mov_b64 exec, s[{EX}:{EX+1}]""")
    a.label("L_kv_done")

def cmul(a, d, x, y, t):
    a(f"v_pk_mul_f32 {vr(t,2)}, {vr(x,2)}, {vr(y,2)} op_sel:[0,0] op_sel_hi:[0,1]")
    return f"v_pk_fma_f32 {vr(d,2)}, {vr(x,2)}, {vr(y,2)}, {vr(t,2)} op_sel:[1,1,0] op_sel_hi:[1,0,1] neg_lo:[1,0,0]"
def cmul_multi(a, items, tmps):
    for k in range(0, len(items), len(tmps)):
        grp = items[k:k+len(tmps)]
        second = [cmul(a, d, x, y, t) for (d, x, y), t in zip(grp, tmps)]
        for s in second: a(s)

LOG2E = 1.4426950408889634
def acc_exp(a, d, x, t):
    a(f"""v_mul_f32 v{t}, s{S_C1}, {x}
v_fma_f32 v{t+1}, {x}, s{S_C1}, -v{t}
v_fma_f32 v{t+1}, {x}, s{S_C2}, v{t+1}
v_exp_f32 v{t}, v{t}
v_fma_f32 v{t+1}, v{t+1}, s{S_C3}, 1.0
v_mul_f32 v{d}, v{t}, v{t+1}""")

KP = 56
def kgen_loads(a):
    a(f"""s_sub_u32 s{T2}, s{S_W}, 5
s_add_u32 s{T2}, s{T2}, s{S_CH0}
s_min_u32 s{T2}, s{T2}, 639
s_lshl_b32 s{T3}, s{T2}, 8
v_lshlrev_b32 v2, 2, v0""")
    for i, p in enumerate((P_LAR, P_AIM, P_CR, P_CI)):
        srd(a, SB, p, 640*256)
        a(f"buffer_load_dword v{KP+i}, v2, s[{SB}:{SB+3}], s{T3} offen")
    a(f"""s_lshl_b32 s{T3}, s{T2}, 1
s_and_b32 s{T3}, s{T3}, 0xfffffffc
s_load_dword s{S_LDT}, s[{P_LDT}:{P_LDT+1}], s{T3}
s_and_b32 s35, s{T2}, 1
s_lshl_b32 s35, s35, 4""")

K_ACC = 170; K_DT = 182; K_AW = 8; K_AR = 12
def kgen_pre(a):
    hi = f2u(LOG2E); lo = f2u(LOG2E - struct.unpack("<f", struct.pack("<I", hi))[0])
    a(f"""s_mov_b32 s{S_C1}, {hx(hi)}
s_mov_b32 s{S_C2}, {hx(lo)}
s_mov_b32 s{S_C3}, {hx(f2u(math.log(2)))}
s_mov_b32 s{S_C4}, {hx(f2u(1/(2*math.pi)))}
s_sub_u32 s{T2}, s{S_W}, 5
s_mul_i32 s{T3}, s{T2}, {SCR_SZ}
s_add_u32 s{T3}, s{T3}, {L_SCR}
v_lshl_add_u32 v{K_AW}, v0, 2, s{T3}
v_add_u32 v{K_AW+1}, 1088, v{K_AW}
v_add_u32 v{K_AW+2}, 2176, v{K_AW}
v_add_u32 v{K_AW+3}, 3264, v{K_AW}
v_and_b32 v4, 15, v0
v_mul_u32_u24 v4, 272, v4
v_lshrrev_b32 v5, 4, v0
v_lshl_add_u32 v4, v5, 4, v4
v_add_u32 v{K_AR}, s{T3}, v4
s_lshr_b32 s{S_LDT}, s{S_LDT}, s35
s_lshl_b32 s{S_LDT}, s{S_LDT}, 16
v_mov_b32 v6, s{S_LDT}""")
    acc_exp(a, K_DT, "v6", 4)
    a(f"v_cvt_pk_bf16_f32 v{K_DT}, v{K_DT}, v{K_DT}\nv_lshlrev_b32 v{K_DT}, 16, v{K_DT}")

def kgen_round(a, rnd, hook=None):
    W1, W2, V8, V2, WW = 60, 62, 64, 66, 68
    G = 70
    FA, FB = 86, 88
    TM = [90, 92, 94, 96]
    PK = 98
    BF = 104; AF = 120; ACC = K_ACC
    DT, ER, TH = K_DT, K_DT+1, K_DT+2
    for i in range(4): a(f"v_lshlrev_b32 v{PK+i}, 16, v{KP+i}" if rnd == 0 else f"v_and_b32 v{PK+i}, 0xffff0000, v{KP+i}")
    acc_exp(a, ER, f"v{PK}", 4)
    a(f"""v_cvt_pk_bf16_f32 v{ER}, v{ER}, v{ER}
v_mul_f32 v{TH}, v{PK+1}, v{DT}
v_lshlrev_b32 v{ER}, 16, v{ER}
v_mul_f32 v{G}, v{PK+2}, v{DT}
v_mul_f32 v{ER}, v{ER}, v{DT}
v_mul_f32 v{G+1}, v{PK+3}, v{DT}
v_mul_f32 v{ER}, s{S_C1}, -v{ER}
v_mul_f32 v{TH}, s{S_C4}, v{TH}
v_add_f32 v{G}, v{G}, v{G}
v_add_f32 v{G+1}, v{G+1}, v{G+1}
v_mul_f32 v{TM[1]}, 0x41000000, v{ER}
v_mul_f32 v{TM[1]+1}, 0x41000000, v{TH}
v_mul_f32 v{TM[2]}, 0x43000000, v{ER}
v_mul_f32 v{TM[2]+1}, 0x43000000, v{TH}
v_fract_f32 v{TM[0]+1}, v{TH}
v_fract_f32 v{TM[1]+1}, v{TM[1]+1}
v_fract_f32 v{TM[2]+1}, v{TM[2]+1}
v_exp_f32 v{TM[0]}, v{ER}
v_exp_f32 v{TM[1]}, v{TM[1]}
v_exp_f32 v{TM[2]}, v{TM[2]}""")
    for k, dst in enumerate((W1, V8, WW)): a(f"v_cos_f32 v{dst}, v{TM[k]+1}\nv_sin_f32 v{dst+1}, v{TM[k]+1}")
    a(f"v_mov_b32 v{PK}, 0x3f80")
    for k, dst in enumerate((W1, V8, WW)): a(f"v_pk_mul_f32 {vr(dst,2)}, {vr(dst,2)}, {vr(TM[k],2)} op_sel_hi:[1,0]")
    pk = [1]; pend = [(0, PK)]
    def flush():
        if pend:
            row, r = pend.pop()
            a(f"ds_write_b32 v{K_AW + (row >> 2)}, v{r} offset:{272*(row & 3)}")
    def put(row, src, neg):
        r = PK + (pk[0] % 6); pk[0] += 1
        a(f"v_cvt_pk_bf16_f32 v{r}, v{src}, {'-' if neg else ''}v{src+1}")
        if pend and pend[0][0] >> 2 == row >> 2:
            row0, r0 = pend.pop()
            a(f"ds_write2_b32 v{K_AW + (row >> 2)}, v{r0}, v{r} offset0:{68*(row0 & 3)} offset1:{68*(row & 3)}")
        else:
            flush(); pend.append((row, r))
    cmul_multi(a, [(W2, W1, W1), (V2, V8, V8), (G+2, G, W1)], TM)
    put(1, V8, True); put(2, V2, True)
    fa, fb = V8, V2
    for k in range(7):
        items = [(FA, fa, V2)]
        if k < 6: items.append((FB, fb, V2))
        if k < 3: items += [(G+4+4*k, G+4*k, W2), (G+6+4*k, G+2+4*k, W2)]
        cmul_multi(a, items, TM)
        put(3+2*k, FA, True)
        if k < 6: put(4+2*k, FB, True)
        fa, fb = FA, FB
    flush()
    for ks in range(4): a(f"ds_read_b128 {vr(BF+4*ks,4)}, v{K_AR} offset:{64*ks}")
    if hook: hook()
    def tile(T):
        flush()
        for ks in range(4): a(f"ds_read_b128 {vr(AF+4*ks,4)}, v{K_AR} offset:{64*ks}")
    def mm(T):
        for ks in range(4):
            a(f"s_waitcnt lgkmcnt({3-ks})\nv_mfma_f32_16x16x32_bf16 {vr(ACC+4*T,4)}, {vr(AF+4*ks,4)}, {vr(BF+4*ks,4)}, {vr(ACC+4*T,4) if ks or rnd else 0}")
    for g in range(8): put(g, G+2*g, False)
    cmul_multi(a, [(G+2*g, G+2*g, WW) for g in range(8)], TM)
    for g in range(8): put(8+g, G+2*g, False)
    tile(0)
    ev = [0, 2, 4, 6]
    cmul_multi(a, [(G+2*g, G+2*g, WW) for g in ev], TM)
    mm(0)
    for i, g in enumerate(ev): put(i, G+2*g, False)
    cmul_multi(a, [(G+2*g, G+2*g, WW) for g in ev], TM)
    for i, g in enumerate(ev): put(4+i, G+2*g, False)
    for al in range(4):
        cmul_multi(a, [(G, G, WW), (G+8, G+8, WW)], TM)
        put(8+2*al, G, False); put(9+2*al, G+8, False)
    tile(1)
    cmul_multi(a, [(G, G, WW), (W2, WW, WW)], TM)
    mm(1)
    cmul_multi(a, [(G+2, G, WW)], TM)
    put(0, G, False); put(1, G+2, False)
    for k in range(1, 4):
        cmul_multi(a, [(G, G, W2), (G+2, G+2, W2)], TM)
        put(2*k, G, False); put(2*k+1, G+2, False)
    cmul_multi(a, [(G, G, W2)], TM)
    put(8, G, False)
    tile(2)
    mm(2)

def kgen_table(a):
    PK = 98; ACC = K_ACC
    a(f"""s_sub_u32 s{T2}, s{S_W}, 5
s_mul_i32 s{T3}, s{T2}, {TBL_SZ}
s_add_u32 s{T3}, s{T3}, {L_TBL}
v_and_b32 v4, 15, v0
v_lshrrev_b32 v5, 4, v0
v_lshrrev_b32 v6, 1, v5
v_and_b32 v7, 1, v5
v_lshlrev_b32 v8, 8, v6
v_lshl_add_u32 v8, v7, 3, v8
v_lshl_add_u32 v8, v4, 4, v8
v_add_u32 v8, s{T3}, v8
v_lshlrev_b32 v9, 7, v5
v_lshl_add_u32 v9, v4, 3, v9
v_add_u32 v10, 4, v9
v_lshlrev_b32 v11, 7, v7
v_lshl_add_u32 v11, v4, 2, v11
v_add_u32 v11, 256, v11
v_add_u32 v12, 64, v11
v_cmp_lt_u32 vcc, 1, v5
v_lshlrev_b32 v13, 7, v5
v_lshl_add_u32 v13, v4, 1, v13
v_cndmask_b32 v9, v9, v11, vcc
v_cndmask_b32 v10, v10, v12, vcc
v_add_u32 v13, s{T3}, v13
v_add_u32 v9, s{T3}, v9
v_add_u32 v10, s{T3}, v10
v_mov_b32 v2, 0
v_mov_b32 v3, 0
v_mov_b32 v4, s{T3}""")
    for i in range(6): a(f"v_cvt_pk_bf16_f32 v{PK+i}, v{ACC+2*i}, v{ACC+2*i+1}")
    a(f"""ds_write_b64 v4, v[2:3]
ds_write_b64 v8, v[{PK}:{PK+1}] offset:8
ds_write_b32 v9, v{PK+2} offset:{8+512}
ds_write_b32 v10, v{PK+3} offset:{8+512}
ds_write_b16 v13, v{PK+4} offset:{8+1024}
ds_write_b16_d16_hi v13, v{PK+4} offset:{8+1024+32}
ds_write_b16 v13, v{PK+5} offset:{8+1024+64}
ds_write_b16_d16_hi v13, v{PK+5} offset:{8+1024+96}""")

def expand_index(a):
    AD = EXI; E = 60; LF = 66
    a(f"""s_sub_u32 s{T2}, s{S_W}, 4
s_lshl_b32 s{T3}, s{T2}, 9
s_sub_u32 s{T3}, 2048, s{T3}
v_lshlrev_b32 v4, 3, v0
v_sub_u32 v4, s{T3}, v4
v_cvt_f32_u32 v5, v4
s_mov_b32 s{T4}, {hx(L_TBL + 8 - 2*17024)}
s_mov_b32 s{T5}, {L_TBL + 8 + 256}
v_lshlrev_b32 v6, 1, v4
v_add_u32 v6, {L_TBL + 8}, v6""")
    for e in range(12):
        a(f"v_subrev_f32 v{LF+e}, {hx(f2u(float(e)))}, v5")
        if e >= 9: a(f"v_max_f32 v{LF+e}, 0, v{LF+e}")
    for k in range(6): a(f"v_cvt_pk_bf16_f32 v{E+k}, v{LF+2*k}, v{LF+2*k+1}")
    for e in range(12):
        a(f"v_mad_u32_u16 v{AD+e}, v{E+(e>>1)}, 2, s{T4} op_sel:[{e&1},0,0,0]")
        a(f"v_subrev_u32 v{LF+e}, {2*e}, v6")
    for e in range(12): a(f"v_med3_i32 v{AD+e}, v{AD+e}, v{LF+e}, s{T5}")

def expand(a, cfg):
    AD = EXI; O = 96
    E = lambda c: 60 + 12*c
    a(f"""s_sub_u32 s{T2}, s{S_W}, 4
s_lshl_b32 s{T3}, s{T2}, 10
s_add_u32 s{T3}, s{T3}, {L_CP}
v_add_u32 v4, s{T3}, v1""")
    for c in range(3):
        for e in range(12):
            a(f"ds_read_u16{'_d16_hi' if e & 1 else ''} v{E(c) + 6*(e & 1) + (e >> 1)}, v{AD+e} offset:{c*TBL_SZ}")
    for c in range(3):
        b = E(c)
        a(f"v_add_u32 v5, {c*CP_CH + 2*CP_C}, v4\nv_add_u32 v6, {c*CP_CH + 3*CP_C}, v4\ns_waitcnt lgkmcnt({min(15, 12*(2-c) + 6*min(c,1))})")
        for k in range(6): a(f"v_or_b32 v{b+k}, v{b+k}, v{b+6+k}")
        for k in range(5): a(f"v_alignbit_b32 v{O+k}, v{b+k+1}, v{b+k}, 16")
        a(f"""ds_write_b128 v4, {vr(b,4)} offset:{c*CP_CH}
ds_write2_b32 v5, v{b+1}, v{b+2} offset0:0 offset1:1
ds_write2_b32 v5, v{b+3}, v{b+4} offset0:2 offset1:3
ds_write_b128 v4, {vr(O,4)} offset:{c*CP_CH + CP_C}
ds_write2_b32 v6, v{O+1}, v{O+2} offset0:0 offset1:1
ds_write2_b32 v6, v{O+3}, v{O+4} offset0:2 offset1:3""")
    a(f"""s_cmp_lg_u32 s{S_W}, 4
s_cbranch_scc1 L_exp_done
v_lshrrev_b32 v5, 3, v0
v_mul_u32_u24 v6, {CP_CH}, v5
v_bfe_u32 v7, v0, 1, 2
v_mul_u32_u24 v7, {CP_C}, v7
v_and_b32 v8, 1, v0
v_lshl_add_u32 v7, v8, 4, v7
v_add_u32 v6, v6, v7
v_add_u32 v6, {L_CP + 4096}, v6
v_mov_b32 v8, 0
v_mov_b32 v9, 0
v_mov_b32 v10, 0
v_mov_b32 v11, 0
v_mul_u32_u24 v12, {TBL_SZ}, v0
v_add_u32 v12, {L_TBL + 8}, v12
v_mul_u32_u24 v13, {CP_CH}, v0
s_mov_b64 exec, 7
ds_read_u16 v12, v12
s_mov_b64 exec, 0xffffff
ds_write_b128 v6, v[8:11]
s_mov_b64 exec, 7
v_add_u32 v13, {L_CP + 4096}, v13
s_waitcnt lgkmcnt(0)
ds_write_b16 v13, v12
s_mov_b64 exec, -1""")
    a.label("L_exp_done")

def q_side(a, cfg):
    a(f"""s_setprio 2
s_waitcnt lgkmcnt(0)
s_load_dword s{S_NONCE}, s[{P_WS}:{P_WS+1}], {W_NONCE}""")
    srd(a, SA, P_X, 2048*1280)
    crit_loads(a)
    stamp(a, cfg, 0)
    a(f"s_cmp_eq_u32 s{S_W}, 0\ns_cbranch_scc1 L_q_norest")
    rest_x(a, "lo")
    a.label("L_q_norest")
    srd(a, SWS, P_WS, WS_SZ)
    q_addrs(a)
    wq_items(a, 16, 4).flush(a)
    stamp(a, cfg, 22)
    conv_addrs(a)
    finish_nonce(a)
    a(f"""v_lshrrev_b32 v6, 4, v0
v_lshlrev_b32 v6, 3, v6
v_bfe_u32 v7, v0, 2, 2
v_add_u32 v6, v6, v7
v_mul_u32_u24 v6, 40, v6
v_and_b32 v7, 3, v0
v_lshl_add_u32 v6, v7, 3, v6
s_lshl_b32 s{T0}, s{S_W}, 4
s_add_u32 s{T0}, s{T0}, {L_WK}
v_add_u32 v6, s{T0}, v6
s_cmp_eq_u32 s{S_W}, 0
s_cbranch_scc1 L_q_w0a
s_waitcnt vmcnt(14)
s_branch L_q_crit""")
    a.label("L_q_w0a")
    a("s_waitcnt vmcnt(4)")
    a.label("L_q_crit")
    ev_signal(a, EV_CRIT)
    stamp(a, cfg, 24)
    a(f"s_bitcmp1_b32 s{S_W}, 0\ns_cbranch_scc1 L_q_odd")
    ev_wait(a, EV_CRIT, 0x0f)
    stamp(a, cfg, 1)
    kv_proj(a, cfg)
    a("s_waitcnt vmcnt(1)")
    ev_signal(a, EV_X)
    a("s_branch L_q_tail")
    a.label("L_q_odd")
    a("s_waitcnt vmcnt(0)")
    ev_signal(a, EV_X)
    a.label("L_q_tail")
    a(f"s_setprio {QPRIO}")
    tail_addrs(a.sub("q"))
    ev_wait(a, EV_X, 0xff)
    stamp(a, cfg, 2)
    x_frags(a, 0)
    x_frags(a, 1)
    a("s_waitcnt vmcnt(0) lgkmcnt(0)")
    ev_signal(a, EV_FR)
    a(f"s_cmp_lg_u32 s{S_W}, 0\ns_cbranch_scc1 L_q_nokv0")
    ev_wait(a, EV_FR, 0x0f)
    a(f"""v_lshlrev_b32 v3, 10, v0
s_lshl_b32 s{T0}, s2, 2
s_add_u32 s{T0}, s{T0}, {W_FKV}
s_mov_b64 exec, 0xff
buffer_store_dword v{V_NON}, v3, s[{SWS}:{SWS+3}], s{T0} offen sc1
s_mov_b64 exec, -1
s_branch L_q_go""")
    a.label("L_q_nokv0")
    ev_wait(a, EV_FR, 0x0f)
    a.label("L_q_go")
    stamp(a, cfg, 26)
    ACC = 200
    RING = [176, 188, 16, 28]
    a(f"s_bitcmp1_b32 s{S_W}, 0\ns_cbranch_scc1 L_q_three")
    for nct in (2, 3):
        if nct == 3: a.label("L_q_three")
        dma = wq_items(a, 0, 16)
        a(f"v_add_u32 v6, 51200, v{A_WQ}")
        for grp, (n0, n1) in enumerate(((0, 4), (4, 12), (12, 20))):
            depth = 1 if grp == 0 else 2
            ring = RING[:2] if grp == 0 else [RING[0], RING[1], 16 if nct == 3 else 16]
            slot = lambda n: ring[(n - n0) % (depth + 1)]
            def reads(n, ct):
                s = ORDER[n]; b = slot(n) + 4*ct
                base, off = (A_WQ, 5120*s) if s < 10 else (6, 5120*(s - 10))
                return [f"ds_read_b64_tr_b16 {vr(b+2*hf,2)}, v{base} offset:{off + 1280*hf + 32*ct}" for hf in range(2)]
            if grp == 1:
                dma.flush(a)
                a("s_waitcnt lgkmcnt(0)")
                ev_signal(a, EV_WQA)
                stamp(a, cfg, 3)
                for c in range(3):
                    a(f"""s_add_u32 s{T2}, s{S_CH0}, {c}
s_min_u32 s{T2}, s{T2}, 639
s_lshl_b32 s{T2}, s{T2}, 1
s_and_b32 s{T2}, s{T2}, 0xfffffffc
s_load_dword s{S_D0+c}, s[{P_DSK}:{P_DSK+1}], s{T2}""")
                attn_init(a)
            if grp >= 1:
                a(f"s_waitcnt vmcnt({8*(2-grp)})")
                ev_signal(a, EV_WQ + grp - 1)
                ev_wait(a, EV_WQ + grp - 1, 0x1f)
            if grp == 2: stamp(a, cfg, 25)
            for d in range(depth):
                for ct in range(nct):
                    for r in reads(n0 + d, ct): a(r)
            for n in range(n0, n1):
                s = ORDER[n]; b = slot(n)
                for ct in range(nct):
                    after = 2*(nct - 1 - ct)
                    for m in range(n + 1, n + depth):
                        if m < n1: after += 2*nct
                    if n + depth < n1: after += 2*ct
                    a(f"s_waitcnt lgkmcnt({after})")
                    for i in range(2):
                        acc = ACC + 12*i + 4*ct
                        a(f"v_mfma_f32_16x16x32_bf16 {vr(acc,4)}, {vr(b+4*ct,4)}, {vr(xf(i, s),4)}, {vr(acc,4) if n else 0}")
                        if grp == 0: dma.pop(a)
                    if n + depth < n1:
                        for r in reads(n + depth, ct): a(r)
        stamp(a, cfg, 6)
        a(f"s_mov_b32 s{T2}, {hx(f2u(LOG2E/math.sqrt(20.0)))}")
        ev_wait(a, EV_EXP, 0xf0)
        for i in range(2):
            for ct in range(nct):
                acc = ACC + 12*i + 4*ct
                a(f"v_pk_mul_f32 {vr(acc,2)}, {vr(acc,2)}, s[{T2}:{T2+1}] op_sel_hi:[1,0]\nv_pk_mul_f32 {vr(acc+2,2)}, {vr(acc+2,2)}, s[{T2}:{T2+1}] op_sel_hi:[1,0]")
                a(f"v_cvt_pk_bf16_f32 v{acc}, v{acc}, v{acc+1}\nv_cvt_pk_bf16_f32 v{acc+1}, v{acc+2}, v{acc+3}")
                a(f"ds_write_b64 v{Q_W}, {vr(acc,2)} offset:{2560*i + 32*ct}")
        if nct == 2: a("s_branch L_join")

def k_side(a, cfg):
    UT2 = 176
    a(f"""s_waitcnt lgkmcnt(0)
s_load_dword s{S_NONCE}, s[{P_WS}:{P_WS+1}], {W_NONCE}""")
    srd(a, SA, P_X, 2048*1280)
    a(f"s_cmp_eq_u32 s{S_W}, 4\ns_cbranch_scc1 L_k_u")
    kgen_loads(a)
    a(f"s_mov_b32 s94, s{T5}")
    expand_index(a.sub("k"))
    conv_addrs(a)
    a(f"s_mov_b32 s{T5}, s94")
    rest_x(a, "k")
    stamp(a, cfg, 22)
    srd(a, SWS, P_WS, WS_SZ)
    a(f"""s_sub_u32 s{T2}, s{S_W}, 5
s_cmp_ge_u32 s{T2}, s{S_NCH}
s_cbranch_scc1 L_k_skip""")
    finish_nonce(a)
    kgen_pre(a)
    a(f"s_setprio {KPRIO}\ns_waitcnt vmcnt(8)")
    stamp(a, cfg, 24)
    def hook():
        a("s_waitcnt vmcnt(0)")
        ev_signal(a, EV_X)
    kgen_round(a, 0, hook)
    stamp(a, cfg, 1)
    kgen_round(a, 1)
    kgen_table(a)
    a("s_branch L_k_done")
    a.label("L_k_skip")
    finish_nonce(a)
    a("s_waitcnt vmcnt(0)")
    ev_signal(a, EV_X)
    a("s_branch L_k_done")
    a.label("L_k_u")
    srd(a, SB, P_U, 2048*1280)
    for i in range(5): div10_offsets(a, 8+i, None, 64*i, 2, False)
    a(f"""s_mul_i32 s{T2}, s{S_J}, {64*1280}
s_mul_i32 s{T3}, s{S_XCD}, 160
s_add_u32 s{T2}, s{T2}, s{T3}
s_add_u32 s{T3}, s{T2}, 40960
s_mov_b32 m0, {L_UST}
s_nop 0""")
    for i in range(10):
        a(f"buffer_load_dwordx4 v{8+i%5}, s[{SB}:{SB+3}], s{T2 if i < 5 else T3} offen lds")
        if i < 9: a(f"s_add_u32 m0, m0, 1024\ns_nop 0")
    rest_x(a, "u")
    srd(a, SWS, P_WS, WS_SZ)
    typed_offset(a)
    wq_items(a, 16, 4).flush(a)
    srd(a, SB, P_WQ, 640*1280)
    a(f"""s_mul_i32 s{T0}, s{S_J}, 20480
v_lshlrev_b32 v2, 7, v0""")
    for i in range(3):
        a(f"buffer_load_dword v14, v2, s[{SB}:{SB+3}], s{T0} offen\ns_add_u32 s{T0}, s{T0}, 8192")
    stamp(a, cfg, 22)
    expand_index(a.sub("u"))
    conv_addrs(a)
    finish_nonce(a)
    a(f"""v_and_b32 v2, 3, v0
v_lshrrev_b32 v3, 4, v0
v_lshl_add_u32 v2, v3, 2, v2
v_and_b32 v3, 7, v2
v_lshrrev_b32 v4, 3, v2
v_bfe_u32 v5, v0, 2, 2
v_lshl_add_u32 v5, v3, 3, v5
v_mul_u32_u24 v5, 160, v5
v_lshl_add_u32 v5, v4, 3, v5
v_add_u32 v5, {L_UST}, v5
v_and_b32 v2, 3, v0
v_lshl_add_u32 v6, v4, 2, v2
v_bfe_u32 v3, v0, 2, 3
v_xor_b32 v7, v3, v6
v_lshlrev_b32 v6, 7, v6
v_lshl_add_u32 v6, v7, 4, v6
v_add_u32 v6, {L_UST}, v6
v_lshrrev_b32 v7, 3, v0
v_and_b32 v3, 7, v0
v_xor_b32 v3, v3, v7
v_lshlrev_b32 v7, 12, v7
v_lshl_add_u32 v7, v3, 4, v7
v_add_u32 v8, {L_UST}, v1
s_mul_i32 s{T2}, s{S_XCD}, {80*4096}
s_lshl_b32 s{T3}, s{S_J}, 7
s_add_u32 s{T2}, s{T2}, s{T3}
s_add_u32 s{T2}, s{T2}, {W_UT}
s_waitcnt vmcnt(13)""")
    stamp(a, cfg, 24)
    UR = 60
    for i in range(10):
        for hf in range(2):
            a(f"ds_read_b64_tr_b16 {vr(UR+4*i+2*hf,2)}, v5 offset:{16*i + 640*hf}")
    a("s_waitcnt lgkmcnt(0)")
    for i in range(10): a(f"ds_write_b128 v6, {vr(UR+4*i,4)} offset:{1024*i}")
    for i in range(10): a(f"ds_read_b128 {vr(UR+40+4*i,4)}, v8 offset:{1024*i}")
    a("s_waitcnt vmcnt(0)")
    ev_signal(a, EV_X)
    for k in range(10):
        a(f"s_waitcnt lgkmcnt({10-k})\nbuffer_store_dwordx4 {vr(UR+40+4*k,4)}, v7, s[{SWS}:{SWS+3}], s{T2} offen sc1\ns_add_u32 s{T2}, s{T2}, 32768")
    stamp(a, cfg, 1)
    a(f"""s_lshl_b32 s{T0}, s{S_XCD}, 8
s_lshl_b32 s{T2}, s{S_J}, 2
s_add_u32 s{T0}, s{T0}, s{T2}
s_add_u32 s{T0}, s{T0}, {W_FU}
v_mov_b32 v7, 0
s_waitcnt vmcnt(0)
s_mov_b64 exec, 1
buffer_store_dword v{V_NON}, v7, s[{SWS}:{SWS+3}], s{T0} offen sc1
s_mov_b64 exec, -1""")
    ev_signal(a, EV_TBL)
    ev_wait(a, EV_FR, 0x0f)
    wq_items(a, 0, 16).flush(a)
    a("s_waitcnt vmcnt(8)")
    ev_signal(a, EV_WQ)
    a("s_waitcnt vmcnt(0)")
    ev_signal(a, EV_WQ + 1)
    a("s_branch L_k_exp")
    a.label("L_k_done")
    a("s_waitcnt lgkmcnt(0)")
    ev_signal(a, EV_TBL)
    a.label("L_k_exp")
    stamp(a, cfg, 2)
    ev_wait(a, EV_TBL, 0xf5)
    stamp(a, cfg, 26)
    expand(a, cfg)
    a("s_waitcnt lgkmcnt(0)")
    ev_signal(a, EV_EXP)
    stamp(a, cfg, 3)
    a(f"""s_cmp_eq_u32 s{S_W}, 4
s_cbranch_scc1 L_k_ut
s_cmp_lg_u32 s{S_W}, 6
s_cbranch_scc1 L_k_tail
s_lshl_b32 s{T0}, s{S_XCD}, 10
s_add_u32 s{T0}, s{T0}, {W_FKV}
v_add_u32 v3, s{T0}, v1""")
    poll(a, "kv", 3, 4, 4)
    a("s_branch L_k_tail")
    a.label("L_k_ut")
    a(f"""s_lshl_b32 s{T0}, s{S_XCD}, 8
s_add_u32 s{T0}, s{T0}, {W_FU}
v_lshl_add_u32 v2, v0, 2, s{T0}""")
    poll(a, "u", 2, 1, 3, lanes=32)
    stamp(a, cfg, 5)
    a(f"""s_lshl_b32 s{T0}, s{S_CH0}, 12
s_add_u32 s{T0}, s{T0}, {W_UT}""")
    for c in range(3):
        if c == 2: a(f"s_cmp_lt_u32 s{S_NCH}, 3\ns_cbranch_scc1 L_k_ut2")
        for i in range(4):
            a(f"buffer_load_dwordx4 {vr(UT2+16*c+4*i,4)}, v1, s[{SWS}:{SWS+3}], s{T0} offen offset:{1024*i} sc1")
        a(f"s_add_u32 s{T0}, s{T0}, 4096")
    a.label("L_k_ut2")
    ev_wait(a, EV_WQA, 0x0f)
    a(f"""v_lshlrev_b32 v2, 3, v0
v_add_u32 v2, {L_UT}, v2
v_mov_b32 v4, 0
v_mov_b32 v5, 0""")
    for c in range(3): a(f"ds_write_b64 v2, v[4:5] offset:{UT_CH*c}")
    a(f"v_add_u32 v2, {L_UT + 512}, v1")
    for c in range(3):
        a(f"s_waitcnt vmcnt({8 - 4*c})" if c < 2 else "s_waitcnt vmcnt(0)")
        if c == 0: a(f"s_cmp_lt_u32 s{S_NCH}, 3\ns_cbranch_scc0 L_k_ut3\ns_waitcnt vmcnt(4)"); a.label("L_k_ut3")
        if c == 1: a(f"s_cmp_lt_u32 s{S_NCH}, 3\ns_cbranch_scc0 L_k_ut4\ns_waitcnt vmcnt(0)"); a.label("L_k_ut4")
        for i in range(4): a(f"ds_write_b128 v2, {vr(UT2+16*c+4*i,4)} offset:{UT_CH*c + 1024*i}")
    a.label("L_k_tail")
    stamp(a, cfg, 7)
    tail_addrs(a.sub("k"))
    for c in range(3):
        a(f"""s_add_u32 s{T2}, s{S_CH0}, {c}
s_min_u32 s{T2}, s{T2}, 639
s_lshl_b32 s{T2}, s{T2}, 1
s_and_b32 s{T2}, s{T2}, 0xfffffffc
s_load_dword s{S_D0+c}, s[{P_DSK}:{P_DSK+1}], s{T2}""")
    attn_init(a)

def join(a, cfg):
    a.label("L_join")
    srd(a, SOUT, P_OUT, 2048*1280*2)
    stamp(a, cfg, 27)
    a("s_setprio 0\ns_waitcnt lgkmcnt(0)\ns_barrier")
    stamp(a, cfg, 8)
    dump_lds(a, cfg, "b3", 81920, 10)

class AR: pass
AR.S = [8, 40]; AR.CZ = 72; AR.OA = 104; AR.OB = 120
AR.K16 = 136; AR.K4 = 140; AR.V0 = 144; AR.V1 = 148
AR.IDX = 152; AR.aK16 = 153; AR.aK4 = 154; AR.aV = 155
AR.QA = 156; AR.QB = 160; AR.Q4 = 164

def attn_init(a):
    R = AR
    a(f"""s_mul_i32 s{T0}, s{S_KH}, {BLK}
v_add_u32 v{R.aK16}, s{T0}, v1
v_lshl_add_u32 v{R.aK4}, v0, 3, s{T0}
v_and_b32 v2, 31, v0
v_lshrrev_b32 v3, 5, v0
v_mul_u32_u24 v3, 320, v3
v_lshl_add_u32 v2, v2, 4, v3
v_add_u32 v{R.aV}, s{T0}, v2
v_mov_b32 v{R.IDX}, 0xdddd""")
    for i in range(8): a(f"v_mov_b32 v{R.V0+i}, 0")
    a(f"s_mov_b32 exec_lo, 0x00100000\ns_mov_b32 exec_hi, 0x00100000")
    for i in range(8): a(f"v_mov_b32 v{R.V0+i}, 0x3f803f80")
    a("s_mov_b64 exec, -1")

def attn_clear(a):
    R = AR
    for i in range(8): a(f"v_mov_b32 v{R.S[1]+24+i}, 0")
    a(f"""s_nop 0
v_mfma_f32_32x32x16_bf16 {vr(R.OA,16)}, {vr(R.S[1]+24,4)}, {vr(R.S[1]+24,4)}, 0
v_mfma_f32_32x32x16_bf16 {vr(R.OB,16)}, {vr(R.S[1]+24,4)}, {vr(R.S[1]+24,4)}, 0""")

class Dma:
    def __init__(s, items): s.items = list(items)
    def pop(s, a, n=1):
        for _ in range(n):
            if s.items: a(s.items.pop(0))
    def flush(s, a): s.pop(a, len(s.items))

S_DM = 90; S_DO = 91
def kv_dma_items(a, first, n):
    a(f"""s_lshl_b32 s{S_DM}, s{S_W}, 10
s_add_u32 s{S_DM}, s{S_DM}, {first*1024}
s_add_u32 s{S_DO}, s{S_DM}, {W_KV}""")
    return Dma([f"s_mov_b32 m0, s{S_DM}\ns_add_u32 s{S_DM}, s{S_DM}, 8192\nbuffer_load_dwordx4 v1, s[{SWS}:{SWS+3}], s{S_DO} offen sc1 lds\ns_add_u32 s{S_DO}, s{S_DO}, 8192"] * n)

def post_q(a, cfg):
    a(f"""ds_read2_b64 {vr(AR.QA,4)}, v{Q_R} offset0:0 offset1:1
ds_read2_b64 {vr(AR.QB,4)}, v{Q_R} offset0:10 offset1:11
ds_read_b64 {vr(AR.Q4,2)}, v{Q_R4} offset:32""")
    if cfg.nonce_update:
        a(f"""s_or_b32 s{T2}, s2, s{S_W}
s_cmp_lg_u32 s{T2}, 0
s_cbranch_scc1 L_pq_done
v_mov_b32 v2, {W_NONCE}
v_mov_b32 v3, s{S_NONCE}
s_mov_b64 exec, 1
buffer_store_dword v3, v2, s[{SWS}:{SWS+3}], 0 offen
s_mov_b64 exec, -1""")
    a.label("L_pq_done")
    for c in range(3):
        a(f"""s_add_u32 s{T2}, s{S_CH0}, {c}
s_min_u32 s{T2}, s{T2}, 639
s_and_b32 s{T2}, s{T2}, 1
s_lshl_b32 s{T2}, s{T2}, 4
s_lshr_b32 s{S_D0+c}, s{S_D0+c}, s{T2}
s_lshl_b32 s{S_D0+c}, s{S_D0+c}, 16""")
    stamp(a, cfg, 9)

def conv(a, cfg):
    ACC = 8; FA = [40, 170]; FB = [72, 104]
    dma = kv_dma_items(a, 0, 10)
    a(f"""s_cmp_ge_u32 s{S_CCH}, s{S_NCH}
s_cbranch_scc1 L_conv_skip""")
    def reads(task, i):
        st = task & 1; d = 192 - 64*task
        return [f"ds_read_b128 {vr(FB[st]+4*i,4)}, v{C_B} offset:{512*i + d}",
                f"ds_read_b64 {vr(FA[st]+4*i,2)}, v{C_A} offset:{512*(7-i) + d}",
                f"ds_read_b64 {vr(FA[st]+4*i+2,2)}, v{C_A} offset:{512*(7-i) + 8 + d}"]
    allr = [r for i in range(8) for r in reads(0, i)]
    for r in allr[:15]: a(r)
    pend = allr[15:]
    for task in range(4):
        st = task & 1
        queue = [(r, task) for r in pend] + ([(r, task+1) for i in range(8) for r in reads(task+1, i)] if task < 3 else [])
        issued_own = 24 - len(pend); issued_next = 0
        nm = 0
        for i in range(8):
            while issued_own < 3*(i+1):
                a(queue.pop(0)[0]); issued_own += 1
            outstanding_after = issued_own - 3*(i+1) + issued_next
            a(f"s_waitcnt lgkmcnt({min(15, outstanding_after)})")
            for j in range(i + 1):
                c = "0" if task == 0 and j == 0 else vr(ACC+4*i, 4)
                a(f"v_mfma_f32_16x16x32_bf16 {vr(ACC+4*i,4)}, {vr(FA[st]+4*j,4)}, {vr(FB[st]+4*(i-j),4)}, {c}")
                nm += 1
                if queue and (queue[0][1] == task or i >= 3):
                    if issued_own + issued_next - 3*(i+1) < 14 or queue[0][1] != task:
                        r, t = queue.pop(0); a(r)
                        if t == task: issued_own += 1
                        else: issued_next += 1
                if task < 2 and nm % 7 == 3: dma.pop(a)
        pend = [r for r, t in queue]
        if task == 1:
            dma.flush(a)
            a(f"s_cmp_le_u32 s{S_CCN}, 2\ns_cbranch_scc1 L_conv_done")
        if task == 2:
            a(f"s_cmp_le_u32 s{S_CCN}, 3\ns_cbranch_scc1 L_conv_done")
    a("s_branch L_conv_done")
    a.label("L_conv_skip")
    kv_dma_items(a, 0, 10).flush(a)
    for i in range(32): a(f"v_mov_b32 v{ACC+i}, 0")
    a.label("L_conv_done")
    stamp(a, cfg, 10)
    a(f"""s_lshl_b32 s{T1}, s{S_CH0}, 12
s_add_u32 s{T1}, s{T1}, {W_YT}
s_waitcnt lgkmcnt(0)
s_nop 3
s_barrier""")
    for i in range(8): a(f"ds_write_b128 v{C_PW}, {vr(ACC+4*i,4)} offset:{1024*i}")
    a("s_waitcnt lgkmcnt(0)\ns_barrier")
    stamp(a, cfg, 28)
    src = {0: [2, 3, 4], 1: [5, 6, 7], 2: [0, 1]}
    PR = 8
    for c in range(3):
        b = PR + 16*c
        for n, w in enumerate(src[c]): a(f"ds_read_b128 {vr(b+4*n,4)}, v{C_PR} offset:{8192*w}")
        a(f"ds_read_b64 {vr(b+12,2)}, v{C_UL} offset:{UT_CH*c}")
    attn_clear(a)
    for c in range(3):
        if c == 2: a(f"s_cmp_lt_u32 s{S_NCH}, 3\ns_cbranch_scc1 L_y_done")
        b = PR + 16*c
        a(f"s_waitcnt lgkmcnt({[7, 3, 0][c]})")
        a(f"""v_lshlrev_b32 v{b+14}, 16, v{b+12}
v_and_b32 v{b+12}, 0xffff0000, v{b+12}
v_lshlrev_b32 v{b+15}, 16, v{b+13}
v_and_b32 v{b+13}, 0xffff0000, v{b+13}""")
        us = [b+14, b+12, b+15, b+13]
        for j in range(4): a(f"v_add_f32 v{b+j}, v{b+j}, v{b+4+j}")
        if len(src[c]) == 3:
            for j in range(4): a(f"v_add_f32 v{b+j}, v{b+j}, v{b+8+j}")
        for j in range(4): a(f"v_fma_f32 v{b+j}, v{us[j]}, s{S_D0+c}, v{b+j}")
        a(f"""v_cvt_pk_bf16_f32 v{b+4}, v{b}, v{b+1}
v_cvt_pk_bf16_f32 v{b+5}, v{b+2}, v{b+3}
buffer_store_dwordx2 {vr(b+4,2)}, v{C_UG}, s[{SWS}:{SWS+3}], s{T1} offen sc1
s_add_u32 s{T1}, s{T1}, 4096""")
    a("s_waitcnt vmcnt(3)\ns_branch L_y_b7")
    a.label("L_y_done")
    a("s_waitcnt vmcnt(2) lgkmcnt(0)")
    a.label("L_y_b7")
    a("s_barrier")
    stamp(a, cfg, 11)

def tail_addrs(a):
    w_tr_addr(a, A_W, 6)
    a(f"""v_and_b32 v6, 3, v0
v_lshrrev_b32 v7, 4, v0
v_lshl_add_u32 v6, v7, 2, v6
v_lshrrev_b32 v7, 1, v6
v_lshlrev_b32 v7, 3, v7
v_bfe_u32 v{A_YR}, v0, 2, 2
v_add_u32 v7, v7, v{A_YR}
v_lshlrev_b32 v7, 7, v7
v_and_b32 v6, 1, v6
v_lshl_add_u32 v7, v6, 3, v7
s_lshl_b32 s{T0}, s{S_W}, 4
s_add_u32 s{T0}, s{T0}, {L_YT}
v_add_u32 v{A_YR}, s{T0}, v7
v_lshrrev_b32 v6, 2, v0
v_and_b32 v7, 1, v6
v_and_b32 v{A_YW}, 3, v0
v_lshl_add_u32 v7, v7, 2, v{A_YW}
v_mul_u32_u24 v7, 160, v7
v_lshrrev_b32 v6, 1, v6
v_lshl_add_u32 v7, v6, 4, v7
s_mul_i32 s{T0}, s{S_W}, 1280
s_add_u32 s{T0}, s{T0}, {L_YS}
v_add_u32 v{A_YW}, s{T0}, v7
v_add_u32 v{A_YB}, s{T0}, v1""")
    for d, add in ((A_YG0, 0), (A_YG1, 64)):
        a(f"""v_add_u32 v6, {add}, v0
v_mul_u32_u24 v7, 6554, v6
v_lshrrev_b32 v7, 16, v7
v_mul_u32_u24 v{d}, 10, v7
v_sub_u32 v6, v6, v{d}
v_mul_u32_u24 v7, 2560, v7
v_lshl_add_u32 v{d}, v6, 4, v7""")
    a(f"""s_mul_i32 s{T0}, s{S_W}, {OT_SZ}
s_add_u32 s{T0}, s{T0}, {L_OT}
v_and_b32 v6, 15, v0
v_mul_u32_u24 v6, 80, v6
v_bfe_u32 v7, v0, 4, 1
v_mul_u32_u24 v7, 40, v7
v_add3_u32 v7, v6, v7, s{T0}
v_lshrrev_b32 v{A_OW}, 5, v0
v_lshl_add_u32 v{A_OW}, v{A_OW}, 3, v7
v_lshrrev_b32 v7, 4, v0
v_lshl_add_u32 v6, v7, 4, v6
v_add_u32 v{A_OB}, s{T0}, v6
s_lshl_b32 s{T0}, s{S_HG}, 1
s_add_u32 s{T0}, s{T0}, s{S_KH}
s_mul_i32 s{T0}, s{T0}, 1280
s_lshl_b32 s{T2}, s{S_RB}, 2
s_add_u32 s{T2}, s{T2}, s{S_RT}
s_mul_i32 s{T2}, s{T2}, 20480
s_add_u32 s{T0}, s{T0}, s{T2}
s_add_u32 s{T0}, s{T0}, {W_O}
v_add_u32 v{A_OG}, s{T0}, v1
s_mul_i32 s{T0}, s{S_W}, 3072
s_add_u32 s{T0}, s{T0}, {L_XCH}
v_add_u32 v{A_XW}, s{T0}, v1
s_xor_b32 s{T0}, s{S_W}, 4
s_mul_i32 s{T0}, s{T0}, 3072
s_add_u32 s{T0}, s{T0}, {L_XCH}
v_add_u32 v{A_XR}, s{T0}, v1
v_lshrrev_b32 v6, 3, v0
v_lshlrev_b32 v6, 12, v6
v_and_b32 v7, 7, v0
v_lshl_add_u32 v{A_YD}, v7, 4, v6
s_lshl_b32 s{T0}, s{S_RB}, 8
s_add_u32 s{T0}, s{T0}, {W_FO}
v_lshl_add_u32 v{A_FO}, v0, 2, s{T0}
s_mul_i32 s{T0}, s{S_W}, {OT_SZ}
s_add_u32 s{T0}, s{T0}, {L_OT}
v_and_b32 v6, 15, v0
s_mul_i32 s{T3}, s{S_KH}, 32
s_sub_u32 s{T3}, 96, s{T3}
v_mul_u32_u24 v6, s{T3}, v6
v_lshrrev_b32 v7, 4, v0
v_lshl_add_u32 v6, v7, 3, v6
v_add_u32 v{A_PW}, s{T0}, v6
s_cmp_eq_u32 s{S_KH}, 0
s_cbranch_scc0 L_ta_hi
v_mul_u32_u24 v6, 10923, v0
v_lshrrev_b32 v6, 16, v6
v_mul_u32_u24 v7, 6, v6
v_sub_u32 v7, v0, v7
v_mul_u32_u24 v6, 2560, v6
v_lshl_add_u32 v{A_PG0}, v7, 4, v6
v_add_u32 v7, 64, v0
v_mul_u32_u24 v6, 10923, v7
v_lshrrev_b32 v6, 16, v6
v_mul_u32_u24 v{A_PG1}, 6, v6
v_sub_u32 v7, v7, v{A_PG1}
v_mul_u32_u24 v6, 2560, v6
v_lshl_add_u32 v{A_PG1}, v7, 4, v6
s_branch L_ta_done""")
    a.label("L_ta_hi")
    a(f"""v_lshrrev_b32 v6, 2, v0
v_mul_u32_u24 v6, 2560, v6
v_and_b32 v7, 3, v0
v_lshl_add_u32 v6, v7, 4, v6
v_add_u32 v{A_PG0}, 96, v6
v_mov_b32 v{A_PG1}, 0""")
    a.label("L_ta_done")

def attn_half(a, cur, par, oK16, oV0, oV1, oK4, cz, extra=None):
    R = AR; S = R.S[cur]; N = R.S[1-cur]
    e = lambda k: a(f"v_exp_f32 v{S+k}, v{S+k} ; PHYS")
    x = extra if extra else (lambda: None)
    def vread(dst, off):
        a(f"s_mov_b64 exec, s[{VM}:{VM+1}]\nds_read_b128 {vr(dst,4)}, v{R.aV} offset:{off}\ns_mov_b64 exec, -1")
    a("s_waitcnt lgkmcnt(1)")
    a(f"v_mfma_f32_32x32x16_bf16 {vr(N,16)}, {vr(R.K16,4)}, {vr(R.QA,4)}, {vr(R.CZ,16) if cz else 0}")
    for k in range(0, 4): e(k)
    a(f"v_smfmac_f32_32x32x32_bf16 {vr(R.OB,16)}, {vr(R.V1,4)}, {vr(N+24,8)}, v{R.IDX}")
    vread(R.V1, oV1)
    for k in range(4, 8): e(k)
    a(f"v_mfma_f32_32x32x16_bf16 {vr(N+16,16)}, {vr(R.K16,4)}, {vr(R.QB,4)}, {vr(R.CZ+16,16) if cz else 0}")
    a(f"ds_read_b128 {vr(R.K16,4)}, v{R.aK16} offset:{oK16}")
    for k in range(8, 12): e(k)
    a("s_waitcnt lgkmcnt(2)")
    a(f"v_smfmac_f32_32x32x32_bf16 {vr(R.OA,16)}, {vr(R.V0,4)}, {vr(S,8)}, v{R.IDX}")
    x()
    for k in range(12, 16): e(k)
    a(f"v_mfma_f32_32x32x4bf16_1k {vr(N,32)}, {vr(R.K4,2)}, {vr(R.Q4,2)}, {vr(N,32)} cbsz:1 abid:{1-par} ; PHYS")
    if oK4 is not None: a(f"ds_read_b64 {vr(R.K4,2)}, v{R.aK4} offset:{oK4}")
    for k in range(16, 20): e(k)
    x()
    for k in range(20, 24): e(k)
    a(f"s_waitcnt lgkmcnt({1 + (oK4 is not None)})")
    a(f"v_smfmac_f32_32x32x32_bf16 {vr(R.OA,16)}, {vr(R.V1,4)}, {vr(S+8,8)}, v{R.IDX}")
    for k in range(24, 28): e(k)
    a(f"v_smfmac_f32_32x32x32_bf16 {vr(R.OB,16)}, {vr(R.V0,4)}, {vr(S+16,8)}, v{R.IDX}")
    vread(R.V0, oV0)
    x()
    for k in range(28, 32): e(k)

def attn_first(a, cz):
    R = AR
    a(f"""ds_read_b128 {vr(R.K16,4)}, v{R.aK16}
ds_read_b64 {vr(R.K4,2)}, v{R.aK4} offset:2048
s_waitcnt lgkmcnt(0)
v_mfma_f32_32x32x16_bf16 {vr(R.S[0],16)}, {vr(R.K16,4)}, {vr(R.QA,4)}, {vr(R.CZ,16) if cz else 0}
v_mfma_f32_32x32x16_bf16 {vr(R.S[0]+16,16)}, {vr(R.K16,4)}, {vr(R.QB,4)}, {vr(R.CZ+16,16) if cz else 0}
ds_read_b128 {vr(R.K16,4)}, v{R.aK16} offset:1024
s_mov_b64 exec, s[{VM}:{VM+1}]
ds_read_b128 {vr(R.V0,4)}, v{R.aV} offset:2560
s_mov_b64 exec, -1
s_nop 7
v_mfma_f32_32x32x4bf16_1k {vr(R.S[0],32)}, {vr(R.K4,2)}, {vr(R.Q4,2)}, {vr(R.S[0],32)} cbsz:1 abid:0
s_nop 15
s_nop 2""")

def attn_body(a, cz, extra=None, prio=True):
    R = AR; ST = 2*BLK
    for b in range(4):
        base = b*ST; nxt = base + ST
        if prio: a(f"s_setprio {3-b}")
        attn_half(a, 0, 0, nxt, base + 2560 + 1280, base + 2560 + 640, nxt + 2048, cz, extra)
        attn_half(a, 1, 1, nxt + 1024, nxt + 2560, base + 2560 + 1920, None, cz, extra)
    a(f"""v_add_u32 v{R.aK16}, {4*ST}, v{R.aK16}
v_add_u32 v{R.aK4}, {4*ST}, v{R.aK4}
v_add_u32 v{R.aV}, {4*ST}, v{R.aV}""")

def attention(a, cfg):
    R = AR
    dma = kv_dma_items(a, 80, 10)
    attn_first(a, False)
    stamp(a, cfg, 12)
    attn_body(a, False, lambda: dma.pop(a))
    a(f"""s_lshl_b32 s{T0}, s{S_XCD}, 10
s_lshl_b32 s{T1}, s{S_J}, 5
s_add_u32 s{T0}, s{T0}, s{T1}
s_lshl_b32 s{T1}, s{S_W}, 2
s_add_u32 s{T0}, s{T0}, s{T1}
s_add_u32 s{T0}, s{T0}, {W_FY}
v_mov_b32 v2, s{S_NONCE}
v_mov_b32 v3, 0
s_mov_b32 s{S_IT}, 0
s_waitcnt vmcnt(0)
s_mov_b64 exec, 1
buffer_store_dword v2, v3, s[{SWS}:{SWS+3}], s{T0} offen sc1
s_mov_b64 exec, -1
s_barrier""")
    a.label("L_attn_loop")
    attn_body(a, False)
    a(f"""s_add_u32 s{S_IT}, s{S_IT}, 1
s_cmp_lt_u32 s{S_IT}, 2
s_cbranch_scc1 L_attn_loop""")
    a(f"""s_cmp_lg_u32 s{S_W}, 7
s_cbranch_scc1 L_attn_nopoll
s_lshl_b32 s{T0}, s{S_XCD}, 10
s_add_u32 s{T0}, s{T0}, {W_FY}
v_add_u32 v2, s{T0}, v1""")
    poll(a, "y", 2, 4, 4)
    a.label("L_attn_nopoll")
    a("s_barrier")
    a.label("L_tail_dma")
    tail_dma_body(a, cfg)

def tail_dma_items(a, tag):
    a(f"s_cmp_ge_u32 s{S_W}, 5\ns_cbranch_scc1 L_td_y{tag}")
    srd(a, SA, P_WO, 640*1280)
    a(f"""s_mul_i32 s{S_DO}, s{S_HG}, 160
s_lshl_b32 s{S_DM}, s{S_W}, 10
s_mov_b32 s92, 40960
s_mov_b32 s93, 5120
s_mov_b32 s94, 20""")
    a(f"v_mov_b32 v{VX}, v{WT}")
    a(f"s_branch L_td_done{tag}")
    a.label(f"L_td_y{tag}")
    srd(a, SA, P_WS, WS_SZ)
    a(f"""s_sub_u32 s{T2}, s{S_W}, 5
s_mul_i32 s{S_DO}, s{S_XCD}, {80*4096}
s_lshl_b32 s{T1}, s{S_J}, 7
s_add_u32 s{S_DO}, s{S_DO}, s{T1}
s_lshl_b32 s{T1}, s{T2}, 15
s_add_u32 s{S_DO}, s{S_DO}, s{T1}
s_add_u32 s{S_DO}, s{S_DO}, {W_YT}
s_lshl_b32 s{S_DM}, s{T2}, 10
s_add_u32 s{S_DM}, s{S_DM}, {L_YT}
s_mov_b32 s92, {3*32768}
s_mov_b32 s93, 3072
s_cmp_eq_u32 s{T2}, 0
s_cselect_b32 s94, 4, 3
v_mov_b32 v{VX}, v{A_YD}""")
    a.label(f"L_td_done{tag}")
    n = [0]
    def item():
        n[0] += 1
        return f"""s_cmp_lt_u32 s94, {n[0]}
s_cbranch_scc1 L_tds{tag}_{n[0]}
s_mov_b32 m0, s{S_DM}
s_add_u32 s{S_DM}, s{S_DM}, s93
buffer_load_dwordx4 v{VX}, s[{SA}:{SA+3}], s{S_DO} offen sc1 lds
s_add_u32 s{S_DO}, s{S_DO}, s92
L_tds{tag}_{n[0]}:"""
    return Dma([item() for _ in range(20)])

def tail_dma_body(a, cfg):
    R = AR
    dma = tail_dma_items(a, "m")
    attn_body(a, False, lambda: dma.pop(a))
    dma.flush(a)
    a(f"v_smfmac_f32_32x32x32_bf16 {vr(R.OB,16)}, {vr(R.V1,4)}, {vr(R.S[1]+24,8)}, v{R.IDX}\ns_setprio 0")

def o_finish(a, cfg):
    R = AR
    X = 8; Y = 24
    a.label("L_ofin")
    stamp(a, cfg, 13)
    a(f"""v_mov_b32 v4, {L_DEC}
v_mov_b32 v5, 0
s_mov_b32 s{T0}, {hx(f2u(2.0**-40))}
s_mov_b32 s{T1}, {hx(f2u(2.0**40))}
s_waitcnt vmcnt(0) lgkmcnt(0)
s_nop 4
s_barrier""")
    stamp(a, cfg, 29)
    a(f"ds_write_b32 v4, v5\ns_cmp_eq_u32 s{S_KH}, 0\ns_cbranch_scc0 L_ox_hi")
    for kh in range(2):
        if kh: a.label("L_ox_hi")
        send, keep = (R.OB, R.OA) if kh == 0 else (R.OA, R.OB)
        for q in range(3): a(f"ds_write_b128 v{A_XW}, {vr(send+4*q,4)} offset:{1024*q}")
        a("s_waitcnt lgkmcnt(0)\ns_barrier")
        for q in (2, 0, 1): a(f"ds_read_b128 {vr(X+4*q,4)}, v{A_XR} offset:{1024*q}")
        a(f"s_waitcnt lgkmcnt(2)\nv_add_f32 v{Y}, v{X+8}, v{keep+8}\nv_add_f32 v{Y+1}, v{X+8}, v{keep+8}")
        for j in range(4): a(f"v_add_f32 v{X+8+j}, v{X+8+j}, v{keep+8+j}")
        a(f"v_permlane32_swap_b32 v{Y}, v{Y+1}\ns_waitcnt lgkmcnt(0)")
        for j in range(8): a(f"v_add_f32 v{X+j}, v{X+j}, v{keep+j}")
        if kh == 0: a("s_branch L_ox_done")
    a.label("L_ox_done")
    a(f"""v_rcp_f32 v{Y}, v{Y+1}
v_cmp_le_f32 vcc, s{T0}, v{Y+1}
v_cmp_ge_f32 s[{T2}:{T3}], s{T1}, v{Y+1}""")
    for k in range(12): a(f"v_mul_f32 v{X+k}, v{X+k}, v{Y}")
    for k in range(6): a(f"v_cvt_pk_bf16_f32 v{Y+2+k}, v{X+2*k}, v{X+2*k+1}")
    a(f"""ds_write_b64 v{A_OW}, {vr(Y+2,2)}
ds_write_b64 v{A_OW}, {vr(Y+4,2)} offset:16
s_mov_b32 exec_hi, 0
ds_write_b64 v{A_OW}, {vr(Y+6,2)} offset:32
s_mov_b32 exec_hi, -1
ds_read_b128 {vr(X,4)}, v{A_OB}
ds_read_b128 {vr(X+4,4)}, v{A_OB} offset:64
s_and_b64 vcc, vcc, s[{T2}:{T3}]
s_cmp_eq_u64 vcc, -1
s_cbranch_scc1 L_ox_ok
s_cmp_lg_u32 s{S_FB}, 0
s_cbranch_scc1 L_ox_ok
v_mov_b32 v5, 1
ds_write_b32 v4, v5
s_waitcnt lgkmcnt(0)""")
    a.label("L_ox_ok")
    a(f"""s_waitcnt lgkmcnt(1)
buffer_store_dwordx4 {vr(X,4)}, v{A_OG}, s[{SWS}:{SWS+3}], 0 offen sc1
s_mov_b64 exec, 0xffff
s_waitcnt lgkmcnt(0)
buffer_store_dwordx4 {vr(X+4,4)}, v{A_OG}, s[{SWS}:{SWS+3}], 0 offen offset:1024 sc1
s_mov_b64 exec, -1
s_barrier""")
    stamp(a, cfg, 14)
    a(f"ds_read_b32 v5, v4")

def fallback(a, cfg):
    R = AR
    a.label("L_fallback")
    a(f"s_mov_b32 s{S_FB}, 1\ns_waitcnt vmcnt(0) lgkmcnt(0)\ns_barrier")
    kv_dma_items(a, 0, 20).flush(a)
    a(f"""v_mov_b32 v{R.aK16}, v1
v_lshlrev_b32 v{R.aK4}, 3, v0
v_mov_b32 v2, 0xff7fffff
v_mov_b32 v3, 0xff7fffff
s_mov_b32 s{S_IT}, 0
s_waitcnt vmcnt(0)
s_barrier""")
    a.label("L_fb_loop")
    for par in range(2):
        a(f"""ds_read_b128 {vr(R.K16,4)}, v{R.aK16} offset:{1024*par}
ds_read_b64 {vr(R.K4,2)}, v{R.aK4} offset:2048
s_waitcnt lgkmcnt(0)
v_mfma_f32_32x32x16_bf16 {vr(R.S[0],16)}, {vr(R.K16,4)}, {vr(R.QA,4)}, 0
v_mfma_f32_32x32x16_bf16 {vr(R.S[0]+16,16)}, {vr(R.K16,4)}, {vr(R.QB,4)}, 0
s_nop 9
v_mfma_f32_32x32x4bf16_1k {vr(R.S[0],32)}, {vr(R.K4,2)}, {vr(R.Q4,2)}, {vr(R.S[0],32)} cbsz:1 abid:{par}
s_nop 15
s_nop 3""")
        for k in range(0, 16, 2):
            a(f"v_max3_f32 v2, v2, v{R.S[0]+k}, v{R.S[0]+k+1}\nv_max3_f32 v3, v3, v{R.S[0]+16+k}, v{R.S[0]+17+k}")
    a(f"""v_add_u32 v{R.aK16}, {BLK}, v{R.aK16}
v_add_u32 v{R.aK4}, {BLK}, v{R.aK4}
s_add_u32 s{S_IT}, s{S_IT}, 1
s_cmp_lt_u32 s{S_IT}, 32
s_cbranch_scc1 L_fb_loop
v_mov_b32 v4, v2
v_mov_b32 v5, v3
s_nop 1
v_permlane32_swap_b32 v2, v4
v_permlane32_swap_b32 v3, v5
v_max_f32 v2, v2, v4
v_max_f32 v3, v3, v5""")
    for i in range(16): a(f"v_sub_f32 v{R.CZ+i}, 0, v2\nv_sub_f32 v{R.CZ+16+i}, 0, v3")
    attn_init(a)
    attn_clear(a)
    attn_first(a, True)
    a(f"s_mov_b32 s{S_IT}, 0")
    a.label("L_fb_attn")
    attn_body(a, True, prio=False)
    a(f"""s_add_u32 s{S_IT}, s{S_IT}, 1
s_cmp_lt_u32 s{S_IT}, 4
s_cbranch_scc1 L_fb_attn
v_smfmac_f32_32x32x32_bf16 {vr(R.OB,16)}, {vr(R.V1,4)}, {vr(R.S[1]+24,8)}, v{R.IDX}
s_waitcnt lgkmcnt(0)
s_barrier""")
    tail_dma_items(a, "f").flush(a)
    a("s_branch L_ofin")

def out_proj(a, cfg):
    WF = 40; OF = 186; ACC = 8
    NPRE = 7
    def wreads(i, b, cts=range(5)):
        for ct in cts:
            for hf in range(2):
                a(f"ds_read_b64_tr_b16 {vr(b+4*ct+2*hf,2)}, v{A_W} offset:{5120*i + 1280*hf + 32*ct}")
    a(f"""s_lshl_b32 s{T0}, s{S_HG}, 2
s_lshl_b32 s{T1}, s{S_RB}, 8
s_add_u32 s{T0}, s{T0}, s{T1}
s_add_u32 s{T0}, s{T0}, {W_FO}
ds_read_b64_tr_b16 v[8:9], v{A_YR}
ds_read_b64_tr_b16 v[10:11], v{A_YR} offset:512
ds_read_b64_tr_b16 v[12:13], v{A_YR} offset:8192
ds_read_b64_tr_b16 v[14:15], v{A_YR} offset:8704
v_mov_b32 v2, s{S_NONCE}
v_mov_b32 v3, 0
s_waitcnt lgkmcnt(4)
v_readfirstlane_b32 s{T2}, v5
s_waitcnt lgkmcnt(2)
ds_write_b128 v{A_YW}, v[8:11]
s_mov_b64 exec, 0xffff
s_waitcnt lgkmcnt(1)
ds_write_b128 v{A_YW}, v[12:15] offset:128
s_mov_b64 exec, -1
s_cmp_lg_u32 s{T2}, 0
s_cbranch_scc1 L_fallback
ds_read_b128 v[16:19], v{A_YB}
ds_read_b128 v[20:23], v{A_YB} offset:1024""")
    wreads(0, WF)
    a(f"""s_waitcnt vmcnt(0)
s_barrier
s_cmp_lg_u32 s{S_W}, 0
s_cbranch_scc1 L_op_noflag
s_mov_b64 exec, 1
buffer_store_dword v2, v3, s[{SWS}:{SWS+3}], s{T0} offen sc1
s_mov_b64 exec, -1""")
    a.label("L_op_noflag")
    stamp(a, cfg, 15)
    a(f"""s_lshl_b32 s{T0}, s{S_J}, 6
s_lshl_b32 s{T1}, s{S_W}, 3
s_add_u32 s{T0}, s{T0}, s{T1}
s_mul_i32 s{T0}, s{T0}, 2560
s_mul_i32 s{T1}, s{S_XCD}, 160
s_add_u32 s{T0}, s{T0}, s{T1}
s_add_u32 s{T0}, s{T0}, 1280
s_waitcnt lgkmcnt(10)
buffer_store_dwordx4 v[16:19], v{A_YG0}, s[{SOUT}:{SOUT+3}], s{T0} offen
s_mov_b64 exec, 0xffff
buffer_store_dwordx4 v[20:23], v{A_YG1}, s[{SOUT}:{SOUT+3}], s{T0} offen
s_mov_b64 exec, -1""")
    for i in range(1, NPRE): wreads(i, WF + 20*i)
    a(f"""s_and_b32 s{T2}, s{S_W}, 3
s_lshl_b32 s{T0}, s{S_RB}, 2
s_add_u32 s{T0}, s{T0}, s{T2}
s_mul_i32 s{T3}, s{T0}, {16*2560}
s_mul_i32 s{T0}, s{T0}, 20480
s_mul_i32 s{T1}, s{S_KH}, 10240
s_add_u32 s{T0}, s{T0}, s{T1}
s_add_u32 s{T0}, s{T0}, {W_O}
s_add_u32 s{T1}, s{T0}, 4096
s_add_u32 s{T2}, s{T0}, 8192
s_mul_i32 s{T4}, s{S_HG}, 160
s_add_u32 s{T3}, s{T3}, s{T4}
s_mul_i32 s{T4}, s{S_W}, {OT_SZ}
s_add_u32 s{T4}, s{T4}, {L_OT}
v_add_u32 v7, s{T4}, v1""")
    stamp(a, cfg, 17)
    a(f"s_cmp_lg_u32 s{S_W}, 0\ns_cbranch_scc1 L_op_nopoll")
    poll(a, "o", A_FO, 1, 4, lanes=8)
    a.label("L_op_nopoll")
    a("s_barrier")
    stamp(a, cfg, 18)
    for i in range(10):
        a(f"buffer_load_dwordx4 {vr(OF+4*i,4)}, v1, s[{SWS}:{SWS+3}], s{(T0, T1, T2)[i >> 2]} offen offset:{1024*(i & 3)} sc1")
    a("s_waitcnt lgkmcnt(0)")
    for i in range(10):
        b = WF + 20*(i if i < NPRE else i - NPRE)
        a(f"s_waitcnt vmcnt({9-i})" + (f" lgkmcnt({min(15, 10*(9-i))})" if i >= NPRE else ""))
        for ct in range(5):
            c = "0" if i == 0 else vr(ACC+4*ct, 4)
            a(f"v_mfma_f32_16x16x32_bf16 {vr(ACC+4*ct,4)}, {vr(b+4*ct,4)}, {vr(OF+4*i,4)}, {c}")
        if i < 10 - NPRE: wreads(NPRE + i, b)
    stamp(a, cfg, 19)
    a(f"s_cmp_eq_u32 s{S_KH}, 0\ns_cbranch_scc0 L_px_hi")
    X = 40
    for kh in range(2):
        if kh: a.label("L_px_hi")
        send = [3, 4] if kh == 0 else [0, 1, 2]
        keep = [0, 1, 2] if kh == 0 else [3, 4]
        a("s_nop 5" if kh == 0 else "s_nop 5")
        for n, ct in enumerate(send): a(f"ds_write_b128 v{A_XW}, {vr(ACC+4*ct,4)} offset:{1024*n}")
        a("s_waitcnt lgkmcnt(0)\ns_barrier")
        for n, ct in enumerate(keep): a(f"ds_read_b128 {vr(X+4*n,4)}, v{A_XR} offset:{1024*n}")
        for n, ct in enumerate(keep):
            a(f"s_waitcnt lgkmcnt({len(keep)-1})")
            for j in range(4): a(f"v_add_f32 v{X+4*n+j}, v{X+4*n+j}, v{ACC+4*ct+j}")
            a(f"v_cvt_pk_bf16_f32 v{X+16+2*n}, v{X+4*n}, v{X+4*n+1}\nv_cvt_pk_bf16_f32 v{X+17+2*n}, v{X+4*n+2}, v{X+4*n+3}")
            a(f"ds_write_b64 v{A_PW}, {vr(X+16+2*n,2)} offset:{32*n}")
        a(f"ds_read_b128 {vr(X+24,4)}, v7")
        if kh == 0:
            a(f"""ds_read_b128 {vr(X+28,4)}, v7 offset:1024
s_waitcnt lgkmcnt(1)
buffer_store_dwordx4 {vr(X+24,4)}, v{A_PG0}, s[{SOUT}:{SOUT+3}], s{T3} offen
s_mov_b32 exec_hi, 0
s_waitcnt lgkmcnt(0)
buffer_store_dwordx4 {vr(X+28,4)}, v{A_PG1}, s[{SOUT}:{SOUT+3}], s{T3} offen
s_mov_b32 exec_hi, -1
s_branch L_px_done""")
        else:
            a(f"s_waitcnt lgkmcnt(0)\nbuffer_store_dwordx4 {vr(X+24,4)}, v{A_PG0}, s[{SOUT}:{SOUT+3}], s{T3} offen")
    a.label("L_px_done")
    if cfg.stamps:
        a("s_waitcnt vmcnt(0)")
        stamp(a, cfg, 20)
        stamp_flush(a, cfg)
        stamp_debug(a, cfg)

def build(cfg):
    a = Asm()
    prologue(a, cfg)
    a(f"s_cmp_ge_u32 s{S_W}, 4\ns_cbranch_scc1 L_kside")
    q_side(a, cfg)
    a("s_branch L_join")
    a.label("L_kside")
    k_side(a, cfg)
    join(a, cfg)
    post_q(a, cfg)
    conv(a, cfg)
    attention(a, cfg)
    o_finish(a, cfg)
    out_proj(a, cfg)
    a.label("L_end")
    a("s_endpgm")
    fallback(a, cfg)
    probs = check(a.lines)
    for p in probs: print("HAZARD", p, file=sys.stderr)
    head = open("cdna_kernels/%s.s.ref" % NAME).read().split("; Override")[0]
    txt = head + f"""; @launch grid=(256,1,1) block=(512,1,1) lds=163840
.amdgcn_target "amdgcn-amd-amdhsa--gfx950"
.text
.globl {NAME}_kernel
.p2align 8
.type {NAME}_kernel,@function
{NAME}_kernel:
""" + a.text() + f""".section .rodata,"a"
.p2align 6
.amdhsa_kernel {NAME}_kernel
  .amdhsa_next_free_vgpr 256
  .amdhsa_next_free_sgpr 96
  .amdhsa_accum_offset 256
  .amdhsa_group_segment_fixed_size 0
  .amdhsa_kernarg_size 120
  .amdhsa_user_sgpr_count 2
  .amdhsa_user_sgpr_kernarg_segment_ptr 1
  .amdhsa_system_sgpr_workgroup_id_x 1
  .amdhsa_float_denorm_mode_32 3
.end_amdhsa_kernel
"""
    return txt, len(probs)

if __name__ == "__main__":
    cfg = Cfg()
    out = sys.argv[1]
    for o in sys.argv[2:]:
        if o == "stamps": cfg.stamps = True
        if o == "dbg": cfg.dbg = True
        if "=" in o and o.split("=")[0].isupper(): globals()[o.split("=")[0]] = int(o.split("=")[1])
        if o.startswith("dbgstamp="): cfg.stamps = True; cfg.dbgstamp = [int(x) for x in o[9:].split(",")]
    txt, n = build(cfg)
    open(out, "w").write(txt)
    print("written", out, len(txt), "bytes; hazards:", n)
```

```python
import sys, struct, math
from asmlib import Asm, vr, sr, check
NAME = "concat_heads__grouped_kv_mqa__ssm_conv_s4d__prompt"
def f2u(x): return struct.unpack("<I", struct.pack("<f", x))[0]
def hx(x): return "0x%08x" % (x & 0xffffffff)

L_WQ = 0; L_X = 0; L_WK = 102400; L_SCR = 128000; SCR_SZ = 4352; L_UST = 141056; NWQA = 4
L_CP = 102400; CP_CH = 16640; CP_C = 4160
L_TBL = 154112; TBL_SZ = 1552; L_QST = 152320
L_UT = 81920; UT_CH = 4608; L_PART = 95744; L_QX = 0
L_YT = 102400; L_XCH = 122880; L_OT = 147456; OT_SZ = 1536; L_DEC = 159744; L_YS = 112640
BLK = 5120
W_NONCE = 0; W_FU = 0x1000; W_FKV = 0x2000; W_FY = 0x4000; W_FO = 0x6000
W_KV = 0x10000; W_UT = 0x40000; W_YT = 0x2C0000; W_O = 0x540000; W_DBG = 0x800000; W_STAMP = 0xF00000; WS_SZ = 0x1000000
P_X, P_WQ, P_WK, P_WV, P_WO, P_U, P_LAR, P_AIM, P_CR, P_CI, P_LDT, P_DSK, P_OUT, P_DBG, P_WS = range(4, 34, 2)
SA, SB, SWS, SOUT = 36, 40, 44, 48
S_W, S_XCD, S_J, S_RB, S_HG, S_NONCE, S_CH0, S_CH2 = 52, 53, 54, 55, 56, 57, 58, 59
VM = 60
T0, T1, T2, T3, T4, T5, T6, T7 = range(62, 70)
S_RT, S_KH, S_FB, S_IT = 70, 71, 72, 73
EX = 74
S_LDT = 76; S_D0 = 77
S_C1, S_C2, S_C3, S_C4 = 80, 81, 82, 83
ST0 = 84
SPIN_MAX = 100000
SLEEP = 1
USLEEP = 4
PF = 0; W4P = 2; OPRIO = 1; G0DMA = 6; UDMA = 0; EXP128 = 1; PSCH = 0; YEARLY = 1; WOF = ''; TDM = 1; BDM = 1; KV1 = 0; KGAP = 5; KGAP0 = 24; PF2 = 0; KVPRIO = 0; CPF = 1024; CPF0 = 1; LAYOUT = 1
UEV = 1; UMASK = 0x0f
YST = 'nt'; OST = 'nt'
QPRIO = 2; KPRIO = 1; CPRIO = 1; Q2PRIO = 3

class Cfg:
    dbg = False; stamps = False; few = None; dbgstamp = None; stop_after = None; nonce_update = True

N_ = None
PRI = [[[N_, N_, N_, 0], [3, 2, 1, 0], [3, 2, 1, 0], [3, 2, 1, 0]],
       [[N_, N_, N_, 3], [2, 1, 0, 3], [3, 2, 1, 0], [3, 2, 1, 0]],
       [[N_, N_, N_, 0], [N_]*4, [N_]*4, [N_]*4],
       [[N_, N_, N_, 3], [2, 1, 0, 3], [2, 2, 1, 0], [3, 2, 1, 0]]]
def srd(a, base, ptr, size):
    a(f"s_mov_b32 s{base}, s{ptr}\ns_mov_b32 s{base+1}, s{ptr+1}\ns_mov_b32 s{base+2}, {size}\ns_mov_b32 s{base+3}, 0x00020000")

_stamp_n = [0]
def stamp(a, cfg, idx, cyc=False):
    if not cfg.stamps or cyc: return
    if cfg.few and idx not in cfg.few: return
    a(f"""s_memrealtime s[{ST0}:{ST0+1}]
s_memtime s[86:87]
s_waitcnt lgkmcnt(0)
v_writelane_b32 v255, s{ST0}, {idx}
v_writelane_b32 v255, s86, {idx+32}""")
def stamp_flush(a, cfg):
    if not cfg.stamps: return
    a(f"""s_lshl_b32 s86, s2, 3
s_add_u32 s86, s86, s{S_W}
s_lshl_b32 s86, s86, 8
s_add_u32 s86, s86, {W_STAMP}
v_lshlrev_b32 v254, 2, v0
buffer_store_dword v255, v254, s[{SWS}:{SWS+3}], s86 offen""")

SEL = [0, 24, 1, 2, 26, 3, 6, 8, 10, 11, 12, 13, 14, 18, 19, 20]
def stamp_debug(a, cfg):
    if not cfg.dbgstamp: return
    a(f"""s_cmp_lg_u32 s2, {cfg.dbgstamp[0]}
s_cbranch_scc1 L_dbgst_done
s_cmp_lg_u32 s{S_W}, {cfg.dbgstamp[1]}
s_cbranch_scc1 L_dbgst_done
v_readlane_b32 s86, v255, 21
v_mov_b32 v254, 0""")
    for k, i in enumerate(SEL):
        a(f"v_readlane_b32 s87, v255, {i}\ns_nop 3\ns_sub_u32 s87, s87, s86\nv_writelane_b32 v254, s87, {k}")
    srd(a, SA, P_DBG, 256)
    a(f"""v_lshlrev_b32 v253, 2, v0
s_mov_b64 exec, 0xffff
buffer_store_dword v254, v253, s[{SA}:{SA+3}], 0 offen
s_mov_b64 exec, -1""")
    a.label("L_dbgst_done")

def dump_lds(a, cfg, tag, lo, n8):
    if not cfg.dbg: return
    a(f"""s_cmp_ge_u32 s2, 4
s_cbranch_scc1 L_dump_{tag}
s_lshl_b32 s86, s{S_W}, 10
s_mul_i32 s87, s2, {n8*8192}
s_add_u32 s87, s87, {W_DBG}
s_add_u32 s87, s87, s86
s_add_u32 s86, s86, {lo}
v_add_u32 v250, s86, v1
s_mov_b32 s88, 0""")
    a.label(f"L_dumpl_{tag}")
    a(f"""ds_read_b128 v[252:255], v250
s_waitcnt lgkmcnt(0)
buffer_store_dwordx4 v[252:255], v1, s[{SWS}:{SWS+3}], s87 offen
s_waitcnt vmcnt(0)
v_add_u32 v250, 8192, v250
s_add_u32 s87, s87, 8192
s_add_u32 s88, s88, 1
s_cmp_lt_u32 s88, {n8}
s_cbranch_scc1 L_dumpl_{tag}""")
    a.label(f"L_dump_{tag}")

def poll(a, tag, vaddr, nload, vt, lanes=64, sleep=0, pre=False):
    sfx = {1: "dword", 2: "dwordx2", 4: "dwordx4"}[nload]
    if lanes < 64: a(f"s_mov_b32 exec_lo, {hx((1 << lanes) - 1)}\ns_mov_b32 exec_hi, 0")
    a(f"s_mov_b32 s{T7}, 0")
    if pre: a(f"s_branch L_pollc_{tag}")
    a.label(f"L_poll_{tag}")
    a(f"buffer_load_{sfx} {vr(vt, nload)}, v{vaddr}, s[{SWS}:{SWS+3}], 0 offen sc1")
    a("s_waitcnt vmcnt(0)")
    a.label(f"L_pollc_{tag}")
    for i in range(nload): a(f"v_xor_b32 v{vt+i}, s{S_NONCE}, v{vt+i}")
    if nload == 2: a(f"v_or_b32 v{vt}, v{vt}, v{vt+1}")
    if nload == 4: a(f"v_or_b32 v{vt}, v{vt}, v{vt+1}\nv_or3_b32 v{vt}, v{vt}, v{vt+2}, v{vt+3}")
    a(f"""v_cmp_ne_u32 vcc, 0, v{vt}
s_add_u32 s{T7}, s{T7}, 1
s_nop 2
s_cmp_eq_u64 vcc, 0
s_cbranch_scc1 L_polld_{tag}
{f"s_sleep {sleep}" if sleep else ""}
s_cmp_lt_u32 s{T7}, {SPIN_MAX}
s_cbranch_scc1 L_poll_{tag}""")
    a.label(f"L_polld_{tag}")
    if lanes < 64: a("s_mov_b64 exec, -1")

def div10_offsets(a, vdst, cbase_s, cbase_imm, vt, perm):
    if cbase_s is not None: a(f"v_add_u32 v{vt}, s{cbase_s}, v0")
    else: a(f"v_add_u32 v{vt}, {cbase_imm}, v0")
    a(f"""v_mul_u32_u24 v{vt+1}, 6554, v{vt}
v_lshrrev_b32 v{vt+1}, 16, v{vt+1}
v_mul_u32_u24 v{vt+2}, 10, v{vt+1}
v_sub_u32 v{vt}, v{vt}, v{vt+2}""")
    if perm:
        a(f"""v_lshrrev_b32 v{vt+2}, 2, v{vt+1}
v_lshrrev_b32 v{vt+3}, 3, v{vt+1}
v_xor_b32 v{vt+2}, v{vt+2}, v{vt+3}
v_and_b32 v{vt+2}, 1, v{vt+2}
v_mul_u32_u24 v{vt+2}, 12, v{vt+2}
v_xor_b32 v{vt+1}, v{vt+1}, v{vt+2}""")
    a(f"""v_mul_u32_u24 v{vt+1}, 1280, v{vt+1}
v_lshl_add_u32 v{vdst}, v{vt}, 4, v{vt+1}""")

XF = 16
VX = 250
WT = 245
C_A, C_B, C_PW, C_PR, C_UG, C_UL = 242, 243, 244, 251, 252, 253
C_A2, C_B2 = 246, 247
Q_W, A_WQ, V_NON, Q_R, Q_R4 = 13, 14, 15, 224, 225
E_W, E_R = 248, 249
L_EV = 162560
EV_CRIT, EV_X, EV_FR, EV_WQ, EV_TBL, EV_WQA, EV_EXP, EV_QD, EV_C0, EV_C1, EV_C2, EV_US = 0, 1, 2, 3, 7, 8, 9, 10, 5, 6, 11, 12
X_F0, X_F1 = 246, 247
EXI = 186
def ev_signal(a, e, vn=None):
    a(f"s_mov_b64 exec, 1\nds_write_b32 v{E_W}, v{vn or V_NON} offset:{32*e}\ns_mov_b64 exec, -1")
_evn = [0]
def ev_wait(a, e, mask, vn=None):
    _evn[0] += 1; n = _evn[0]
    a(f"s_mov_b32 s{T7}, 0")
    a.label(f"L_ev_{n}")
    a(f"""ds_read_b32 v2, v{E_R} offset:{32*e}
s_add_u32 s{T7}, s{T7}, 1
s_waitcnt lgkmcnt(0)
v_cmp_eq_u32 vcc, v2, v{vn or V_NON}
s_cmp_ge_u32 s{T7}, {SPIN_MAX}
s_cbranch_scc1 L_evd_{n}
s_nop 1
s_and_b32 s{T0}, vcc_lo, {mask}
s_cmp_eq_u32 s{T0}, {mask}
s_cbranch_scc1 L_evd_{n}
s_sleep {SLEEP}
s_branch L_ev_{n}""")
    a.label(f"L_evd_{n}")

def prologue(a, cfg):
    a(f"""s_cmp_ge_u32 s2, 256
s_cbranch_scc1 L_end""")
    stamp(a, cfg, 21)
    a(f"""s_load_dwordx16 s[4:19], s[0:1], 0
s_load_dwordx2 s[32:33], s[0:1], 112
s_load_dwordx8 s[20:27], s[0:1], 64
s_load_dwordx4 s[28:31], s[0:1], 96
v_lshrrev_b32 v1, 6, v0
v_and_b32 v0, 63, v0
s_and_b32 s{S_XCD}, s2, 7
v_readfirstlane_b32 s{S_W}, v1
s_lshr_b32 s{S_J}, s2, 3
s_lshr_b32 s{T0}, s{S_J}, 3
s_lshl_b32 s{S_RB}, s{S_XCD}, 2
s_add_u32 s{S_RB}, s{S_RB}, s{T0}
s_and_b32 s{S_HG}, s{S_J}, 7
v_lshlrev_b32 v1, 4, v0""")
    if CPF:
        a("s_getpc_b64 s[92:93]")
        a.label("L_pc")
        a(f"""s_sub_u32 s92, s92, L_pc - {NAME}_kernel
s_subb_u32 s93, s93, 0
s_lshl_b32 s{T0}, s{S_W}, 10
v_add_u32 v3, s{T0}, v1
v_add_co_u32 v4, vcc, s92, v3
v_mov_b32 v5, s93
s_mul_i32 s{T1}, s{S_J}, {CPF}
v_addc_co_u32 v5, vcc, 0, v5, vcc
s_cmp_lt_u32 s{S_W}, 6
{"global_load_dwordx4 v[200:203], v[4:5], off" if CPF0 else ""}
s_cbranch_scc1 L_nocp
s_add_u32 s{T1}, s{T1}, {8192 - 6*1024 if CPF0 else -6*1024 & 0xffffffff}
v_add_u32 v3, s{T1}, v3
v_min_u32 v3, L_code_end - {NAME}_kernel - 16, v3
v_add_co_u32 v4, vcc, s92, v3
v_mov_b32 v5, s93
s_nop 0
v_addc_co_u32 v5, vcc, 0, v5, vcc
global_load_dwordx4 v[200:203], v[4:5], off""")
        a.label("L_nocp")
    a(f"""v_lshrrev_b32 v2, 3, v0
v_and_b32 v3, 7, v0
v_xor_b32 v3, v3, v2
v_mul_u32_u24 v2, 1280, v2
v_lshl_add_u32 v{VX}, v3, 4, v2
v_mov_b32 v{WT}, 0
s_lshr_b32 s{T0}, s{S_J}, 1
s_mul_i32 s{T0}, s{T0}, 5
s_mul_i32 s{S_CH0}, s{S_XCD}, 80
s_add_u32 s{S_CH0}, s{S_CH0}, s{T0}
s_add_u32 s{S_CH2}, s{S_CH0}, 2
s_and_b32 s{T0}, s{S_J}, 1
s_mul_i32 s{T0}, s{T0}, 3
s_add_u32 s{S_CH0}, s{S_CH0}, s{T0}
s_lshr_b32 s{T0}, s{S_HG}, 1
s_add_u32 s{S_RT}, s{T0}, s{S_W}
s_and_b32 s{S_RT}, s{S_RT}, 3
s_lshr_b32 s{S_KH}, s{S_W}, 2
s_mov_b32 s{S_FB}, 0
s_mov_b32 s{VM}, 0x000fffff
s_mov_b32 s{VM+1}, 0x000fffff
s_mul_i32 s{T5}, s{S_RB}, {64*1280}""")

def x_loop(a, tag, n_s, n_imm):
    a(f"s_mov_b32 s{T2}, {n_imm}" if n_s is None else f"s_mov_b32 s{T2}, s{n_s}")
    a.label(f"L_xl_{tag}")
    a(f"""s_mul_i32 s{T0}, s{T3}, {8*1280}
s_lshl_b32 s{T1}, s{T4}, 7
s_add_u32 s{T0}, s{T0}, s{T1}
s_lshl_b32 s{T1}, s{T4}, 3
s_add_u32 s{T1}, s{T1}, s{T3}
s_lshl_b32 m0, s{T1}, 10
s_add_u32 s{T0}, s{T0}, s{T5}
buffer_load_dwordx4 v{VX}, s[{SA}:{SA+3}], s{T0} offen lds
s_add_u32 s{T4}, s{T4}, 1
s_cmp_eq_u32 s{T4}, 10
s_cselect_b32 s{T4}, 0, s{T4}
s_addc_u32 s{T3}, s{T3}, 0
s_and_b32 s{T3}, s{T3}, 7
s_sub_u32 s{T2}, s{T2}, 1
s_cmp_lg_u32 s{T2}, 0
s_cbranch_scc1 L_xl_{tag}""")

def crit_loads(a):
    a(f"""s_and_b32 s{T3}, s{S_HG}, 6
s_and_b32 s{T4}, s{S_W}, 1
s_add_u32 s{T3}, s{T3}, s{T4}
s_lshr_b32 s{T4}, s{S_W}, 1
s_mul_i32 s{T0}, s{T3}, {8*1280}
s_lshl_b32 s{T1}, s{T4}, 7
s_add_u32 s{T0}, s{T0}, s{T1}
s_add_u32 s{T0}, s{T0}, s{T5}
s_lshl_b32 s{T1}, s{T4}, 3
s_add_u32 s{T1}, s{T1}, s{T3}
s_lshl_b32 m0, s{T1}, 10
s_bitcmp1_b32 s{S_HG}, 0""")
    for i in range(5):
        a(f"buffer_load_dwordx4 v{VX}, s[{SA}:{SA+3}], s{T0} offen lds")
        if i < 4: a(f"s_add_u32 m0, m0, 16384\ns_add_u32 s{T0}, s{T0}, 256")
    a(f"""s_bitcmp1_b32 s{S_HG}, 0
s_cselect_b32 s{SB}, s{P_WV}, s{P_WK}
s_cselect_b32 s{SB+1}, s{P_WV+1}, s{P_WK+1}
s_mov_b32 s{SB+2}, 25600
s_mov_b32 s{SB+3}, 0x00020000
s_lshl_b32 s{T0}, s{S_W}, 10
s_add_u32 m0, s{T0}, {L_WK}
s_nop 0""")
    for i in range(7):
        if i == 6: a(f"s_cmp_lg_u32 s{S_W}, 0\ns_cbranch_scc1 L_wk_done")
        a(f"buffer_load_dwordx4 v1, s[{SB}:{SB+3}], s{T0} offen lds")
        if i < 6: a(f"s_add_u32 m0, m0, 4096\ns_add_u32 s{T0}, s{T0}, 4096")
    a.label("L_wk_done")

def rest_x(a, tag):
    a(f"""s_mul_i32 s{T4}, s{S_W}, 15
s_mul_i32 s{T3}, s{T4}, 205
s_lshr_b32 s{T3}, s{T3}, 11
s_mul_i32 s{T1}, s{T3}, 10
s_sub_u32 s{T4}, s{T4}, s{T1}
s_and_b32 s{T1}, s{S_HG}, 6
s_add_u32 s{T3}, s{T3}, s{T1}
s_add_u32 s{T3}, s{T3}, 2
s_and_b32 s{T3}, s{T3}, 7""")
    x_loop(a, tag, None, 15)

WT4 = 8
def wq_items(a, first, n, even):
    srd(a, SB, P_WQ, 640*1280)
    a(f"""s_lshl_b32 s{S_DM}, s{S_W}, 10
s_add_u32 s{S_DM}, s{S_DM}, {first*5120}
s_mul_i32 s{S_DO}, s{S_HG}, 160
s_add_u32 s{S_DO}, s{S_DO}, {first*40960}""")
    one = f"s_mov_b32 m0, s{S_DM}\ns_add_u32 s{S_DM}, s{S_DM}, 5120\nbuffer_load_dwordx4 v{WT}, s[{SB}:{SB+3}], s{S_DO} offen lds\ns_add_u32 s{S_DO}, s{S_DO}, 40960"
    if not even: return Dma([one] * n)
    a(f"""s_lshr_b32 s{T2}, s{S_W}, 1
s_add_u32 s{T2}, s{T2}, {first}
s_mul_i32 s92, s{T2}, 5120
s_add_u32 s92, s92, 4096
s_mul_i32 s93, s{T2}, 40960
s_mul_i32 s{T2}, s{S_HG}, 160
s_add_u32 s93, s93, s{T2}""")
    four = f"s_mov_b32 m0, s92\ns_add_u32 s92, s92, 10240\nbuffer_load_dwordx4 v{WT4}, s[{SB}:{SB+3}], s93 offen lds\ns_add_u32 s93, s93, 81920"
    return Dma([x for k in range(n // 2) for x in (one, one, four)])

def typed_offset(a):
    a(f"s_lshl_b32 s{T2}, s{S_W}, 6")
    div10_offsets(a, WT, T2, None, 2, True)

A_YR, A_YW, A_YB, A_YG0, A_YG1, A_W, A_OW, A_OB, A_OG, A_XW, A_XR, A_PW, A_PG0, A_PG1, A_YD, A_FO = range(226, 242)
def w_tr_addr(a, v, t):
    a(f"""v_lshrrev_b32 v{v}, 5, v0
v_lshlrev_b32 v{v}, 4, v{v}
v_bfe_u32 v{t}, v0, 4, 1
v_lshl_add_u32 v{v}, v{t}, 2, v{v}
v_bfe_u32 v{t}, v0, 2, 2
v_add_u32 v{v}, v{v}, v{t}
v_mul_u32_u24 v{v}, 160, v{v}
v_and_b32 v{t}, 3, v0
v_lshl_add_u32 v{v}, v{t}, 3, v{v}
s_mul_i32 s{T0}, s{S_KH}, 51200
v_add_u32 v{v}, s{T0}, v{v}""")

L_P32 = L_CP; L_P16 = L_CP + 32768
def conv_addrs(a, kside):
    a(f"""v_and_b32 v2, 15, v0
v_lshrrev_b32 v3, 4, v0""")
    if kside:
        a(f"""s_sub_u32 s{T0}, s{S_W}, 4
s_lshr_b32 s{T1}, s{T0}, 1
s_and_b32 s{T2}, s{T0}, 1
s_lshl_b32 s{T2}, s{T2}, 8
s_mul_i32 s{T4}, s{T1}, {CP_CH}
s_sub_u32 s{T4}, s{T4}, s{T2}
s_add_u32 s{T4}, s{T4}, {L_CP + 2*2032 - 512*7 - 192}
s_mul_i32 s{T6}, s{T1}, {UT_CH}
s_sub_u32 s{T6}, s{T6}, s{T2}
s_add_u32 s{T6}, s{T6}, {L_UT + 480 - 192}
s_lshl_b32 s{T2}, s{T0}, 7
s_sub_u32 s{T1}, {L_CP + 2*CP_CH + 2*2032 - 512*7 - 192}, s{T2}
s_sub_u32 s{T2}, {L_UT + 2*UT_CH + 480 - 192}, s{T2}
v_sub_u32 v4, 0, v2
v_and_b32 v4, 3, v4
v_add_u32 v5, v2, v4
v_mul_u32_u24 v4, {CP_C}, v4
v_lshlrev_b32 v5, 1, v5
v_sub_u32 v4, v4, v5
v_lshl_add_u32 v4, v3, 4, v4
v_add_u32 v{C_A}, s{T4}, v4
v_add_u32 v{C_A2}, s{T1}, v4
v_lshlrev_b32 v5, 5, v2
v_lshl_add_u32 v5, v3, 4, v5
v_add_u32 v{C_B}, s{T6}, v5
v_add_u32 v{C_B2}, s{T2}, v5
v_lshl_add_u32 v4, v3, 2, v2
v_and_b32 v4, 15, v4
v_lshl_add_u32 v4, v3, 4, v4
v_lshlrev_b32 v{C_PW}, 4, v4""")
    a(f"""v_lshrrev_b32 v4, 2, v0
v_and_b32 v5, 3, v0
v_lshl_add_u32 v4, v5, 2, v4
v_and_b32 v4, 15, v4
v_lshl_add_u32 v4, v5, 4, v4
v_lshlrev_b32 v{C_PR}, 4, v4
s_and_b32 s{T0}, s{S_W}, 3
s_lshl_b32 s{T0}, s{T0}, 10
v_lshl_add_u32 v{C_UG}, v0, 3, s{T0}
v_add_u32 v{C_UL}, {L_UT + 512}, v{C_UG}
s_and_b32 s{T0}, s{S_W}, 3
s_mul_i32 s{T1}, s{T0}, 2560
s_add_u32 s{T1}, s{T1}, {L_QST}
v_mul_u32_u24 v2, 160, v2
v_add_u32 v2, s{T1}, v2
v_and_b32 v3, 1, v3
v_mul_u32_u24 v3, 40, v3
v_add_u32 v2, v2, v3
v_lshrrev_b32 v3, 5, v0
v_lshl_add_u32 v{Q_R}, v3, 4, v2
v_mul_u32_u24 v3, 80, v3
v_add_u32 v{Q_R4}, v2, v3
s_lshl_b32 s{T0}, s{S_W}, 2
s_add_u32 s{T0}, s{T0}, {L_EV}
v_mov_b32 v{E_W}, s{T0}
v_and_b32 v2, 7, v0
v_lshlrev_b32 v2, 2, v2
v_add_u32 v{E_R}, {L_EV}, v2""")

def chan(a, dst, c):
    a(f"s_add_u32 s{dst}, s{S_CH0}, {c}" if c < 2 else f"s_mov_b32 s{dst}, s{S_CH2}")
def chan_w(a, dst):
    a(f"""s_sub_u32 s{dst}, s{S_W}, 5
s_add_u32 s{dst}, s{dst}, s{S_CH0}
s_cmp_eq_u32 s{S_W}, 7
s_cselect_b32 s{dst}, s{S_CH2}, s{dst}""")
def d_loads(a):
    for c in range(3):
        chan(a, T2, c)
        a(f"""s_lshl_b32 s{T2}, s{T2}, 1
s_and_b32 s{T2}, s{T2}, 0xfffffffc
s_load_dword s{S_D0+c}, s[{P_DSK}:{P_DSK+1}], s{T2}""")

def q_addrs(a):
    typed_offset(a)
    div10_offsets(a, WT4, None, 256, 2, True)
    a(f"""v_lshrrev_b32 v2, 5, v0
v_lshlrev_b32 v2, 4, v2
v_bfe_u32 v3, v0, 4, 1
v_lshl_add_u32 v2, v3, 2, v2
v_bfe_u32 v3, v0, 2, 2
v_add_u32 v2, v2, v3
v_mul_u32_u24 v2, 160, v2
v_and_b32 v3, 3, v0
v_lshl_add_u32 v2, v3, 3, v2
s_bitcmp0_b32 s{S_W}, 0
s_cselect_b32 s{T1}, 96, 0
v_add_u32 v{A_WQ}, s{T1}, v2
v_and_b32 v2, 15, v0
v_lshrrev_b32 v3, 4, v0
v_and_b32 v4, 7, v2
v_xor_b32 v4, v3, v4
v_lshlrev_b32 v5, 7, v2
v_lshl_add_u32 v{X_F0}, v4, 4, v5
v_xor_b32 v{X_F1}, 64, v{X_F0}
s_lshr_b32 s{T0}, s{S_W}, 1
s_mul_i32 s{T0}, s{T0}, 5120
s_add_u32 s{T0}, s{T0}, s{T1}
s_add_u32 s{T0}, s{T0}, {L_QST}
v_mul_u32_u24 v2, 160, v2
v_lshl_add_u32 v2, v3, 3, v2
v_add_u32 v{Q_W}, s{T0}, v2""")

ORDER = [16, 17, 18, 19] + list(range(16))
def xf(i, s):
    n = ORDER.index(s)
    if i == 0: return XF + 4*n
    return 144 + 4*n if n < 4 else (96 + 4*(n - 4) if n < 16 else 160 + 4*(n - 16))
def x_frags(a, i, kv=False):
    a(f"s_lshr_b32 s{T0}, s{S_HG}, 1")
    if not kv:
        a(f"""s_and_b32 s{T1}, s{S_W}, 2
s_add_u32 s{T0}, s{T0}, s{T1}
s_add_u32 s{T0}, s{T0}, {i}
s_and_b32 s{T0}, s{T0}, 3""")
    a(f"""s_lshl_b32 s{T0}, s{T0}, 11
s_add_u32 s{T1}, s{T0}, 40960
v_add_u32 v2, s{T0}, v{X_F0}
v_add_u32 v3, s{T0}, v{X_F1}
v_add_u32 v4, s{T1}, v{X_F0}
v_add_u32 v5, s{T1}, v{X_F1}""")
    for s in range(20):
        a(f"ds_read_b128 {vr(xf(i, s),4)}, v{2 + (s & 1) + 2*(s >= 10)} offset:{L_X + 8192*((s % 10) >> 1)}")

def finish_nonce(a, first=True):
    if first:
        a(f"s_waitcnt lgkmcnt(0)\ns_mul_i32 s{S_NONCE}, s{S_NONCE}, 0x9E3779B1\ns_add_u32 s{S_NONCE}, s{S_NONCE}, 0x7F4A7C15\nv_mov_b32 v{V_NON}, s{S_NONCE}")
    else:
        a(f"""s_waitcnt lgkmcnt(0)
s_cmp_eq_u32 s{S_W}, 4
s_cbranch_scc1 L_fn_done
s_mul_i32 s{S_NONCE}, s{S_NONCE}, 0x9E3779B1
s_add_u32 s{S_NONCE}, s{S_NONCE}, 0x7F4A7C15
v_mov_b32 v{V_NON}, s{S_NONCE}""")
        a.label("L_fn_done")

def kv_proj1(a, cfg):
    WR = 176; ACC = 200
    x_frags(a, 0, kv=True)
    def reads(s):
        b = WR + 8*(s % 3)
        for ct in range(2):
            for hf in range(2):
                a(f"ds_read_b64_tr_b16 {vr(b+4*ct+2*hf,2)}, v6 offset:{1280*s + 160*hf + 32*ct}")
    a(f"s_bitcmp1_b32 s{S_HG}, 0\ns_cbranch_scc1 L_kv_v")
    for kind in range(2):
        if kind: a.label("L_kv_v")
        reads(0); reads(1)
        for s in range(20):
            if s + 2 < 20: reads(s + 2)
            a(f"s_waitcnt lgkmcnt({4*min(2, 19 - s)})")
            b = WR + 8*(s % 3)
            for ct in range(2):
                A, B = vr(b+4*ct, 4), vr(xf(0, s), 4)
                if kind: A, B = B, A
                a(f"v_mfma_f32_16x16x32_bf16 {vr(ACC+4*ct,4)}, {A}, {B}, {vr(ACC+4*ct,4) if s else 0}")
        ev_signal(a, EV_TBL)
        a(f"""s_mul_i32 s{T0}, s{S_RB}, {BLK}
s_add_u32 s{T0}, s{T0}, {W_KV}
s_lshr_b32 s{T3}, s{S_HG}, 1
v_and_b32 v3, 15, v0
v_lshrrev_b32 v4, 4, v0""")
        if kind == 0:
            a(f"""s_lshr_b32 s{T1}, s{T3}, 1
s_lshl_b32 s{T1}, s{T1}, 10
s_and_b32 s{T2}, s{T3}, 1
s_lshl_b32 s{T2}, s{T2}, 8
s_add_u32 s{T1}, s{T1}, s{T2}
s_add_u32 s{T1}, s{T1}, s{T0}
v_lshrrev_b32 v5, 1, v4
v_lshlrev_b32 v5, 9, v5
v_lshl_add_u32 v5, v3, 4, v5
v_and_b32 v6, 1, v4
v_lshl_add_u32 v5, v6, 3, v5
s_lshl_b32 s{T2}, s{T3}, 7
s_add_u32 s{T2}, s{T2}, s{T0}
s_add_u32 s{T2}, s{T2}, 2048
v_lshlrev_b32 v6, 3, v3
v_cmp_gt_u32 vcc, 16, v0
s_mov_b32 s{T3}, {hx(f2u(LOG2E/math.sqrt(20.0)))}""")
            for j in range(8): a(f"v_mul_f32 v{ACC+j}, s{T3}, v{ACC+j}")
            a("s_branch L_kv_st")
        else:
            a(f"""s_mul_i32 s{T1}, s{T3}, 640
s_add_u32 s{T1}, s{T1}, s{T0}
s_add_u32 s{T1}, s{T1}, 2560
s_add_u32 s{T2}, s{T1}, 256
v_lshrrev_b32 v5, 1, v4
v_mul_u32_u24 v5, 320, v5
v_lshl_add_u32 v5, v3, 4, v5
v_and_b32 v6, 1, v4
v_lshl_add_u32 v5, v6, 3, v5
v_mov_b32 v6, v5
v_cmp_gt_u32 vcc, 4, v3""")
    a.label("L_kv_st")
    a(f"""v_cvt_pk_bf16_f32 v208, v{ACC}, v{ACC+1}
v_cvt_pk_bf16_f32 v209, v{ACC+2}, v{ACC+3}
v_cvt_pk_bf16_f32 v210, v{ACC+4}, v{ACC+5}
v_cvt_pk_bf16_f32 v211, v{ACC+6}, v{ACC+7}
buffer_store_dwordx2 v[208:209], v5, s[{SWS}:{SWS+3}], s{T1} offen sc1
s_and_saveexec_b64 s[{EX}:{EX+1}], vcc
buffer_store_dwordx2 v[210:211], v6, s[{SWS}:{SWS+3}], s{T2} offen sc1
s_mov_b64 exec, s[{EX}:{EX+1}]""")

def kv_proj(a, cfg):
    if KV1: return kv_proj1(a, cfg)
    WR = 176
    ACC = 200
    x_frags(a, 0, kv=True)
    def reads(s):
        b = WR + 4*(s % 4)
        for hf in range(2):
            a(f"ds_read_b64_tr_b16 {vr(b+2*hf,2)}, v6 offset:{1280*s + 160*hf}")
    a(f"s_bitcmp1_b32 s{S_HG}, 0\ns_cbranch_scc1 L_kv_v")
    for kind in range(2):
        if kind: a.label("L_kv_v")
        reads(0); reads(1); reads(2)
        for s in range(20):
            if s + 3 < 20: reads(s + 3)
            a(f"s_waitcnt lgkmcnt({2*min(3, 19 - s)})")
            b = WR + 4*(s % 4)
            A, B = vr(b, 4), vr(xf(0, s), 4)
            if kind: A, B = B, A
            a(f"v_mfma_f32_16x16x32_bf16 {vr(ACC,4)}, {A}, {B}, {vr(ACC,4) if s else 0}")
        ev_signal(a, EV_TBL)
        a(f"""s_mul_i32 s{T0}, s{S_RB}, {BLK}
s_add_u32 s{T0}, s{T0}, {W_KV}
s_lshr_b32 s{T3}, s{S_HG}, 1
v_and_b32 v3, 15, v0
v_lshrrev_b32 v4, 4, v0""")
        if kind == 0:
            a(f"""s_lshr_b32 s{T1}, s{T3}, 1
s_lshl_b32 s{T1}, s{T1}, 10
s_and_b32 s{T2}, s{T3}, 1
s_lshl_b32 s{T2}, s{T2}, 8
s_add_u32 s{T1}, s{T1}, s{T2}
s_add_u32 s{T1}, s{T1}, s{T0}
v_lshrrev_b32 v5, 1, v4
v_lshlrev_b32 v5, 9, v5
v_lshl_add_u32 v5, v3, 4, v5
v_and_b32 v6, 1, v4
v_lshl_add_u32 v5, v6, 3, v5
s_lshl_b32 s{T2}, s{T3}, 7
s_add_u32 s{T2}, s{T2}, s{T0}
s_add_u32 s{T2}, s{T2}, 2048
v_lshlrev_b32 v6, 3, v3
v_cmp_gt_u32 vcc, 16, v0
s_mov_b32 s{T3}, {hx(f2u(LOG2E/math.sqrt(20.0)))}
v_cvt_pk_bf16_f32 v{ACC}, v{ACC}, v{ACC+1}
v_cvt_pk_bf16_f32 v{ACC+2}, v{ACC+2}, v{ACC+3}
v_and_b32 v{ACC+1}, 0xffff0000, v{ACC}
v_lshlrev_b32 v{ACC}, 16, v{ACC}
v_and_b32 v{ACC+3}, 0xffff0000, v{ACC+2}
v_lshlrev_b32 v{ACC+2}, 16, v{ACC+2}
v_mul_f32 v{ACC}, s{T3}, v{ACC}
v_mul_f32 v{ACC+1}, s{T3}, v{ACC+1}
v_mul_f32 v{ACC+2}, s{T3}, v{ACC+2}
v_mul_f32 v{ACC+3}, s{T3}, v{ACC+3}""")
        else:
            a(f"""s_mul_i32 s{T1}, s{T3}, 640
s_add_u32 s{T1}, s{T1}, s{T0}
s_add_u32 s{T1}, s{T1}, 2560
s_add_u32 s{T2}, s{T1}, 256
v_lshrrev_b32 v5, 1, v4
v_mul_u32_u24 v5, 320, v5
v_lshl_add_u32 v5, v3, 4, v5
v_and_b32 v6, 1, v4
v_lshl_add_u32 v5, v6, 3, v5
v_mov_b32 v6, v5
v_cmp_gt_u32 vcc, 4, v3""")
        if kind == 0: a("s_branch L_kv_st")
    a.label("L_kv_st")
    a(f"""v_cvt_pk_bf16_f32 v208, v{ACC}, v{ACC+1}
v_cvt_pk_bf16_f32 v209, v{ACC+2}, v{ACC+3}
s_cmp_lg_u32 s{S_W}, 0
s_cbranch_scc1 L_kv_st1
buffer_store_dwordx2 v[208:209], v5, s[{SWS}:{SWS+3}], s{T1} offen sc1
s_branch L_kv_done""")
    a.label("L_kv_st1")
    a(f"""s_and_saveexec_b64 s[{EX}:{EX+1}], vcc
buffer_store_dwordx2 v[208:209], v6, s[{SWS}:{SWS+3}], s{T2} offen sc1
s_mov_b64 exec, s[{EX}:{EX+1}]""")
    a.label("L_kv_done")

def cmul(a, d, x, y, t):
    a(f"v_pk_mul_f32 {vr(t,2)}, {vr(x,2)}, {vr(y,2)} op_sel:[0,0] op_sel_hi:[0,1]")
    return f"v_pk_fma_f32 {vr(d,2)}, {vr(x,2)}, {vr(y,2)}, {vr(t,2)} op_sel:[1,1,0] op_sel_hi:[1,0,1] neg_lo:[1,0,0]"
def cmul_multi(a, items, tmps):
    for k in range(0, len(items), len(tmps)):
        grp = items[k:k+len(tmps)]
        second = [cmul(a, d, x, y, t) for (d, x, y), t in zip(grp, tmps)]
        for s in second: a(s)

LOG2E = 1.4426950408889634
def acc_exp(a, d, x, t):
    a(f"""v_mul_f32 v{t}, s{S_C1}, {x}
v_fma_f32 v{t+1}, {x}, s{S_C1}, -v{t}
v_fma_f32 v{t+1}, {x}, s{S_C2}, v{t+1}
v_exp_f32 v{t}, v{t}
v_fma_f32 v{t+1}, v{t+1}, s{S_C3}, 1.0
v_mul_f32 v{d}, v{t}, v{t+1}""")

KP = 56
def kgen_loads(a):
    chan_w(a, T2)
    a(f"""s_lshl_b32 s{T3}, s{T2}, 8
v_lshlrev_b32 v2, 2, v0""")
    for i, p in enumerate((P_LAR, P_AIM, P_CR, P_CI)):
        srd(a, SB, p, 640*256)
        a(f"buffer_load_dword v{KP+i}, v2, s[{SB}:{SB+3}], s{T3} offen")
    a(f"""s_lshl_b32 s{T3}, s{T2}, 1
s_and_b32 s{T3}, s{T3}, 0xfffffffc
s_load_dword s{S_LDT}, s[{P_LDT}:{P_LDT+1}], s{T3}
s_and_b32 s35, s{T2}, 1
s_lshl_b32 s35, s35, 4""")

K_ACC = 170; K_DT = 182; K_AW = 8; K_AR = 12
def kgen_pre(a):
    hi = f2u(LOG2E); lo = f2u(LOG2E - struct.unpack("<f", struct.pack("<I", hi))[0])
    a(f"""s_mov_b32 s{S_C1}, {hx(hi)}
s_mov_b32 s{S_C2}, {hx(lo)}
s_mov_b32 s{S_C3}, {hx(f2u(math.log(2)))}
s_mov_b32 s{S_C4}, {hx(f2u(1/(2*math.pi)))}
s_sub_u32 s{T2}, s{S_W}, 5
s_mul_i32 s{T3}, s{T2}, {SCR_SZ}
s_add_u32 s{T3}, s{T3}, {L_SCR}
v_lshl_add_u32 v{K_AW}, v0, 2, s{T3}
v_add_u32 v{K_AW+1}, 1088, v{K_AW}
v_add_u32 v{K_AW+2}, 2176, v{K_AW}
v_add_u32 v{K_AW+3}, 3264, v{K_AW}
v_and_b32 v4, 15, v0
v_mul_u32_u24 v4, 272, v4
v_lshrrev_b32 v5, 4, v0
v_lshl_add_u32 v4, v5, 4, v4
v_add_u32 v{K_AR}, s{T3}, v4
s_lshr_b32 s{S_LDT}, s{S_LDT}, s35
s_lshl_b32 s{S_LDT}, s{S_LDT}, 16
v_mov_b32 v6, s{S_LDT}""")
    acc_exp(a, K_DT, "v6", 4)
    a(f"v_cvt_pk_bf16_f32 v{K_DT}, v{K_DT}, v{K_DT}\nv_lshlrev_b32 v{K_DT}, 16, v{K_DT}")

class Spread:
    def __init__(s, a, gap): s.a = a; s.gap = gap; s.q = []; s.n = 0
    def __call__(s, text):
        for l in text.split("\n"):
            if not l.strip(): continue
            s.a(l)
            if l.strip().startswith("ds_"):
                for it in s.q: it[1] += 1
            s.n += 1
            if s.q and s.n >= s.gap: s.one()
    def label(s, n): s.a.label(n)
    def one(s):
        ins, after = s.q.pop(0)
        s.a(f"s_waitcnt lgkmcnt({min(15, after)})\n{ins}"); s.n = 0
    def defer(s, items, first_gap):
        s.q += [[ins, len(items) - 1 - k] for k, ins in enumerate(items)]; s.n = s.gap - first_gap
    def drain(s):
        while s.q: s.one()

def kgen_round(a, rnd, hook=None):
    W1, W2, V8, V2, WW = 60, 62, 64, 66, 68
    G = 70
    FA, FB = 86, 88
    TM = [90, 92, 94, 96]
    PK = 98
    BF = 104; AF = 120; ACC = K_ACC
    DT, ER, TH = K_DT, K_DT+1, K_DT+2
    for i in range(4): a(f"v_lshlrev_b32 v{PK+i}, 16, v{KP+i}" if rnd == 0 else f"v_and_b32 v{PK+i}, 0xffff0000, v{KP+i}")
    acc_exp(a, ER, f"v{PK}", 4)
    a(f"""v_cvt_pk_bf16_f32 v{ER}, v{ER}, v{ER}
v_mul_f32 v{TH}, v{PK+1}, v{DT}
v_lshlrev_b32 v{ER}, 16, v{ER}
v_mul_f32 v{G}, v{PK+2}, v{DT}
v_mul_f32 v{ER}, v{ER}, v{DT}
v_mul_f32 v{G+1}, v{PK+3}, v{DT}
v_mul_f32 v{ER}, s{S_C1}, -v{ER}
v_mul_f32 v{TH}, s{S_C4}, v{TH}
v_add_f32 v{G}, v{G}, v{G}
v_add_f32 v{G+1}, v{G+1}, v{G+1}
v_mul_f32 v{TM[1]}, 0x41000000, v{ER}
v_mul_f32 v{TM[1]+1}, 0x41000000, v{TH}
v_mul_f32 v{TM[2]}, 0x43000000, v{ER}
v_mul_f32 v{TM[2]+1}, 0x43000000, v{TH}
v_fract_f32 v{TM[0]+1}, v{TH}
v_fract_f32 v{TM[1]+1}, v{TM[1]+1}
v_fract_f32 v{TM[2]+1}, v{TM[2]+1}
v_exp_f32 v{TM[0]}, v{ER}
v_exp_f32 v{TM[1]}, v{TM[1]}
v_exp_f32 v{TM[2]}, v{TM[2]}""")
    for k, dst in enumerate((W1, V8, WW)): a(f"v_cos_f32 v{dst}, v{TM[k]+1}\nv_sin_f32 v{dst+1}, v{TM[k]+1}")
    a(f"v_mov_b32 v{PK}, 0x3f80")
    for k, dst in enumerate((W1, V8, WW)): a(f"v_pk_mul_f32 {vr(dst,2)}, {vr(dst,2)}, {vr(TM[k],2)} op_sel_hi:[1,0]")
    pk = [1]; pend = [(0, PK)]
    def flush():
        if pend:
            row, r = pend.pop()
            a(f"ds_write_b32 v{K_AW + (row >> 2)}, v{r} offset:{272*(row & 3)}")
    def put(row, src, neg):
        r = PK + (pk[0] % 6); pk[0] += 1
        a(f"v_cvt_pk_bf16_f32 v{r}, v{src}, {'-' if neg else ''}v{src+1}")
        if pend and pend[0][0] >> 2 == row >> 2:
            row0, r0 = pend.pop()
            a(f"ds_write2_b32 v{K_AW + (row >> 2)}, v{r0}, v{r} offset0:{68*(row0 & 3)} offset1:{68*(row & 3)}")
        else:
            flush(); pend.append((row, r))
    cmul_multi(a, [(W2, W1, W1), (V2, V8, V8), (G+2, G, W1)], TM)
    put(1, V8, True); put(2, V2, True)
    fa, fb = V8, V2
    for k in range(7):
        items = [(FA, fa, V2)]
        if k < 6: items.append((FB, fb, V2))
        if k < 3: items += [(G+4+4*k, G+4*k, W2), (G+6+4*k, G+2+4*k, W2)]
        cmul_multi(a, items, TM)
        put(3+2*k, FA, True)
        if k < 6: put(4+2*k, FB, True)
        fa, fb = FA, FB
    flush()
    a.drain()
    for ks in range(4): a(f"ds_read_b128 {vr(BF+4*ks,4)}, v{K_AR} offset:{64*ks}")
    if hook: hook()
    def tile(T):
        flush()
        a.drain()
        for ks in range(4): a(f"ds_read_b128 {vr(AF+4*ks,4)}, v{K_AR} offset:{64*ks}")
        a.defer([f"v_mfma_f32_16x16x32_bf16 {vr(ACC+4*T,4)}, {vr(AF+4*ks,4)}, {vr(BF+4*ks,4)}, {vr(ACC+4*T,4) if ks or rnd else 0}" for ks in range(4)], KGAP0)
    def mm(T): pass
    for g in range(8): put(g, G+2*g, False)
    cmul_multi(a, [(G+2*g, G+2*g, WW) for g in range(8)], TM)
    for g in range(8): put(8+g, G+2*g, False)
    tile(0)
    ev = [0, 2, 4, 6]
    cmul_multi(a, [(G+2*g, G+2*g, WW) for g in ev], TM)
    mm(0)
    for i, g in enumerate(ev): put(i, G+2*g, False)
    cmul_multi(a, [(G+2*g, G+2*g, WW) for g in ev], TM)
    for i, g in enumerate(ev): put(4+i, G+2*g, False)
    for al in range(4):
        cmul_multi(a, [(G, G, WW), (G+8, G+8, WW)], TM)
        put(8+2*al, G, False); put(9+2*al, G+8, False)
    tile(1)
    cmul_multi(a, [(G, G, WW), (W2, WW, WW)], TM)
    mm(1)
    cmul_multi(a, [(G+2, G, WW)], TM)
    put(0, G, False); put(1, G+2, False)
    for k in range(1, 4):
        cmul_multi(a, [(G, G, W2), (G+2, G+2, W2)], TM)
        put(2*k, G, False); put(2*k+1, G+2, False)
    cmul_multi(a, [(G, G, W2)], TM)
    put(8, G, False)
    tile(2)
    mm(2)

def kgen_table(a):
    PK = 98; ACC = K_ACC
    a(f"""s_sub_u32 s{T2}, s{S_W}, 5
s_mul_i32 s{T3}, s{T2}, {TBL_SZ}
s_add_u32 s{T3}, s{T3}, {L_TBL}
v_and_b32 v4, 15, v0
v_lshrrev_b32 v5, 4, v0
v_lshrrev_b32 v6, 1, v5
v_and_b32 v7, 1, v5
v_lshlrev_b32 v8, 8, v6
v_lshl_add_u32 v8, v7, 3, v8
v_lshl_add_u32 v8, v4, 4, v8
v_add_u32 v8, s{T3}, v8
v_lshlrev_b32 v9, 7, v5
v_lshl_add_u32 v9, v4, 3, v9
v_add_u32 v10, 4, v9
v_lshlrev_b32 v11, 7, v7
v_lshl_add_u32 v11, v4, 2, v11
v_add_u32 v11, 256, v11
v_add_u32 v12, 64, v11
v_cmp_lt_u32 vcc, 1, v5
v_lshlrev_b32 v13, 7, v5
v_lshl_add_u32 v13, v4, 1, v13
v_cndmask_b32 v9, v9, v11, vcc
v_cndmask_b32 v10, v10, v12, vcc
v_add_u32 v13, s{T3}, v13
v_add_u32 v9, s{T3}, v9
v_add_u32 v10, s{T3}, v10
v_mov_b32 v2, 0
v_mov_b32 v3, 0
v_mov_b32 v4, s{T3}""")
    a.drain()
    a("s_nop 7")
    for i in range(6): a(f"v_cvt_pk_bf16_f32 v{PK+i}, v{ACC+2*i}, v{ACC+2*i+1}")
    a(f"""ds_write_b64 v4, v[2:3]
ds_write_b64 v8, v[{PK}:{PK+1}] offset:8
ds_write_b32 v9, v{PK+2} offset:{8+512}
ds_write_b32 v10, v{PK+3} offset:{8+512}
ds_write_b16 v13, v{PK+4} offset:{8+1024}
ds_write_b16_d16_hi v13, v{PK+4} offset:{8+1024+32}
ds_write_b16 v13, v{PK+5} offset:{8+1024+64}
ds_write_b16_d16_hi v13, v{PK+5} offset:{8+1024+96}""")

def expand_index(a):
    AD = EXI; E = 60; LF = 66
    a(f"""s_sub_u32 s{T2}, s{S_W}, 4
s_lshl_b32 s{T3}, s{T2}, 9
s_sub_u32 s{T3}, 2048, s{T3}
v_lshlrev_b32 v4, 3, v0
v_sub_u32 v4, s{T3}, v4
v_cvt_f32_u32 v5, v4
s_mov_b32 s{T4}, {hx(L_TBL + 8 - 2*17024)}
s_mov_b32 s{T5}, {L_TBL + 8 + 256}
v_lshlrev_b32 v6, 1, v4
v_add_u32 v6, {L_TBL + 8}, v6""")
    for e in range(12):
        a(f"v_subrev_f32 v{LF+e}, {hx(f2u(float(e)))}, v5")
        if e >= 9: a(f"v_max_f32 v{LF+e}, 0, v{LF+e}")
    for k in range(6): a(f"v_cvt_pk_bf16_f32 v{E+k}, v{LF+2*k}, v{LF+2*k+1}")
    for e in range(12):
        a(f"v_mad_u32_u16 v{AD+e}, v{E+(e>>1)}, 2, s{T4} op_sel:[{e&1},0,0,0]")
        a(f"v_subrev_u32 v{LF+e}, {2*e}, v6")
    for e in range(12): a(f"v_med3_i32 v{AD+e}, v{AD+e}, v{LF+e}, s{T5}")

def expand(a, cfg):
    AD = EXI; O = 96
    E = lambda c: 60 + 12*c
    a(f"""s_sub_u32 s{T2}, s{S_W}, 4
s_lshl_b32 s{T3}, s{T2}, 10
s_add_u32 s{T3}, s{T3}, {L_CP}
v_add_u32 v4, s{T3}, v1""")
    for c in range(3):
        for e in range(12):
            a(f"ds_read_u16{'_d16_hi' if e & 1 else ''} v{E(c) + 6*(e & 1) + (e >> 1)}, v{AD+e} offset:{c*TBL_SZ}")
    for c in range(3):
        b = E(c)
        if not EXP128: a(f"v_add_u32 v5, {c*CP_CH + 2*CP_C}, v4\nv_add_u32 v6, {c*CP_CH + 3*CP_C}, v4")
        a(f"s_waitcnt lgkmcnt({min(15, 12*(2-c) + (4 if EXP128 else 6)*c)})")
        if not EXP128:
            for k in range(6): a(f"v_or_b32 v{b+k}, v{b+k}, v{b+6+k}")
            for k in range(5): a(f"v_alignbit_b32 v{O+k}, v{b+k+1}, v{b+k}, 16")
            a(f"""ds_write_b128 v4, {vr(b,4)} offset:{c*CP_CH}
ds_write2_b32 v5, v{b+1}, v{b+2} offset0:0 offset1:1
ds_write2_b32 v5, v{b+3}, v{b+4} offset0:2 offset1:3
ds_write_b128 v4, {vr(O,4)} offset:{c*CP_CH + CP_C}
ds_write2_b32 v6, v{O+1}, v{O+2} offset0:0 offset1:1
ds_write2_b32 v6, v{O+3}, v{O+4} offset0:2 offset1:3""")
        else:
            Y = 136; O1 = 140; O3 = 156
            for k in range(4): a(f"v_or_b32 v{Y+k}, v{b+k+1}, v{b+7+k}")
            for k in range(6): a(f"v_or_b32 v{b+k}, v{b+k}, v{b+6+k}")
            a(f"ds_write_b128 v4, {vr(Y,4)} offset:{c*CP_CH + 2*CP_C}")
            for k in range(4): a(f"v_alignbit_b32 v{O1+k}, v{b+k+1}, v{b+k}, 16")
            a(f"ds_write_b128 v4, {vr(b,4)} offset:{c*CP_CH}")
            for k in range(4): a(f"v_alignbit_b32 v{O3+k}, v{b+k+2}, v{b+k+1}, 16")
            a(f"ds_write_b128 v4, {vr(O1,4)} offset:{c*CP_CH + CP_C}\nds_write_b128 v4, {vr(O3,4)} offset:{c*CP_CH + 3*CP_C}")
    a(f"""s_cmp_lg_u32 s{S_W}, 5
s_cbranch_scc1 L_exp_done
v_lshrrev_b32 v5, 3, v0
v_mul_u32_u24 v6, {CP_CH}, v5
v_bfe_u32 v7, v0, 1, 2
v_mul_u32_u24 v7, {CP_C}, v7
v_and_b32 v8, 1, v0
v_lshl_add_u32 v7, v8, 4, v7
v_add_u32 v6, v6, v7
v_add_u32 v6, {L_CP + 4096}, v6
v_mov_b32 v8, 0
v_mov_b32 v9, 0
v_mov_b32 v10, 0
v_mov_b32 v11, 0
v_mul_u32_u24 v12, {TBL_SZ}, v0
v_add_u32 v12, {L_TBL + 8}, v12
v_mul_u32_u24 v13, {CP_CH}, v0
s_mov_b64 exec, 7
ds_read_u16 v12, v12
s_mov_b64 exec, 0xffffff
ds_write_b128 v6, v[8:11]
s_mov_b64 exec, 7
v_add_u32 v13, {L_CP + 4096}, v13
s_waitcnt lgkmcnt(0)
ds_write_b16 v13, v12
s_mov_b64 exec, -1""")
    a.label("L_exp_done")

def q_side(a, cfg):
    a(f"""s_setprio 2
s_waitcnt lgkmcnt(0)
s_load_dword s{S_NONCE}, s[{P_WS}:{P_WS+1}], {W_NONCE}""")
    srd(a, SA, P_X, 2048*1280)
    crit_loads(a)
    d_loads(a)
    stamp(a, cfg, 0)
    rest_x(a, "lo")
    srd(a, SWS, P_WS, WS_SZ)
    q_addrs(a)
    a(f"s_bitcmp1_b32 s{S_W}, 0\ns_cbranch_scc1 L_q_wa1")
    wq_items(a, 16, 4, True).flush(a)
    a("s_branch L_q_wa2")
    a.label("L_q_wa1")
    wq_items(a, 16, 4, False).flush(a)
    a.label("L_q_wa2")
    stamp(a, cfg, 22)
    conv_addrs(a, False)
    finish_nonce(a)
    a(f"""v_lshrrev_b32 v6, 4, v0
v_lshlrev_b32 v6, 3, v6
v_bfe_u32 v7, v0, 2, 2
v_add_u32 v6, v6, v7
v_mul_u32_u24 v6, 40, v6
v_and_b32 v7, 3, v0
v_lshl_add_u32 v6, v7, 3, v6
s_lshl_b32 s{T0}, s{S_W}, 4
s_add_u32 s{T0}, s{T0}, {L_WK}
v_add_u32 v6, s{T0}, v6
s_bitcmp1_b32 s{S_W}, 0
s_cbranch_scc1 L_q_wb1
s_waitcnt vmcnt(21)
s_branch L_q_wb2""")
    a.label("L_q_wb1")
    a("s_waitcnt vmcnt(19)")
    a.label("L_q_wb2")
    ev_signal(a, EV_CRIT)
    a(f"s_setprio {KVPRIO}")
    stamp(a, cfg, 24)
    a(f"s_bitcmp1_b32 s{S_W}, 0\ns_cbranch_scc1 L_q_odd")
    if KV1: a(f"s_cmp_eq_u32 s{S_W}, 2\ns_cbranch_scc1 L_q_w2")
    ev_wait(a, EV_CRIT, 0x0f)
    stamp(a, cfg, 1)
    kv_proj(a, cfg)
    a(f"s_waitcnt vmcnt({7 + KV1})")
    ev_signal(a, EV_X)
    a("s_branch L_q_tail")
    if KV1:
        a.label("L_q_w2")
        a("s_waitcnt vmcnt(6)")
        ev_signal(a, EV_X)
        a("s_branch L_q_tail")
    a.label("L_q_odd")
    a("s_waitcnt vmcnt(4)")
    ev_signal(a, EV_X)
    if PF2:
        srd(a, SB, P_WQ, 512*1280)
        a(f"""s_mul_i32 s{T0}, s{S_J}, 20480
s_lshr_b32 s{T1}, s{S_W}, 1
s_mul_i32 s{T1}, s{T1}, 10240
s_add_u32 s{T0}, s{T0}, s{T1}""")
        for i in range(10):
            if i in (4, 8): a(f"s_add_u32 s{T0}, s{T0}, 4096")
            a(f"buffer_load_dwordx4 v[204:207], v1, s[{SB}:{SB+3}], s{T0} offen offset:{1024*(i & 3)}")
    a.label("L_q_tail")
    a("s_setprio 0")
    tail_addrs(a.sub("q"))
    a("; CUT q_main")
    ev_wait(a, EV_X, 0x0f)
    stamp(a, cfg, 2)
    x_frags(a, 0)
    x_frags(a, 1)
    if PF2:
        a(f"s_bitcmp1_b32 s{S_W}, 0\ns_cbranch_scc1 L_q_fr1\ns_waitcnt vmcnt(0) lgkmcnt(0)\ns_branch L_q_fr2")
        a.label("L_q_fr1")
        a("s_waitcnt vmcnt(10) lgkmcnt(0)")
        a.label("L_q_fr2")
    else:
        a("s_waitcnt vmcnt(0) lgkmcnt(0)")
    ev_signal(a, EV_FR)
    a(f"s_cmp_lg_u32 s{S_W}, 0\ns_cbranch_scc1 L_q_nokv0")
    ev_wait(a, EV_FR, 0x0f)
    a(f"""v_lshlrev_b32 v3, 10, v0
s_lshl_b32 s{T0}, s2, 2
s_add_u32 s{T0}, s{T0}, {W_FKV}
s_mov_b64 exec, 0xff
buffer_store_dword v{V_NON}, v3, s[{SWS}:{SWS+3}], s{T0} offen sc1
s_mov_b64 exec, -1
s_branch L_q_go""")
    a.label("L_q_nokv0")
    ev_wait(a, EV_FR, 0x0f)
    a.label("L_q_go")
    a(f"s_setprio {QPRIO}")
    stamp(a, cfg, 26)
    ACC = 200
    RING = [176, 188, 16, 28]
    a(f"s_bitcmp1_b32 s{S_W}, 0\ns_cbranch_scc1 L_q_three")
    for nct in (2, 3):
        if nct == 3: a.label("L_q_three")
        dma = wq_items(a, 0, 16, nct == 2)
        a(f"v_add_u32 v6, 51200, v{A_WQ}")
        for grp, (n0, n1) in enumerate(((0, 4), (4, 12), (12, 20))):
            depth = 1 if grp == 0 else 2
            ring = RING[:2] if grp == 0 else [RING[0], RING[1], 16 if nct == 3 else 16]
            slot = lambda n: ring[(n - n0) % (depth + 1)]
            def reads(n, ct):
                s = ORDER[n]; b = slot(n) + 4*ct
                base, off = (A_WQ, 5120*s) if s < 10 else (6, 5120*(s - 10))
                return [f"ds_read_b64_tr_b16 {vr(b+2*hf,2)}, v{base} offset:{off + 1280*hf + 32*ct}" for hf in range(2)]
            if grp == 1:
                a("s_waitcnt lgkmcnt(0)")
                ev_signal(a, EV_WQA)
                if UDMA:
                    ev_wait(a, EV_WQA, 0x1f)
                    a(f"s_lshl_b32 s{T3}, s{S_W}, 10")
                    for c in range(3):
                        chan(a, T1, c)
                        a(f"""s_lshl_b32 s{T1}, s{T1}, 12
s_add_u32 s{T1}, s{T1}, s{T3}
s_add_u32 m0, s{T3}, {L_UT + 512 + UT_CH*c}
s_add_u32 s{T1}, s{T1}, {W_UT}
buffer_load_dwordx4 v1, s[{SWS}:{SWS+3}], s{T1} offen sc1 lds""")
                dma.flush(a)
                stamp(a, cfg, 3)
                attn_init(a)
            if grp >= 1:
                a(f"s_waitcnt vmcnt({(12 if nct == 2 else 8)*(2-grp)})")
                if grp == 2 and nct == 2:
                    a(f"s_cmp_lg_u32 s{S_W}, 2\ns_cbranch_scc1 L_q_kvok")
                    poll(a, "kv", 7, 4, 208 + 12, pre=True)
                    a.label("L_q_kvok")
                ev_signal(a, EV_WQ + grp - 1)
                ev_wait(a, EV_WQ + grp - 1, 0x0f)
                if grp == 1 and nct == 2:
                    a(f"""s_cmp_lg_u32 s{S_W}, 2
s_cbranch_scc1 L_q_nopoll
s_lshl_b32 s{T0}, s{S_XCD}, 10
s_add_u32 s{T0}, s{T0}, {W_FKV}
v_add_u32 v7, s{T0}, v1
buffer_load_dwordx4 v[220:223], v7, s[{SWS}:{SWS+3}], 0 offen sc1""")
                    a.label("L_q_nopoll")
                if grp == 2:
                    a(f"""s_lshl_b32 s{S_DM}, s{S_W}, 10
s_add_u32 s{S_DO}, s{S_DM}, {W_KV}""")
                    dma = Dma([f"s_mov_b32 m0, s{S_DM}\ns_add_u32 s{S_DM}, s{S_DM}, 4096\nbuffer_load_dwordx4 v1, s[{SWS}:{SWS+3}], s{S_DO} offen sc1 lds\ns_add_u32 s{S_DO}, s{S_DO}, 4096"] * 10)
            if grp == 2: stamp(a, cfg, 25)
            for d in range(depth):
                for ct in range(nct):
                    for r in reads(n0 + d, ct): a(r)
            for n in range(n0, n1):
                s = ORDER[n]; b = slot(n)
                for ct in range(nct):
                    after = 2*(nct - 1 - ct)
                    for m in range(n + 1, n + depth):
                        if m < n1: after += 2*nct
                    if n + depth < n1: after += 2*ct
                    a(f"s_waitcnt lgkmcnt({after})")
                    for i in range(2):
                        acc = ACC + 12*i + 4*ct
                        a(f"v_mfma_f32_16x16x32_bf16 {vr(acc,4)}, {vr(b+4*ct,4)}, {vr(xf(i, s),4)}, {vr(acc,4) if n else 0}")
                        if grp == 0 and i == 0 and (n*nct + ct) < G0DMA: dma.pop(a)
                        if grp == 2 and i == 0 and ct < 2: dma.pop(a)
                    if n + depth < n1:
                        for r in reads(n + depth, ct): a(r)
        stamp(a, cfg, 6)
        a(f"s_setprio {Q2PRIO}")
        ev_wait(a, EV_EXP, 0xf0)
        for i in range(2):
            for ct in range(nct):
                acc = ACC + 12*i + 4*ct
                a(f"v_cvt_pk_bf16_f32 v{acc}, v{acc}, v{acc+1}\nv_cvt_pk_bf16_f32 v{acc+1}, v{acc+2}, v{acc+3}")
                a(f"ds_write_b64 v{Q_W}, {vr(acc,2)} offset:{2560*i + 32*ct}")
        if nct == 2: a("s_branch L_q_kv")
    a.label("L_q_kv")
    stamp(a, cfg, 7)
    a("s_waitcnt vmcnt(0) lgkmcnt(0)")
    ev_signal(a, EV_QD)
    if cfg.nonce_update:
        a(f"""s_or_b32 s{T2}, s2, s{S_W}
s_cmp_lg_u32 s{T2}, 0
s_cbranch_scc1 L_q_nn
v_mov_b32 v2, {W_NONCE}
s_mov_b64 exec, 1
buffer_store_dword v{V_NON}, v2, s[{SWS}:{SWS+3}], 0 offen
s_mov_b64 exec, -1""")
        a.label("L_q_nn")
    a("s_setprio 0")
    ev_wait(a, EV_QD, 0x0f)
    q_reads(a)

def k_side(a, cfg):
    UT2 = [104, 120, 198]
    a(f"""s_waitcnt lgkmcnt(0)
s_load_dword s{S_NONCE}, s[{P_WS}:{P_WS+1}], {W_NONCE}
s_cmp_eq_u32 s{S_W}, 4
s_cbranch_scc1 L_k_u""")
    kgen_loads(a)
    d_loads(a)
    if PF:
        srd(a, SB, P_WQ, 512*1280)
        a(f"""s_mul_i32 s{T0}, s{S_J}, 20480
s_sub_u32 s{T1}, s{S_W}, 5
s_mul_i32 s{T1}, s{T1}, 7168
s_add_u32 s{T0}, s{T0}, s{T1}
s_add_u32 s{T1}, s{T0}, 4096""")
        for i in range(7):
            a(f"buffer_load_dwordx4 v[200:203], v1, s[{SB}:{SB+3}], s{T0 if i < 4 else T1} offen offset:{1024*(i & 3)}")
    a.label("L_k_nopf")
    srd(a, SWS, P_WS, WS_SZ)
    a("s_call_b64 s[92:93], L_sub_kaddr")
    stamp(a, cfg, 22)
    kgen_pre(a)
    a("; CUT k_gen")
    a(f"s_setprio {KPRIO}\ns_waitcnt vmcnt({7 if PF else 0})")
    stamp(a, cfg, 24)
    sp = Spread(a, KGAP)
    kgen_round(sp, 0)
    if not cfg.few: stamp(a, cfg, 1)
    kgen_round(sp, 1)
    kgen_table(sp)
    a("s_branch L_k_done")
    a("; CUT u_early")
    a.label("L_k_u")
    a("s_setprio 3")
    srd(a, SB, P_U, 2048*1280)
    for i in range(5): div10_offsets(a, 8+i, None, 64*i, 2, False)
    a(f"""s_mul_i32 s{T2}, s{S_J}, {64*1280}
s_mul_i32 s{T3}, s{S_XCD}, 160
s_add_u32 s{T2}, s{T2}, s{T3}
s_add_u32 s{T3}, s{T2}, 40960
s_mov_b32 m0, {L_UST}
s_nop 0""")
    for i in range(10):
        a(f"buffer_load_dwordx4 v{8+i%5}, s[{SB}:{SB+3}], s{T2 if i < 5 else T3} offen lds")
        if i < 9: a(f"s_add_u32 m0, m0, 1024\ns_nop 0")
    srd(a, SWS, P_WS, WS_SZ)
    d_loads(a)
    stamp(a, cfg, 22)
    a(f"""s_lshl_b32 s{T0}, s{S_W}, 2
s_add_u32 s{T0}, s{T0}, {L_EV}
v_mov_b32 v{E_W}, s{T0}
v_and_b32 v2, 3, v0
v_lshrrev_b32 v3, 4, v0
v_lshl_add_u32 v2, v3, 2, v2
v_and_b32 v3, 7, v2
v_lshrrev_b32 v4, 3, v2
v_bfe_u32 v5, v0, 2, 2
v_lshl_add_u32 v5, v3, 3, v5
v_mul_u32_u24 v5, 160, v5
v_lshl_add_u32 v5, v4, 3, v5
v_add_u32 v5, {L_UST}, v5
v_and_b32 v2, 3, v0
v_lshl_add_u32 v6, v4, 2, v2
v_bfe_u32 v3, v0, 2, 3
v_xor_b32 v7, v3, v6
v_lshlrev_b32 v6, 7, v6
v_lshl_add_u32 v6, v7, 4, v6
v_add_u32 v6, {L_UST}, v6
v_lshrrev_b32 v7, 3, v0
v_and_b32 v3, 7, v0
v_xor_b32 v3, v3, v7
v_lshlrev_b32 v7, 12, v7
v_lshl_add_u32 v7, v3, 4, v7
v_add_u32 v8, {L_UST}, v1
s_mul_i32 s{T2}, s{S_XCD}, {80*4096}
s_lshl_b32 s{T3}, s{S_J}, 7
s_add_u32 s{T2}, s{T2}, s{T3}
s_add_u32 s{T2}, s{T2}, {W_UT}""")
    finish_nonce(a)
    a("s_waitcnt vmcnt(0)")
    stamp(a, cfg, 24)
    UR = 60
    for i in range(10):
        for hf in range(2):
            a(f"ds_read_b64_tr_b16 {vr(UR+4*i+2*hf,2)}, v5 offset:{16*i + 640*hf}")
    a("s_waitcnt lgkmcnt(0)")
    for i in range(10): a(f"ds_write_b128 v6, {vr(UR+4*i,4)} offset:{1024*i}")
    for i in range(10): a(f"ds_read_b128 {vr(UR+40+4*i,4)}, v8 offset:{1024*i}")
    for k in range(10):
        a(f"s_waitcnt lgkmcnt({9-k})\nbuffer_store_dwordx4 {vr(UR+40+4*k,4)}, v7, s[{SWS}:{SWS+3}], s{T2} offen sc1\ns_add_u32 s{T2}, s{T2}, 32768")
    ev_signal(a, EV_TBL)
    stamp(a, cfg, 1)
    a(f"""s_lshl_b32 s{T0}, s{S_XCD}, 8
s_lshl_b32 s{T2}, s{S_J}, 2
s_add_u32 s{T0}, s{T0}, s{T2}
s_add_u32 s{T0}, s{T0}, {W_FU}
v_mov_b32 v7, 0
s_waitcnt vmcnt(0)
s_mov_b64 exec, 1
buffer_store_dword v{V_NON}, v7, s[{SWS}:{SWS+3}], s{T0} offen sc1
s_mov_b64 exec, -1
s_setprio 0""")
    a("; CUT u_main")
    a("s_call_b64 s[92:93], L_sub_kaddr")
    ev_wait(a, UEV, UMASK)
    a(f"""s_lshl_b32 s{T0}, s{S_XCD}, 8
s_add_u32 s{T0}, s{T0}, {W_FU}
v_lshl_add_u32 v3, v0, 2, s{T0}""")
    poll(a, "u", 3, 1, 4, lanes=32, sleep=USLEEP)
    stamp(a, cfg, 5)
    if UDMA: ev_signal(a, EV_WQA)
    for c in range(0 if UDMA else 3):
        chan(a, T0, c)
        a(f"s_lshl_b32 s{T0}, s{T0}, 12\ns_add_u32 s{T0}, s{T0}, {W_UT}")
        for i in range(4):
            a(f"buffer_load_dwordx4 {vr(UT2[c]+4*i,4)}, v1, s[{SWS}:{SWS+3}], s{T0} offen offset:{1024*i} sc1")
    a(f"s_setprio {KPRIO}\ns_branch L_k_exp")
    a.label("L_k_done")
    a("s_waitcnt lgkmcnt(0)")
    ev_signal(a, EV_TBL)
    stamp(a, cfg, 2)
    a.label("L_k_exp")
    ev_wait(a, EV_TBL, 0xf1 if KV1 else 0xf5)
    stamp(a, cfg, 26)
    expand(a, cfg)
    a("s_waitcnt lgkmcnt(0)")
    ev_signal(a, EV_EXP)
    stamp(a, cfg, 3)
    a(f"s_cmp_eq_u32 s{S_W}, 5\ns_cbranch_scc1 L_k_c0\ns_cmp_eq_u32 s{S_W}, 6\ns_cbranch_scc1 L_k_c0")
    ev_wait(a, EV_WQA, 0x0f)
    a(f"s_cmp_eq_u32 s{S_W}, 4\ns_cbranch_scc1 {'L_k_c0' if UDMA else 'L_k_ut'}")
    a(f"""v_lshlrev_b32 v2, 3, v0
v_add_u32 v2, {L_UT}, v2
v_mov_b32 v4, 0
v_mov_b32 v5, 0""")
    for c in range(3): a(f"ds_write_b64 v2, v[4:5] offset:{UT_CH*c}")
    a("s_branch L_k_c0")
    a.label("L_k_ut")
    if not UDMA: a(f"v_add_u32 v2, {L_UT + 512}, v1\ns_waitcnt vmcnt(0)")
    for c in range(0 if UDMA else 3):
        for i in range(4): a(f"ds_write_b128 v2, {vr(UT2[c]+4*i,4)} offset:{UT_CH*c + 1024*i}")
    a.label("L_k_c0")
    a("s_waitcnt lgkmcnt(0)")
    ev_signal(a, EV_C0)
    if UDMA: ev_wait(a, EV_WQ, 0x0f)
    ev_wait(a, EV_C0, 0xf0)
    stamp(a, cfg, 9)
    a(f"s_setprio {CPRIO}")
    conv(a, cfg)
    a("s_waitcnt lgkmcnt(0)")
    ev_signal(a, EV_C2, 5)
    ev_wait(a, EV_C2, 0xf0, 5)
    stamp(a, cfg, 28)
    y_epilogue(a, cfg)
    a(f"v_mov_b32 v5, s{S_NONCE}")
    ev_wait(a, EV_QD, 0x0f, 5)
    q_reads(a)
    a("s_setprio 3")

def k_addrs(a):
    a.label("L_sub_kaddr")
    expand_index(a)
    typed_offset(a)
    conv_addrs(a, True)
    tail_addrs(a.sub("k"))
    attn_init(a)
    finish_nonce(a.sub("k"), False)
    a("s_setpc_b64 s[92:93]")

def q_reads(a):
    a(f"""ds_read2_b64 {vr(AR.QA,4)}, v{Q_R} offset0:0 offset1:1
ds_read2_b64 {vr(AR.QB,4)}, v{Q_R} offset0:10 offset1:11
ds_read_b64 {vr(AR.Q4,2)}, v{Q_R4} offset:32""")
    attn_clear(a)

def join(a, cfg):
    a.label("L_join")
    srd(a, SOUT, P_OUT, 2048*1280*2)
    stamp(a, cfg, 11)

class AR: pass
AR.S = [8, 40]; AR.CZ = 72; AR.OA = 104; AR.OB = 120
AR.K16 = 136; AR.K4 = 140; AR.V0 = 144; AR.V1 = 148
AR.IDX = 152; AR.aK16 = 153; AR.aK4 = 154; AR.aV = 155
AR.QA = 156; AR.QB = 160; AR.Q4 = 164

def attn_init(a):
    R = AR
    a(f"""s_mul_i32 s{T0}, s{S_KH}, {BLK}
v_add_u32 v{R.aK16}, s{T0}, v1
v_lshl_add_u32 v{R.aK4}, v0, 3, s{T0}
v_and_b32 v2, 31, v0
v_lshrrev_b32 v3, 5, v0
v_mul_u32_u24 v3, 320, v3
v_lshl_add_u32 v2, v2, 4, v3
v_add_u32 v{R.aV}, s{T0}, v2
v_mov_b32 v{R.IDX}, 0xdddd""")
    for i in range(8): a(f"v_mov_b32 v{R.V0+i}, 0")
    a(f"s_mov_b32 exec_lo, 0x00100000\ns_mov_b32 exec_hi, 0x00100000")
    for i in range(8): a(f"v_mov_b32 v{R.V0+i}, 0x3f803f80")
    a("s_mov_b64 exec, -1")

def attn_clear(a):
    R = AR
    for i in range(8): a(f"v_mov_b32 v{R.S[1]+24+i}, 0")
    a(f"""s_nop 0
v_mfma_f32_32x32x16_bf16 {vr(R.OA,16)}, {vr(R.S[1]+24,4)}, {vr(R.S[1]+24,4)}, 0
v_mfma_f32_32x32x16_bf16 {vr(R.OB,16)}, {vr(R.S[1]+24,4)}, {vr(R.S[1]+24,4)}, 0""")

class Dma:
    def __init__(s, items): s.items = list(items)
    def pop(s, a, n=1):
        for _ in range(n):
            if s.items: a(s.items.pop(0))
    def flush(s, a): s.pop(a, len(s.items))

S_DM = 90; S_DO = 91
def kv_dma_items(a, first, n):
    a(f"""s_lshl_b32 s{S_DM}, s{S_W}, 10
s_add_u32 s{S_DM}, s{S_DM}, {first*1024}
s_add_u32 s{S_DO}, s{S_DM}, {W_KV}""")
    return Dma([f"s_mov_b32 m0, s{S_DM}\ns_add_u32 s{S_DM}, s{S_DM}, 8192\nbuffer_load_dwordx4 v1, s[{SWS}:{SWS+3}], s{S_DO} offen sc1 lds\ns_add_u32 s{S_DO}, s{S_DO}, 8192"] * n)

TILES = ([2, 6, 7], [0, 1, 3, 4, 5])
def conv(a, cfg):
    ACC = [8, 40]; FA = [72, 160]; FB = [104, 192]
    def reads(task, i):
        st = task & 1
        va, vb, d = (C_A, C_B, 192 - 64*task) if task < 4 else (C_A2, C_B2, 192 - 64*(task - 4))
        return [f"ds_read_b128 {vr(FB[st]+4*i,4)}, v{vb} offset:{512*i + d}",
                f"ds_read_b64 {vr(FA[st]+4*i,2)}, v{va} offset:{512*(7-i) + d}",
                f"ds_read_b64 {vr(FA[st]+4*i+2,2)}, v{va} offset:{512*(7-i) + 8 + d}"]
    def run(task, pend, tiles, nxt):
        st = task & 1; acc = ACC[task >= 4]
        queue = [(r, task) for r in pend] + ([(r, task+1) for i in range(8) for r in reads(task+1, i)] if nxt else [])
        issued_own = 24 - len(pend); issued_next = 0
        total = sum(i + 1 for i in tiles); nm = 0
        for i in tiles:
            while issued_own < 3*(i+1):
                a(queue.pop(0)[0]); issued_own += 1
            a(f"s_waitcnt lgkmcnt({min(15, issued_own - 3*(i+1) + issued_next)})")
            for j in range(i + 1):
                c = "0" if task in (0, 4) and j == 0 else vr(acc+4*i, 4)
                a(f"v_mfma_f32_16x16x32_bf16 {vr(acc+4*i,4)}, {vr(FA[st]+4*j,4)}, {vr(FB[st]+4*(i-j),4)}, {c}")
                nm += 1
                for rep in range(1 if total > 30 else 2):
                    if queue and (queue[0][1] == task or total - nm < 30):
                        if issued_own + issued_next - 3*(i+1) < 14 or queue[0][1] != task:
                            r, t = queue.pop(0); a(r)
                            if t == task: issued_own += 1
                            else: issued_next += 1
        return [r for r, t in queue]
    allr = [r for i in range(8) for r in reads(0, i)]
    for r in allr[:15]: a(r)
    pend = allr[15:]
    for task in range(4): pend = run(task, pend, range(8), True)
    a(f"s_bitcmp1_b32 s{S_J}, 0\ns_cbranch_scc1 L_conv_odd")
    for par in range(2):
        if par: a.label("L_conv_odd")
        p = run(4, pend, TILES[par], True)
        run(5, p, TILES[par], False)
        if par == 0: a("s_branch L_conv_done")
    a.label("L_conv_done")
    stamp(a, cfg, 10)
    a(f"""s_sub_u32 s{T0}, s{S_W}, 4
s_lshl_b32 s{T1}, s{T0}, 13
s_add_u32 s{T1}, s{T1}, {L_P32}
s_lshl_b32 s{T0}, s{T0}, 12
s_add_u32 s{T0}, s{T0}, {L_P16}
v_add_u32 v3, s{T1}, v{C_PW}
v_add_u32 v4, s{T0}, v{C_PW}
v_mov_b32 v5, s{S_NONCE}
s_waitcnt lgkmcnt(0)""")
    ev_signal(a, EV_C1, 5)
    for k in range(16): a(f"v_cvt_pk_bf16_f32 v{FA[0]+k}, v{ACC[1]+2*k}, v{ACC[1]+2*k+1}")
    ev_wait(a, EV_C1, 0xf0, 5)
    for i in range(8): a(f"ds_write_b128 v3, {vr(ACC[0]+4*i,4)} offset:{1024*i}")
    for m in range(4): a(f"ds_write_b128 v4, {vr(FA[0]+4*m,4)} offset:{1024*m}")

def y_epilogue(a, cfg):
    a(f"""s_sub_u32 s{T3}, s{S_W}, 4
s_lshl_b32 s{T0}, s{T3}, 11
s_add_u32 s{T0}, s{T0}, {L_P32}
v_add_u32 v2, s{T0}, v{C_PR}
s_lshl_b32 s{T0}, s{T3}, 10
s_add_u32 s{T0}, s{T0}, {L_P16}
v_add_u32 v3, s{T0}, v{C_PR}""")
    B = lambda t, c: 8 + 48*t + 16*c if not (t == 1) else 72 + 16*c
    B = lambda t, c: [[8, 24, 40], [72, 88, 166]][t][c]
    for t in range(2):
        for c in range(2):
            b = B(t, c)
            for n in range(2): a(f"ds_read_b128 {vr(b+4*n,4)}, v2 offset:{8192*(2*c+n) + 1024*t}")
            a(f"ds_read_b64 {vr(b+12,2)}, v{C_UL} offset:{UT_CH*c + 512*t}")
        b2 = B(t, 2)
        for n in range(4): a(f"ds_read_b64 {vr(b2+2*n,2)}, v3 offset:{4096*n + 8*t}")
        a(f"ds_read_b64 {vr(b2+12,2)}, v{C_UL} offset:{UT_CH*2 + 512*t}")
    m = [sum(1 << t for t in TILES[p]) for p in range(2)]
    a(f"""s_lshl_b32 s{T1}, s{S_CH0}, 12
s_add_u32 s{T1}, s{T1}, {W_YT}
s_lshl_b32 s{T4}, s{S_CH2}, 12
s_add_u32 s{T4}, s{T4}, {W_YT}
s_mov_b32 s{T5}, {m[0]}
s_bitcmp1_b32 s{S_J}, 0
s_cselect_b32 s{T5}, {m[1]}, s{T5}
s_lshl_b32 s{T3}, s{T3}, 1
s_lshr_b32 s{T5}, s{T5}, s{T3}""")
    for c in range(3):
        chan(a, T2, c)
        a(f"""s_and_b32 s{T2}, s{T2}, 1
s_lshl_b32 s{T2}, s{T2}, 4
s_lshr_b32 s{S_D0+c}, s{S_D0+c}, s{T2}
s_lshl_b32 s{S_D0+c}, s{S_D0+c}, 16""")
    left = 22
    for t in range(2):
        for c in range(3):
            if c == 2: a(f"s_bitcmp0_b32 s{T5}, {t}\ns_cbranch_scc1 L_y_skip{t}")
            b = B(t, c)
            left -= 3 if c < 2 else 5
            a(f"s_waitcnt lgkmcnt({min(15, left)})")
            a(f"""v_lshlrev_b32 v{b+14}, 16, v{b+12}
v_and_b32 v{b+12}, 0xffff0000, v{b+12}
v_lshlrev_b32 v{b+15}, 16, v{b+13}
v_and_b32 v{b+13}, 0xffff0000, v{b+13}""")
            us = [b+14, b+12, b+15, b+13]
            if c < 2:
                for j in range(4): a(f"v_add_f32 v{b+j}, v{b+j}, v{b+4+j}")
                for j in range(4): a(f"v_fma_f32 v{b+j}, v{us[j]}, s{S_D0+c}, v{b+j}")
                r = b
            else:
                r = b + 8
                for j in range(4): a(f"v_mul_f32 v{r+j}, s{S_D0+c}, v{us[j]}")
                for n in range(4):
                    for h in range(2):
                        src = b + 2*n + h
                        a(f"v_lshlrev_b32 v4, 16, v{src}\nv_and_b32 v5, 0xffff0000, v{src}\nv_add_f32 v{r+2*h}, v{r+2*h}, v4\nv_add_f32 v{r+2*h+1}, v{r+2*h+1}, v5")
            a(f"""v_cvt_pk_bf16_f32 v{b+4}, v{r}, v{r+1}
v_cvt_pk_bf16_f32 v{b+5}, v{r+2}, v{r+3}
{f"s_add_u32 s{T2}, s{T1}, {4096*c}" if c < 2 else f"s_mov_b32 s{T2}, s{T4}"}
buffer_store_dwordx2 {vr(b+4,2)}, v{C_UG}, s[{SWS}:{SWS+3}], s{T2} offen offset:{512*t} sc1""")
        a.label(f"L_y_skip{t}")
    a("s_waitcnt lgkmcnt(0)")

def tail_addrs(a):
    w_tr_addr(a, A_W, 6)
    a(f"""v_and_b32 v6, 3, v0
v_lshrrev_b32 v7, 4, v0
v_lshl_add_u32 v6, v7, 2, v6
v_lshrrev_b32 v7, 1, v6
v_lshlrev_b32 v7, 3, v7
v_bfe_u32 v{A_YR}, v0, 2, 2
v_add_u32 v7, v7, v{A_YR}
v_lshlrev_b32 v7, 7, v7
v_and_b32 v6, 1, v6
v_lshl_add_u32 v7, v6, 3, v7
s_lshl_b32 s{T0}, s{S_W}, 4
s_add_u32 s{T0}, s{T0}, {L_YT}
v_add_u32 v{A_YR}, s{T0}, v7
v_lshrrev_b32 v6, 2, v0
v_and_b32 v7, 1, v6
v_and_b32 v{A_YW}, 3, v0
v_lshl_add_u32 v7, v7, 2, v{A_YW}
v_mul_u32_u24 v7, 160, v7
v_lshrrev_b32 v6, 1, v6
v_lshl_add_u32 v7, v6, 4, v7
s_mul_i32 s{T0}, s{S_W}, 1280
s_add_u32 s{T0}, s{T0}, {L_YS}
v_add_u32 v{A_YW}, s{T0}, v7
v_add_u32 v{A_YB}, s{T0}, v1""")
    for d, add in ((A_YG0, 0), (A_YG1, 64)):
        a(f"""v_add_u32 v6, {add}, v0
v_mul_u32_u24 v7, 6554, v6
v_lshrrev_b32 v7, 16, v7
v_mul_u32_u24 v{d}, 10, v7
v_sub_u32 v6, v6, v{d}
v_mul_u32_u24 v7, 2560, v7
v_lshl_add_u32 v{d}, v6, 4, v7""")
    a(f"""s_mul_i32 s{T0}, s{S_W}, {OT_SZ}
s_add_u32 s{T0}, s{T0}, {L_OT}
v_and_b32 v6, 15, v0
v_mul_u32_u24 v6, 80, v6
v_bfe_u32 v7, v0, 4, 1
v_mul_u32_u24 v7, 40, v7
v_add3_u32 v7, v6, v7, s{T0}
v_lshrrev_b32 v{A_OW}, 5, v0
v_lshl_add_u32 v{A_OW}, v{A_OW}, 3, v7
v_lshrrev_b32 v7, 4, v0
v_lshl_add_u32 v6, v7, 4, v6
v_add_u32 v{A_OB}, s{T0}, v6
s_lshl_b32 s{T0}, s{S_HG}, 1
s_add_u32 s{T0}, s{T0}, s{S_KH}
s_mul_i32 s{T0}, s{T0}, 1280
s_lshl_b32 s{T2}, s{S_RB}, 2
s_add_u32 s{T2}, s{T2}, s{S_RT}
s_mul_i32 s{T2}, s{T2}, 20480
s_add_u32 s{T0}, s{T0}, s{T2}
s_add_u32 s{T0}, s{T0}, {W_O}
v_add_u32 v{A_OG}, s{T0}, v1
s_mul_i32 s{T0}, s{S_W}, 3072
s_add_u32 s{T0}, s{T0}, {L_XCH}
v_add_u32 v{A_XW}, s{T0}, v1
s_xor_b32 s{T0}, s{S_W}, 4
s_mul_i32 s{T0}, s{T0}, 3072
s_add_u32 s{T0}, s{T0}, {L_XCH}
v_add_u32 v{A_XR}, s{T0}, v1
v_lshrrev_b32 v6, 3, v0
v_lshlrev_b32 v6, 12, v6
v_and_b32 v7, 7, v0
v_lshl_add_u32 v{A_YD}, v7, 4, v6
s_lshl_b32 s{T0}, s{S_RB}, 8
s_add_u32 s{T0}, s{T0}, {W_FO}
v_lshl_add_u32 v{A_FO}, v0, 2, s{T0}
s_mul_i32 s{T0}, s{S_W}, {OT_SZ}
s_add_u32 s{T0}, s{T0}, {L_OT}
v_and_b32 v6, 15, v0
s_mul_i32 s{T3}, s{S_KH}, 32
s_sub_u32 s{T3}, 96, s{T3}
v_mul_u32_u24 v6, s{T3}, v6
v_lshrrev_b32 v7, 4, v0
v_lshl_add_u32 v6, v7, 3, v6
v_add_u32 v{A_PW}, s{T0}, v6
s_cmp_eq_u32 s{S_KH}, 0
s_cbranch_scc0 L_ta_hi
v_mul_u32_u24 v6, 10923, v0
v_lshrrev_b32 v6, 16, v6
v_mul_u32_u24 v7, 6, v6
v_sub_u32 v7, v0, v7
v_mul_u32_u24 v6, 2560, v6
v_lshl_add_u32 v{A_PG0}, v7, 4, v6
v_add_u32 v7, 64, v0
v_mul_u32_u24 v6, 10923, v7
v_lshrrev_b32 v6, 16, v6
v_mul_u32_u24 v{A_PG1}, 6, v6
v_sub_u32 v7, v7, v{A_PG1}
v_mul_u32_u24 v6, 2560, v6
v_lshl_add_u32 v{A_PG1}, v7, 4, v6
s_branch L_ta_done""")
    a.label("L_ta_hi")
    a(f"""v_lshrrev_b32 v6, 2, v0
v_mul_u32_u24 v6, 2560, v6
v_and_b32 v7, 3, v0
v_lshl_add_u32 v6, v7, 4, v6
v_add_u32 v{A_PG0}, 96, v6
v_mov_b32 v{A_PG1}, 0""")
    a.label("L_ta_done")

def attn_half(a, cur, par, oK16, oV0, oV1, oK4, cz, extra=None):
    R = AR; S = R.S[cur]; N = R.S[1-cur]
    e = lambda k: a(f"v_exp_f32 v{S+k}, v{S+k} ; PHYS")
    x = extra if extra else (lambda: None)
    def vread(dst, off):
        a(f"s_mov_b64 exec, s[{VM}:{VM+1}]\nds_read_b128 {vr(dst,4)}, v{R.aV} offset:{off}\ns_mov_b64 exec, -1")
    a("s_waitcnt lgkmcnt(1)")
    a(f"v_mfma_f32_32x32x16_bf16 {vr(N,16)}, {vr(R.K16,4)}, {vr(R.QA,4)}, {vr(R.CZ,16) if cz else 0}")
    for k in range(0, 4): e(k)
    a(f"v_smfmac_f32_32x32x32_bf16 {vr(R.OB,16)}, {vr(R.V1,4)}, {vr(N+24,8)}, v{R.IDX}")
    vread(R.V1, oV1)
    for k in range(4, 8): e(k)
    a(f"v_mfma_f32_32x32x16_bf16 {vr(N+16,16)}, {vr(R.K16,4)}, {vr(R.QB,4)}, {vr(R.CZ+16,16) if cz else 0}")
    a(f"ds_read_b128 {vr(R.K16,4)}, v{R.aK16} offset:{oK16}")
    for k in range(8, 12): e(k)
    a("s_waitcnt lgkmcnt(2)")
    a(f"v_smfmac_f32_32x32x32_bf16 {vr(R.OA,16)}, {vr(R.V0,4)}, {vr(S,8)}, v{R.IDX}")
    x()
    for k in range(12, 16): e(k)
    a(f"v_mfma_f32_32x32x4bf16_1k {vr(N,32)}, {vr(R.K4,2)}, {vr(R.Q4,2)}, {vr(N,32)} cbsz:1 abid:{1-par} ; PHYS")
    if oK4 is not None: a(f"ds_read_b64 {vr(R.K4,2)}, v{R.aK4} offset:{oK4}")
    for k in range(16, 20): e(k)
    x()
    for k in range(20, 24): e(k)
    a(f"s_waitcnt lgkmcnt({1 + (oK4 is not None)})")
    a(f"v_smfmac_f32_32x32x32_bf16 {vr(R.OA,16)}, {vr(R.V1,4)}, {vr(S+8,8)}, v{R.IDX}")
    for k in range(24, 28): e(k)
    a(f"v_smfmac_f32_32x32x32_bf16 {vr(R.OB,16)}, {vr(R.V0,4)}, {vr(S+16,8)}, v{R.IDX}")
    vread(R.V0, oV0)
    x()
    for k in range(28, 32): e(k)

def attn_first(a, cz):
    R = AR
    a(f"""ds_read_b128 {vr(R.K16,4)}, v{R.aK16}
ds_read_b64 {vr(R.K4,2)}, v{R.aK4} offset:2048
s_waitcnt lgkmcnt(0)
v_mfma_f32_32x32x16_bf16 {vr(R.S[0],16)}, {vr(R.K16,4)}, {vr(R.QA,4)}, {vr(R.CZ,16) if cz else 0}
v_mfma_f32_32x32x16_bf16 {vr(R.S[0]+16,16)}, {vr(R.K16,4)}, {vr(R.QB,4)}, {vr(R.CZ+16,16) if cz else 0}
ds_read_b128 {vr(R.K16,4)}, v{R.aK16} offset:1024
s_mov_b64 exec, s[{VM}:{VM+1}]
ds_read_b128 {vr(R.V0,4)}, v{R.aV} offset:2560
s_mov_b64 exec, -1
s_nop 7
v_mfma_f32_32x32x4bf16_1k {vr(R.S[0],32)}, {vr(R.K4,2)}, {vr(R.Q4,2)}, {vr(R.S[0],32)} cbsz:1 abid:0
s_nop 15
s_nop 2""")

def attn_body(a, cz, extra=None, prio=True, mid=None):
    R = AR; ST = 2*BLK
    for b in range(4):
        if b == 3 and mid: mid()
        base = b*ST; nxt = base + ST
        if prio is True: a(f"s_setprio {3-b}")
        elif prio and prio[b] is not None: a(f"s_setprio {prio[b]}")
        attn_half(a, 0, 0, nxt, base + 2560 + 1280, base + 2560 + 640, nxt + 2048, cz, extra)
        attn_half(a, 1, 1, nxt + 1024, nxt + 2560, base + 2560 + 1920, None, cz, extra)
    a(f"""v_add_u32 v{R.aK16}, {4*ST}, v{R.aK16}
v_add_u32 v{R.aK4}, {4*ST}, v{R.aK4}
v_add_u32 v{R.aV}, {4*ST}, v{R.aV}""")

def attention(a, cfg):
    R = AR
    dma = kv_dma_items(a, 40, 5)
    attn_first(a, False)
    stamp(a, cfg, 12)
    mid0 = lambda: a(f"""s_lshl_b32 s{T0}, s{S_XCD}, 10
s_lshl_b32 s{T1}, s{S_J}, 5
s_add_u32 s{T0}, s{T0}, s{T1}
s_lshl_b32 s{T1}, s{S_W}, 2
s_add_u32 s{T0}, s{T0}, s{T1}
s_add_u32 s{T0}, s{T0}, {W_FY}
v_mov_b32 v2, s{S_NONCE}
v_mov_b32 v3, 0
s_waitcnt vmcnt(0)
s_mov_b64 exec, 1
buffer_store_dword v2, v3, s[{SWS}:{SWS+3}], s{T0} offen sc1
s_mov_b64 exec, -1
s_barrier""")
    attn_body(a, False, lambda: dma.pop(a), mid=mid0, prio=PRI[PSCH][0])
    stamp(a, cfg, 4)
    dma = kv_dma_items(a, 80, 10)
    cb = [0]
    def slotb():
        cb[0] += 1
        if BDM == 1 or cb[0] % 3 != 0: dma.pop(a)
    if BDM == 3: dma.flush(a)
    attn_body(a, False, slotb, mid=lambda: a("s_waitcnt vmcnt(0)\ns_barrier"), prio=PRI[PSCH][1])
    stamp(a, cfg, 16)
    def mid2():
        a(f"""s_cmp_lg_u32 s{S_W}, 7
s_cbranch_scc1 L_attn_nosample
s_lshl_b32 s{T0}, s{S_XCD}, 10
s_add_u32 s{T0}, s{T0}, {W_FY}
v_add_u32 v2, s{T0}, v1
buffer_load_dwordx4 v[4:7], v2, s[{SWS}:{SWS+3}], 0 offen sc1""")
        a.label("L_attn_nosample")
    attn_body(a, False, mid=mid2, prio=PRI[PSCH][2])
    a(f"""s_cmp_lg_u32 s{S_W}, 7
s_cbranch_scc1 L_attn_nopoll
s_waitcnt vmcnt(0)""")
    poll(a, "y", 2, 4, 4, pre=True)
    a.label("L_attn_nopoll")
    stamp(a, cfg, 23)
    a("s_barrier")
    stamp(a, cfg, 30)
    a.label("L_tail_dma")
    tail_dma_body(a, cfg)

def tail_dma_items(a, tag):
    srd(a, SA, P_WO, 640*1280)
    a(f"""s_mul_i32 s{S_DO}, s{S_HG}, 160
s_lshl_b32 s{S_DM}, s{S_W}, 10""")
    n = [0]
    def item():
        n[0] += 1
        return f"""s_cmp_ge_u32 s{S_W}, 5
s_cbranch_scc1 L_tds{tag}_{n[0]}
s_mov_b32 m0, s{S_DM}
s_add_u32 s{S_DM}, s{S_DM}, 5120
buffer_load_dwordx4 v{WT}, s[{SA}:{SA+3}], s{S_DO} offen {WOF} lds
s_add_u32 s{S_DO}, s{S_DO}, 40960
L_tds{tag}_{n[0]}:"""
    return Dma([item() for _ in range(20)])

def y_dma(a):
    a(f"""s_cmp_lt_u32 s{S_W}, 5
s_cbranch_scc1 L_yd_done
s_sub_u32 s{T2}, s{S_W}, 5
s_mul_i32 s{T3}, s{S_XCD}, {80*4096}
s_lshl_b32 s{T4}, s{S_J}, 7
s_add_u32 s{T3}, s{T3}, s{T4}
s_lshl_b32 s{T4}, s{T2}, 15
s_add_u32 s{T3}, s{T3}, s{T4}
s_lshl_b32 s{T4}, s{T2}, 10
s_add_u32 m0, s{T4}, {L_YT}
s_add_u32 s{T3}, s{T3}, {W_YT}""")
    for i in range(4):
        if i == 3: a(f"s_cmp_lg_u32 s{S_W}, 5\ns_cbranch_scc1 L_yd_done")
        a(f"buffer_load_dwordx4 v{A_YD}, s[{SWS}:{SWS+3}], s{T3} offen sc1 lds")
        if i < 3: a(f"s_add_u32 m0, m0, 3072\ns_add_u32 s{T3}, s{T3}, {3*32768}")
    a.label("L_yd_done")

def tail_dma_body(a, cfg):
    R = AR
    if YEARLY: y_dma(a)
    dma = tail_dma_items(a, "m")
    cnt = [0]
    def slot():
        cnt[0] += 1
        if TDM == 0: return
        if TDM == 1 or cnt[0] % 3 != 0: dma.pop(a)
    attn_body(a, False, slot, prio=PRI[PSCH][3])
    dma.flush(a)
    a(f"v_smfmac_f32_32x32x32_bf16 {vr(R.OB,16)}, {vr(R.V1,4)}, {vr(R.S[1]+24,8)}, v{R.IDX}\ns_setprio 0")

def o_finish(a, cfg):
    R = AR
    X = 8; Y = 24
    a.label("L_ofin")
    stamp(a, cfg, 13)
    a(f"""v_mov_b32 v4, {L_DEC}
v_mov_b32 v5, 0
s_mov_b32 s{T0}, {hx(f2u(2.0**-40))}
s_mov_b32 s{T1}, {hx(f2u(2.0**40))}
s_waitcnt vmcnt(0) lgkmcnt(0)
s_nop 4
s_barrier""")
    stamp(a, cfg, 29)
    a(f"ds_write_b32 v4, v5\ns_cmp_eq_u32 s{S_KH}, 0\ns_cbranch_scc0 L_ox_hi")
    for kh in range(2):
        if kh: a.label("L_ox_hi")
        send, keep = (R.OB, R.OA) if kh == 0 else (R.OA, R.OB)
        for q in range(3): a(f"ds_write_b128 v{A_XW}, {vr(send+4*q,4)} offset:{1024*q}")
        a("s_waitcnt lgkmcnt(0)\ns_barrier")
        for q in (2, 0, 1): a(f"ds_read_b128 {vr(X+4*q,4)}, v{A_XR} offset:{1024*q}")
        a(f"s_waitcnt lgkmcnt(2)\nv_add_f32 v{Y}, v{X+8}, v{keep+8}\nv_add_f32 v{Y+1}, v{X+8}, v{keep+8}")
        for j in range(4): a(f"v_add_f32 v{X+8+j}, v{X+8+j}, v{keep+8+j}")
        a(f"v_permlane32_swap_b32 v{Y}, v{Y+1}\ns_waitcnt lgkmcnt(0)")
        for j in range(8): a(f"v_add_f32 v{X+j}, v{X+j}, v{keep+j}")
        if kh == 0: a("s_branch L_ox_done")
    a.label("L_ox_done")
    a(f"""v_rcp_f32 v{Y}, v{Y+1}
v_cmp_le_f32 vcc, s{T0}, v{Y+1}
v_cmp_ge_f32 s[{T2}:{T3}], s{T1}, v{Y+1}""")
    for k in range(12): a(f"v_mul_f32 v{X+k}, v{X+k}, v{Y}")
    for k in range(6): a(f"v_cvt_pk_bf16_f32 v{Y+2+k}, v{X+2*k}, v{X+2*k+1}")
    a(f"""ds_write_b64 v{A_OW}, {vr(Y+2,2)}
ds_write_b64 v{A_OW}, {vr(Y+4,2)} offset:16
s_mov_b32 exec_hi, 0
ds_write_b64 v{A_OW}, {vr(Y+6,2)} offset:32
s_mov_b32 exec_hi, -1
ds_read_b128 {vr(X,4)}, v{A_OB}
ds_read_b128 {vr(X+4,4)}, v{A_OB} offset:64
s_and_b64 vcc, vcc, s[{T2}:{T3}]
s_cmp_eq_u64 vcc, -1
s_cbranch_scc1 L_ox_ok
s_cmp_lg_u32 s{S_FB}, 0
s_cbranch_scc1 L_ox_ok
v_mov_b32 v5, 1
ds_write_b32 v4, v5
s_waitcnt lgkmcnt(0)""")
    a.label("L_ox_ok")
    a(f"""s_waitcnt lgkmcnt(1)
buffer_store_dwordx4 {vr(X,4)}, v{A_OG}, s[{SWS}:{SWS+3}], 0 offen sc1
s_mov_b64 exec, 0xffff
s_waitcnt lgkmcnt(0)
buffer_store_dwordx4 {vr(X+4,4)}, v{A_OG}, s[{SWS}:{SWS+3}], 0 offen offset:1024 sc1
s_mov_b64 exec, -1
s_barrier""")
    stamp(a, cfg, 14)
    a(f"ds_read_b32 v5, v4")

def fallback(a, cfg):
    R = AR
    a.label("L_fallback")
    a(f"s_mov_b32 s{S_FB}, 1\ns_waitcnt vmcnt(0) lgkmcnt(0)\ns_barrier")
    kv_dma_items(a, 0, 20).flush(a)
    a(f"""v_mov_b32 v{R.aK16}, v1
v_lshlrev_b32 v{R.aK4}, 3, v0
v_mov_b32 v2, 0xff7fffff
v_mov_b32 v3, 0xff7fffff
s_mov_b32 s{S_IT}, 0
s_waitcnt vmcnt(0)
s_barrier""")
    a.label("L_fb_loop")
    for par in range(2):
        a(f"""ds_read_b128 {vr(R.K16,4)}, v{R.aK16} offset:{1024*par}
ds_read_b64 {vr(R.K4,2)}, v{R.aK4} offset:2048
s_waitcnt lgkmcnt(0)
v_mfma_f32_32x32x16_bf16 {vr(R.S[0],16)}, {vr(R.K16,4)}, {vr(R.QA,4)}, 0
v_mfma_f32_32x32x16_bf16 {vr(R.S[0]+16,16)}, {vr(R.K16,4)}, {vr(R.QB,4)}, 0
s_nop 9
v_mfma_f32_32x32x4bf16_1k {vr(R.S[0],32)}, {vr(R.K4,2)}, {vr(R.Q4,2)}, {vr(R.S[0],32)} cbsz:1 abid:{par}
s_nop 15
s_nop 3""")
        for k in range(0, 16, 2):
            a(f"v_max3_f32 v2, v2, v{R.S[0]+k}, v{R.S[0]+k+1}\nv_max3_f32 v3, v3, v{R.S[0]+16+k}, v{R.S[0]+17+k}")
    a(f"""v_add_u32 v{R.aK16}, {BLK}, v{R.aK16}
v_add_u32 v{R.aK4}, {BLK}, v{R.aK4}
s_add_u32 s{S_IT}, s{S_IT}, 1
s_cmp_lt_u32 s{S_IT}, 32
s_cbranch_scc1 L_fb_loop
v_mov_b32 v4, v2
v_mov_b32 v5, v3
s_nop 1
v_permlane32_swap_b32 v2, v4
v_permlane32_swap_b32 v3, v5
v_max_f32 v2, v2, v4
v_max_f32 v3, v3, v5""")
    for i in range(16): a(f"v_sub_f32 v{R.CZ+i}, 0, v2\nv_sub_f32 v{R.CZ+16+i}, 0, v3")
    attn_init(a)
    attn_clear(a)
    attn_first(a, True)
    a(f"s_mov_b32 s{S_IT}, 0")
    a.label("L_fb_attn")
    attn_body(a, True, prio=False)
    a(f"""s_add_u32 s{S_IT}, s{S_IT}, 1
s_cmp_lt_u32 s{S_IT}, 4
s_cbranch_scc1 L_fb_attn
v_smfmac_f32_32x32x32_bf16 {vr(R.OB,16)}, {vr(R.V1,4)}, {vr(R.S[1]+24,8)}, v{R.IDX}
s_waitcnt lgkmcnt(0)
s_barrier""")
    y_dma(a.sub("f"))
    tail_dma_items(a, "f").flush(a)
    a("s_branch L_ofin")

def out_proj(a, cfg):
    WF = 40; OF = 186; ACC = 8
    NPRE = 7
    def wreads(i, b, cts=range(5)):
        for ct in cts:
            for hf in range(2):
                a(f"ds_read_b64_tr_b16 {vr(b+4*ct+2*hf,2)}, v{A_W} offset:{5120*i + 1280*hf + 32*ct}")
    a(f"""s_lshl_b32 s{T0}, s{S_HG}, 2
s_lshl_b32 s{T1}, s{S_RB}, 8
s_add_u32 s{T0}, s{T0}, s{T1}
s_add_u32 s{T0}, s{T0}, {W_FO}
ds_read_b64_tr_b16 v[8:9], v{A_YR}
ds_read_b64_tr_b16 v[10:11], v{A_YR} offset:512
ds_read_b64_tr_b16 v[12:13], v{A_YR} offset:8192
ds_read_b64_tr_b16 v[14:15], v{A_YR} offset:8704
v_mov_b32 v2, s{S_NONCE}
v_mov_b32 v3, 0
s_waitcnt lgkmcnt(4)
v_readfirstlane_b32 s{T2}, v5
s_waitcnt lgkmcnt(2)
ds_write_b128 v{A_YW}, v[8:11]
s_mov_b64 exec, 0xffff
s_waitcnt lgkmcnt(1)
ds_write_b128 v{A_YW}, v[12:15] offset:128
s_mov_b64 exec, -1
s_cmp_lg_u32 s{T2}, 0
s_cbranch_scc1 L_fallback
ds_read_b128 v[16:19], v{A_YB}
ds_read_b128 v[20:23], v{A_YB} offset:1024""")
    wreads(0, WF)
    a(f"""s_waitcnt vmcnt(0)
s_barrier
s_cmp_lg_u32 s{S_W}, 0
s_cbranch_scc1 L_op_noflag
s_mov_b64 exec, 1
buffer_store_dword v2, v3, s[{SWS}:{SWS+3}], s{T0} offen sc1
s_mov_b64 exec, -1""")
    a.label("L_op_noflag")
    stamp(a, cfg, 15)
    a(f"""s_lshl_b32 s{T0}, s{S_J}, 6
s_lshl_b32 s{T1}, s{S_W}, 3
s_add_u32 s{T0}, s{T0}, s{T1}
s_mul_i32 s{T0}, s{T0}, 2560
s_mul_i32 s{T1}, s{S_XCD}, 160
s_add_u32 s{T0}, s{T0}, s{T1}
s_add_u32 s{T0}, s{T0}, 1280
s_waitcnt lgkmcnt(10)
buffer_store_dwordx4 v[16:19], v{A_YG0}, s[{SOUT}:{SOUT+3}], s{T0} offen {YST}
s_mov_b64 exec, 0xffff
buffer_store_dwordx4 v[20:23], v{A_YG1}, s[{SOUT}:{SOUT+3}], s{T0} offen {YST}
s_mov_b64 exec, -1""")
    for i in range(1, NPRE): wreads(i, WF + 20*i)
    a(f"""s_and_b32 s{T2}, s{S_W}, 3
s_lshl_b32 s{T0}, s{S_RB}, 2
s_add_u32 s{T0}, s{T0}, s{T2}
s_mul_i32 s{T3}, s{T0}, {16*2560}
s_mul_i32 s{T0}, s{T0}, 20480
s_mul_i32 s{T1}, s{S_KH}, 10240
s_add_u32 s{T0}, s{T0}, s{T1}
s_add_u32 s{T0}, s{T0}, {W_O}
s_add_u32 s{T1}, s{T0}, 4096
s_add_u32 s{T2}, s{T0}, 8192
s_mul_i32 s{T4}, s{S_HG}, 160
s_add_u32 s{T3}, s{T3}, s{T4}
s_mul_i32 s{T4}, s{S_W}, {OT_SZ}
s_add_u32 s{T4}, s{T4}, {L_OT}
v_add_u32 v7, s{T4}, v1""")
    stamp(a, cfg, 17)
    a(f"s_cmp_lg_u32 s{S_W}, 0\ns_cbranch_scc1 L_op_nopoll")
    poll(a, "o", A_FO, 1, 4, lanes=8)
    a.label("L_op_nopoll")
    a("s_barrier")
    stamp(a, cfg, 18)
    if OPRIO:
        a(f"s_cmp_eq_u32 s{S_KH}, 0\ns_cbranch_scc1 L_op_p0\ns_setprio 2\ns_branch L_op_p1")
        a.label("L_op_p0"); a("s_setprio 3"); a.label("L_op_p1")
    for i in range(10):
        if OPRIO and i == 5:
            a(f"s_cmp_eq_u32 s{S_KH}, 0\ns_cbranch_scc1 L_op_p2\ns_setprio 0\ns_branch L_op_p3")
            a.label("L_op_p2"); a("s_setprio 1"); a.label("L_op_p3")
        a(f"buffer_load_dwordx4 {vr(OF+4*i,4)}, v1, s[{SWS}:{SWS+3}], s{(T0, T1, T2)[i >> 2]} offen offset:{1024*(i & 3)} sc1")
    if OPRIO: a("s_setprio 0")
    a("s_waitcnt lgkmcnt(0)")
    for i in range(10):
        b = WF + 20*(i if i < NPRE else i - NPRE)
        a(f"s_waitcnt vmcnt({9-i})" + (f" lgkmcnt({min(15, 10*(9-i))})" if i >= NPRE else ""))
        for ct in range(5):
            c = "0" if i == 0 else vr(ACC+4*ct, 4)
            a(f"v_mfma_f32_16x16x32_bf16 {vr(ACC+4*ct,4)}, {vr(b+4*ct,4)}, {vr(OF+4*i,4)}, {c}")
        if i < 10 - NPRE: wreads(NPRE + i, b)
    stamp(a, cfg, 19)
    a(f"s_cmp_eq_u32 s{S_KH}, 0\ns_cbranch_scc0 L_px_hi")
    X = 40
    for kh in range(2):
        if kh: a.label("L_px_hi")
        send = [3, 4] if kh == 0 else [0, 1, 2]
        keep = [0, 1, 2] if kh == 0 else [3, 4]
        a("s_nop 5" if kh == 0 else "s_nop 5")
        for n, ct in enumerate(send): a(f"ds_write_b128 v{A_XW}, {vr(ACC+4*ct,4)} offset:{1024*n}")
        a("s_waitcnt lgkmcnt(0)\ns_barrier")
        for n, ct in enumerate(keep): a(f"ds_read_b128 {vr(X+4*n,4)}, v{A_XR} offset:{1024*n}")
        for n, ct in enumerate(keep):
            a(f"s_waitcnt lgkmcnt({len(keep)-1})")
            for j in range(4): a(f"v_add_f32 v{X+4*n+j}, v{X+4*n+j}, v{ACC+4*ct+j}")
            a(f"v_cvt_pk_bf16_f32 v{X+16+2*n}, v{X+4*n}, v{X+4*n+1}\nv_cvt_pk_bf16_f32 v{X+17+2*n}, v{X+4*n+2}, v{X+4*n+3}")
            a(f"ds_write_b64 v{A_PW}, {vr(X+16+2*n,2)} offset:{32*n}")
        a(f"ds_read_b128 {vr(X+24,4)}, v7")
        if kh == 0:
            a(f"""ds_read_b128 {vr(X+28,4)}, v7 offset:1024
s_waitcnt lgkmcnt(1)
buffer_store_dwordx4 {vr(X+24,4)}, v{A_PG0}, s[{SOUT}:{SOUT+3}], s{T3} offen {OST}
s_mov_b32 exec_hi, 0
s_waitcnt lgkmcnt(0)
buffer_store_dwordx4 {vr(X+28,4)}, v{A_PG1}, s[{SOUT}:{SOUT+3}], s{T3} offen {OST}
s_mov_b32 exec_hi, -1
s_branch L_px_done""")
        else:
            a(f"s_waitcnt lgkmcnt(0)\nbuffer_store_dwordx4 {vr(X+24,4)}, v{A_PG0}, s[{SOUT}:{SOUT+3}], s{T3} offen {OST}")
    a.label("L_px_done")
    if cfg.stamps:
        a("s_waitcnt vmcnt(0)")
        stamp(a, cfg, 20)
        stamp_flush(a, cfg)
        stamp_debug(a, cfg)

def build(cfg):
    a = Asm()
    prologue(a, cfg)
    a(f"s_cmp_ge_u32 s{S_W}, 4\ns_cbranch_scc1 L_kside")
    q_side(a, cfg)
    a("s_branch L_join")
    a("; CUT k_early")
    a.label("L_kside")
    k_side(a, cfg)
    join(a, cfg)
    attention(a, cfg)
    o_finish(a, cfg)
    out_proj(a, cfg)
    a.label("L_end")
    a("s_endpgm")
    a("; CUT kaddr")
    k_addrs(a)
    a("; CUT fb")
    a.label("L_code_end")
    fallback(a, cfg)
    linear = list(a.lines)
    if LAYOUT:
        parts = {}; cur = "head"; parts[cur] = []
        for l in a.lines:
            if l.startswith("; CUT "): cur = l[6:]; parts[cur] = []
            else: parts[cur].append(l)
        br = lambda n: [f"s_branch L_cut_{n}"]; lb = lambda n: [f"L_cut_{n}:"]
        a.lines = (parts["head"] + br("q_main") + parts["k_early"] + br("k_gen") + parts["kaddr"] + parts["u_early"] + br("u_main")
                   + lb("k_gen") + parts["k_gen"] + lb("q_main") + parts["q_main"] + lb("u_main") + parts["u_main"] + parts["fb"])
    probs = check([l for l in linear if not l.startswith('; CUT')])
    for p in probs: print("HAZARD", p, file=sys.stderr)
    head = open("cdna_kernels/%s.s.ref" % NAME).read().split("; Override")[0]
    txt = head + f"""; @launch grid=(256,1,1) block=(512,1,1) lds=163840
.amdgcn_target "amdgcn-amd-amdhsa--gfx950"
.text
.globl {NAME}_kernel
.p2align 8
.type {NAME}_kernel,@function
{NAME}_kernel:
""" + a.text() + f""".section .rodata,"a"
.p2align 6
.amdhsa_kernel {NAME}_kernel
  .amdhsa_next_free_vgpr 256
  .amdhsa_next_free_sgpr 96
  .amdhsa_accum_offset 256
  .amdhsa_group_segment_fixed_size 0
  .amdhsa_kernarg_size 120
  .amdhsa_user_sgpr_count 2
  .amdhsa_user_sgpr_kernarg_segment_ptr 1
  .amdhsa_system_sgpr_workgroup_id_x 1
  .amdhsa_float_denorm_mode_32 3
.end_amdhsa_kernel
"""
    return txt, len(probs)

if __name__ == "__main__":
    cfg = Cfg()
    out = sys.argv[1]
    for o in sys.argv[2:]:
        if o == "stamps": cfg.stamps = True
        if o == "dbg": cfg.dbg = True
        if o.startswith("few="): cfg.stamps = True; cfg.few = [int(x) for x in o[4:].split(",")]
        if "=" in o and o.split("=")[0].isupper(): globals()[o.split("=")[0]] = int(o.split("=")[1]) if o.split("=")[1].isdigit() else o.split("=")[1].replace("_", " ")
        if o.startswith("dbgstamp="): cfg.stamps = True; cfg.dbgstamp = [int(x) for x in o[9:].split(",")]
    txt, n = build(cfg)
    open(out, "w").write(txt)
    print("written", out, len(txt), "bytes; hazards:", n)
```

```python
import sys, struct, math
from asmlib import Asm, vr, sr, check
NAME = "concat_heads__grouped_kv_mqa__ssm_conv_s4d__prompt"
def f2u(x): return struct.unpack("<I", struct.pack("<f", x))[0]
def hx(x): return "0x%08x" % (x & 0xffffffff)

L_WQ = 0; L_X = 0; L_WK = 102400; L_SCR = 128000; SCR_SZ = 4352; L_UST = 141056; NWQA = 4
L_CP = 102400; CP_CH = 16640; CP_C = 4160
L_TBL = 154112; TBL_SZ = 1552; L_QST = 152320
L_UT = 81920; UT_CH = 4608; L_PART = 95744; L_QX = 0
L_YT = 102400; L_XCH = 122880; L_OT = 147456; OT_SZ = 1536; L_DEC = 159744; L_YS = 112640
BLK = 5120
W_NONCE = 0; W_FU = 0x1000; W_FKV = 0x2000; W_FY = 0x4000; W_FO = 0x6000
W_KV = 0x10000; W_UT = 0x40000; W_YT = 0x2C0000; W_O = 0x540000; W_DBG = 0x800000; W_STAMP = 0xF00000; WS_SZ = 0x1000000
P_X, P_WQ, P_WK, P_WV, P_WO, P_U, P_LAR, P_AIM, P_CR, P_CI, P_LDT, P_DSK, P_OUT, P_DBG, P_WS = range(4, 34, 2)
SA, SB, SWS, SOUT = 36, 40, 44, 48
S_W, S_XCD, S_J, S_RB, S_HG, S_NONCE, S_CH0, S_CH2 = 52, 53, 54, 55, 56, 57, 58, 59
VM = 60
T0, T1, T2, T3, T4, T5, T6, T7 = range(62, 70)
S_RT, S_KH, S_FB, S_IT = 70, 71, 72, 73
EX = 74
S_LDT = 76; S_D0 = 77
S_C1, S_C2, S_C3, S_C4 = 80, 81, 82, 83
ST0 = 84
SPIN_MAX = 100000
SLEEP = 1
USLEEP = 4
PF = 0; W4P = 2; OPRIO = 1; G0DMA = 6; UDMA = 0; EXP128 = 1; PSCH = 0; YEARLY = 1; WOF = ''; TDM = 1; BDM = 1; XNT = ''; UNT = ''; PNT = ''; PF3 = 0; K0PRIO = 3; KAPRIO = 3; KV1 = 0; KGAP = 5; KGAP0 = 24; PF2 = 0; KVPRIO = 0; CPF = 1024; CPF0 = 1; LAYOUT = 1
UEV = 1; UMASK = 0x0f
YST = 'nt'; OST = 'nt'
QPRIO = 2; KPRIO = 1; CPRIO = 1; Q2PRIO = 3

class Cfg:
    dbg = False; stamps = False; few = None; dbgstamp = None; stop_after = None; nonce_update = True

N_ = None
PRI = [[[N_, N_, N_, 0], [3, 2, 1, 0], [3, 2, 1, 0], [3, 2, 1, 0]],
       [[N_, N_, N_, 3], [2, 1, 0, 3], [3, 2, 1, 0], [3, 2, 1, 0]],
       [[N_, N_, N_, 0], [N_]*4, [N_]*4, [N_]*4],
       [[N_, N_, N_, 3], [2, 1, 0, 3], [2, 2, 1, 0], [3, 2, 1, 0]]]
def srd(a, base, ptr, size):
    a(f"s_mov_b32 s{base}, s{ptr}\ns_mov_b32 s{base+1}, s{ptr+1}\ns_mov_b32 s{base+2}, {size}\ns_mov_b32 s{base+3}, 0x00020000")

_stamp_n = [0]
def stamp(a, cfg, idx, cyc=False):
    if not cfg.stamps or cyc: return
    if cfg.few and idx not in cfg.few: return
    a(f"""s_memrealtime s[{ST0}:{ST0+1}]
s_memtime s[86:87]
s_waitcnt lgkmcnt(0)
v_writelane_b32 v255, s{ST0}, {idx}
v_writelane_b32 v255, s86, {idx+32}""")
def stamp_flush(a, cfg):
    if not cfg.stamps: return
    a(f"""s_lshl_b32 s86, s2, 3
s_add_u32 s86, s86, s{S_W}
s_lshl_b32 s86, s86, 8
s_add_u32 s86, s86, {W_STAMP}
v_lshlrev_b32 v254, 2, v0
buffer_store_dword v255, v254, s[{SWS}:{SWS+3}], s86 offen""")

SEL = [0, 24, 1, 2, 26, 3, 6, 8, 10, 11, 12, 13, 14, 18, 19, 20]
def stamp_debug(a, cfg):
    if not cfg.dbgstamp: return
    a(f"""s_cmp_lg_u32 s2, {cfg.dbgstamp[0]}
s_cbranch_scc1 L_dbgst_done
s_cmp_lg_u32 s{S_W}, {cfg.dbgstamp[1]}
s_cbranch_scc1 L_dbgst_done
v_readlane_b32 s86, v255, 21
v_mov_b32 v254, 0""")
    for k, i in enumerate(SEL):
        a(f"v_readlane_b32 s87, v255, {i}\ns_nop 3\ns_sub_u32 s87, s87, s86\nv_writelane_b32 v254, s87, {k}")
    srd(a, SA, P_DBG, 256)
    a(f"""v_lshlrev_b32 v253, 2, v0
s_mov_b64 exec, 0xffff
buffer_store_dword v254, v253, s[{SA}:{SA+3}], 0 offen
s_mov_b64 exec, -1""")
    a.label("L_dbgst_done")

def dump_lds(a, cfg, tag, lo, n8):
    if not cfg.dbg: return
    a(f"""s_cmp_ge_u32 s2, 4
s_cbranch_scc1 L_dump_{tag}
s_lshl_b32 s86, s{S_W}, 10
s_mul_i32 s87, s2, {n8*8192}
s_add_u32 s87, s87, {W_DBG}
s_add_u32 s87, s87, s86
s_add_u32 s86, s86, {lo}
v_add_u32 v250, s86, v1
s_mov_b32 s88, 0""")
    a.label(f"L_dumpl_{tag}")
    a(f"""ds_read_b128 v[252:255], v250
s_waitcnt lgkmcnt(0)
buffer_store_dwordx4 v[252:255], v1, s[{SWS}:{SWS+3}], s87 offen
s_waitcnt vmcnt(0)
v_add_u32 v250, 8192, v250
s_add_u32 s87, s87, 8192
s_add_u32 s88, s88, 1
s_cmp_lt_u32 s88, {n8}
s_cbranch_scc1 L_dumpl_{tag}""")
    a.label(f"L_dump_{tag}")

def poll(a, tag, vaddr, nload, vt, lanes=64, sleep=0, pre=False):
    sfx = {1: "dword", 2: "dwordx2", 4: "dwordx4"}[nload]
    if lanes < 64: a(f"s_mov_b32 exec_lo, {hx((1 << lanes) - 1)}\ns_mov_b32 exec_hi, 0")
    a(f"s_mov_b32 s{T7}, 0")
    if pre: a(f"s_branch L_pollc_{tag}")
    a.label(f"L_poll_{tag}")
    a(f"buffer_load_{sfx} {vr(vt, nload)}, v{vaddr}, s[{SWS}:{SWS+3}], 0 offen sc1")
    a("s_waitcnt vmcnt(0)")
    a.label(f"L_pollc_{tag}")
    for i in range(nload): a(f"v_xor_b32 v{vt+i}, s{S_NONCE}, v{vt+i}")
    if nload == 2: a(f"v_or_b32 v{vt}, v{vt}, v{vt+1}")
    if nload == 4: a(f"v_or_b32 v{vt}, v{vt}, v{vt+1}\nv_or3_b32 v{vt}, v{vt}, v{vt+2}, v{vt+3}")
    a(f"""v_cmp_ne_u32 vcc, 0, v{vt}
s_add_u32 s{T7}, s{T7}, 1
s_nop 2
s_cmp_eq_u64 vcc, 0
s_cbranch_scc1 L_polld_{tag}
{f"s_sleep {sleep}" if sleep else ""}
s_cmp_lt_u32 s{T7}, {SPIN_MAX}
s_cbranch_scc1 L_poll_{tag}""")
    a.label(f"L_polld_{tag}")
    if lanes < 64: a("s_mov_b64 exec, -1")

def div10_offsets(a, vdst, cbase_s, cbase_imm, vt, perm):
    if cbase_s is not None: a(f"v_add_u32 v{vt}, s{cbase_s}, v0")
    else: a(f"v_add_u32 v{vt}, {cbase_imm}, v0")
    a(f"""v_mul_u32_u24 v{vt+1}, 6554, v{vt}
v_lshrrev_b32 v{vt+1}, 16, v{vt+1}
v_mul_u32_u24 v{vt+2}, 10, v{vt+1}
v_sub_u32 v{vt}, v{vt}, v{vt+2}""")
    if perm:
        a(f"""v_lshrrev_b32 v{vt+2}, 2, v{vt+1}
v_lshrrev_b32 v{vt+3}, 3, v{vt+1}
v_xor_b32 v{vt+2}, v{vt+2}, v{vt+3}
v_and_b32 v{vt+2}, 1, v{vt+2}
v_mul_u32_u24 v{vt+2}, 12, v{vt+2}
v_xor_b32 v{vt+1}, v{vt+1}, v{vt+2}""")
    a(f"""v_mul_u32_u24 v{vt+1}, 1280, v{vt+1}
v_lshl_add_u32 v{vdst}, v{vt}, 4, v{vt+1}""")

XF = 16
VX = 250
WT = 245
C_A, C_B, C_PW, C_PR, C_UG, C_UL = 242, 243, 244, 251, 252, 253
C_A2, C_B2 = 246, 247
Q_W, A_WQ, V_NON, Q_R, Q_R4 = 13, 14, 15, 224, 225
E_W, E_R = 248, 249
L_EV = 162560
EV_CRIT, EV_X, EV_FR, EV_WQ, EV_TBL, EV_WQA, EV_EXP, EV_QD, EV_C0, EV_C1, EV_C2, EV_US = 0, 1, 2, 3, 7, 8, 9, 10, 5, 6, 11, 12
X_F0, X_F1 = 246, 247
EXI = 186
def ev_signal(a, e, vn=None):
    a(f"s_mov_b64 exec, 1\nds_write_b32 v{E_W}, v{vn or V_NON} offset:{32*e}\ns_mov_b64 exec, -1")
_evn = [0]
def ev_wait(a, e, mask, vn=None):
    _evn[0] += 1; n = _evn[0]
    a(f"s_mov_b32 s{T7}, 0")
    a.label(f"L_ev_{n}")
    a(f"""ds_read_b32 v2, v{E_R} offset:{32*e}
s_add_u32 s{T7}, s{T7}, 1
s_waitcnt lgkmcnt(0)
v_cmp_eq_u32 vcc, v2, v{vn or V_NON}
s_cmp_ge_u32 s{T7}, {SPIN_MAX}
s_cbranch_scc1 L_evd_{n}
s_nop 1
s_and_b32 s{T0}, vcc_lo, {mask}
s_cmp_eq_u32 s{T0}, {mask}
s_cbranch_scc1 L_evd_{n}
s_sleep {SLEEP}
s_branch L_ev_{n}""")
    a.label(f"L_evd_{n}")

def prologue(a, cfg):
    a(f"""s_cmp_ge_u32 s2, 256
s_cbranch_scc1 L_end""")
    stamp(a, cfg, 21)
    a(f"""s_load_dwordx16 s[4:19], s[0:1], 0
s_load_dwordx2 s[32:33], s[0:1], 112
s_load_dwordx8 s[20:27], s[0:1], 64
s_load_dwordx4 s[28:31], s[0:1], 96
v_lshrrev_b32 v1, 6, v0
v_and_b32 v0, 63, v0
s_and_b32 s{S_XCD}, s2, 7
v_readfirstlane_b32 s{S_W}, v1
s_lshr_b32 s{S_J}, s2, 3
s_lshr_b32 s{T0}, s{S_J}, 3
s_lshl_b32 s{S_RB}, s{S_XCD}, 2
s_add_u32 s{S_RB}, s{S_RB}, s{T0}
s_and_b32 s{S_HG}, s{S_J}, 7
v_lshlrev_b32 v1, 4, v0""")
    if CPF:
        a("s_getpc_b64 s[92:93]")
        a.label("L_pc")
        a(f"""s_sub_u32 s92, s92, L_pc - {NAME}_kernel
s_subb_u32 s93, s93, 0
s_lshl_b32 s{T0}, s{S_W}, 10
v_add_u32 v3, s{T0}, v1
v_add_co_u32 v4, vcc, s92, v3
v_mov_b32 v5, s93
s_mul_i32 s{T1}, s{S_J}, {CPF}
v_addc_co_u32 v5, vcc, 0, v5, vcc
s_cmp_lt_u32 s{S_W}, 6
{"global_load_dwordx4 v[200:203], v[4:5], off" if CPF0 else ""}
s_cbranch_scc1 L_nocp
s_add_u32 s{T1}, s{T1}, {8192 - 6*1024 if CPF0 else -6*1024 & 0xffffffff}
v_add_u32 v3, s{T1}, v3
v_min_u32 v3, L_code_end - {NAME}_kernel - 16, v3
v_add_co_u32 v4, vcc, s92, v3
v_mov_b32 v5, s93
s_nop 0
v_addc_co_u32 v5, vcc, 0, v5, vcc
global_load_dwordx4 v[200:203], v[4:5], off""")
        a.label("L_nocp")
    a(f"""v_lshrrev_b32 v2, 3, v0
v_and_b32 v3, 7, v0
v_xor_b32 v3, v3, v2
v_mul_u32_u24 v2, 1280, v2
v_lshl_add_u32 v{VX}, v3, 4, v2
v_mov_b32 v{WT}, 0
s_lshr_b32 s{T0}, s{S_J}, 1
s_mul_i32 s{T0}, s{T0}, 5
s_mul_i32 s{S_CH0}, s{S_XCD}, 80
s_add_u32 s{S_CH0}, s{S_CH0}, s{T0}
s_add_u32 s{S_CH2}, s{S_CH0}, 2
s_and_b32 s{T0}, s{S_J}, 1
s_mul_i32 s{T0}, s{T0}, 3
s_add_u32 s{S_CH0}, s{S_CH0}, s{T0}
s_lshr_b32 s{T0}, s{S_HG}, 1
s_add_u32 s{S_RT}, s{T0}, s{S_W}
s_and_b32 s{S_RT}, s{S_RT}, 3
s_lshr_b32 s{S_KH}, s{S_W}, 2
s_mov_b32 s{S_FB}, 0
s_mov_b32 s{VM}, 0x000fffff
s_mov_b32 s{VM+1}, 0x000fffff
s_mul_i32 s{T5}, s{S_RB}, {64*1280}""")

def x_loop(a, tag, n_s, n_imm):
    a(f"s_mov_b32 s{T2}, {n_imm}" if n_s is None else f"s_mov_b32 s{T2}, s{n_s}")
    a.label(f"L_xl_{tag}")
    a(f"""s_mul_i32 s{T0}, s{T3}, {8*1280}
s_lshl_b32 s{T1}, s{T4}, 7
s_add_u32 s{T0}, s{T0}, s{T1}
s_lshl_b32 s{T1}, s{T4}, 3
s_add_u32 s{T1}, s{T1}, s{T3}
s_lshl_b32 m0, s{T1}, 10
s_add_u32 s{T0}, s{T0}, s{T5}
buffer_load_dwordx4 v{VX}, s[{SA}:{SA+3}], s{T0} offen {XNT} lds
s_add_u32 s{T4}, s{T4}, 1
s_cmp_eq_u32 s{T4}, 10
s_cselect_b32 s{T4}, 0, s{T4}
s_addc_u32 s{T3}, s{T3}, 0
s_and_b32 s{T3}, s{T3}, 7
s_sub_u32 s{T2}, s{T2}, 1
s_cmp_lg_u32 s{T2}, 0
s_cbranch_scc1 L_xl_{tag}""")

def crit_loads(a):
    a(f"""s_and_b32 s{T3}, s{S_HG}, 6
s_and_b32 s{T4}, s{S_W}, 1
s_add_u32 s{T3}, s{T3}, s{T4}
s_lshr_b32 s{T4}, s{S_W}, 1
s_mul_i32 s{T0}, s{T3}, {8*1280}
s_lshl_b32 s{T1}, s{T4}, 7
s_add_u32 s{T0}, s{T0}, s{T1}
s_add_u32 s{T0}, s{T0}, s{T5}
s_lshl_b32 s{T1}, s{T4}, 3
s_add_u32 s{T1}, s{T1}, s{T3}
s_lshl_b32 m0, s{T1}, 10
s_bitcmp1_b32 s{S_HG}, 0""")
    for i in range(5):
        a(f"buffer_load_dwordx4 v{VX}, s[{SA}:{SA+3}], s{T0} offen {XNT} lds")
        if i < 4: a(f"s_add_u32 m0, m0, 16384\ns_add_u32 s{T0}, s{T0}, 256")
    a(f"""s_bitcmp1_b32 s{S_HG}, 0
s_cselect_b32 s{SB}, s{P_WV}, s{P_WK}
s_cselect_b32 s{SB+1}, s{P_WV+1}, s{P_WK+1}
s_mov_b32 s{SB+2}, 25600
s_mov_b32 s{SB+3}, 0x00020000
s_lshl_b32 s{T0}, s{S_W}, 10
s_add_u32 m0, s{T0}, {L_WK}
s_nop 0""")
    for i in range(7):
        if i == 6: a(f"s_cmp_lg_u32 s{S_W}, 0\ns_cbranch_scc1 L_wk_done")
        a(f"buffer_load_dwordx4 v1, s[{SB}:{SB+3}], s{T0} offen lds")
        if i < 6: a(f"s_add_u32 m0, m0, 4096\ns_add_u32 s{T0}, s{T0}, 4096")
    a.label("L_wk_done")

def rest_x(a, tag):
    a(f"""s_mul_i32 s{T4}, s{S_W}, 15
s_mul_i32 s{T3}, s{T4}, 205
s_lshr_b32 s{T3}, s{T3}, 11
s_mul_i32 s{T1}, s{T3}, 10
s_sub_u32 s{T4}, s{T4}, s{T1}
s_and_b32 s{T1}, s{S_HG}, 6
s_add_u32 s{T3}, s{T3}, s{T1}
s_add_u32 s{T3}, s{T3}, 2
s_and_b32 s{T3}, s{T3}, 7""")
    x_loop(a, tag, None, 15)

WT4 = 8
def wq_items(a, first, n, even):
    srd(a, SB, P_WQ, 640*1280)
    a(f"""s_lshl_b32 s{S_DM}, s{S_W}, 10
s_add_u32 s{S_DM}, s{S_DM}, {first*5120}
s_mul_i32 s{S_DO}, s{S_HG}, 160
s_add_u32 s{S_DO}, s{S_DO}, {first*40960}""")
    one = f"s_mov_b32 m0, s{S_DM}\ns_add_u32 s{S_DM}, s{S_DM}, 5120\nbuffer_load_dwordx4 v{WT}, s[{SB}:{SB+3}], s{S_DO} offen lds\ns_add_u32 s{S_DO}, s{S_DO}, 40960"
    if not even: return Dma([one] * n)
    a(f"""s_lshr_b32 s{T2}, s{S_W}, 1
s_add_u32 s{T2}, s{T2}, {first}
s_mul_i32 s92, s{T2}, 5120
s_add_u32 s92, s92, 4096
s_mul_i32 s93, s{T2}, 40960
s_mul_i32 s{T2}, s{S_HG}, 160
s_add_u32 s93, s93, s{T2}""")
    four = f"s_mov_b32 m0, s92\ns_add_u32 s92, s92, 10240\nbuffer_load_dwordx4 v{WT4}, s[{SB}:{SB+3}], s93 offen lds\ns_add_u32 s93, s93, 81920"
    return Dma([x for k in range(n // 2) for x in (one, one, four)])

def typed_offset(a):
    a(f"s_lshl_b32 s{T2}, s{S_W}, 6")
    div10_offsets(a, WT, T2, None, 2, True)

A_YR, A_YW, A_YB, A_YG0, A_YG1, A_W, A_OW, A_OB, A_OG, A_XW, A_XR, A_PW, A_PG0, A_PG1, A_YD, A_FO = range(226, 242)
def w_tr_addr(a, v, t):
    a(f"""v_lshrrev_b32 v{v}, 5, v0
v_lshlrev_b32 v{v}, 4, v{v}
v_bfe_u32 v{t}, v0, 4, 1
v_lshl_add_u32 v{v}, v{t}, 2, v{v}
v_bfe_u32 v{t}, v0, 2, 2
v_add_u32 v{v}, v{v}, v{t}
v_mul_u32_u24 v{v}, 160, v{v}
v_and_b32 v{t}, 3, v0
v_lshl_add_u32 v{v}, v{t}, 3, v{v}
s_mul_i32 s{T0}, s{S_KH}, 51200
v_add_u32 v{v}, s{T0}, v{v}""")

L_P16 = 86528; L_P32 = 102912
UPOS = [1, 2, 0]
def conv_addrs(a, kside):
    a(f"""v_and_b32 v2, 15, v0
v_lshrrev_b32 v3, 4, v0""")
    if kside:
        a(f"""s_sub_u32 s{T0}, s{S_W}, 4
s_lshr_b32 s{T1}, s{T0}, 1
s_and_b32 s{T2}, s{T0}, 1
s_lshl_b32 s{T2}, s{T2}, 8
s_mul_i32 s{T4}, s{T1}, {CP_CH}
s_sub_u32 s{T4}, s{T4}, s{T2}
s_add_u32 s{T4}, s{T4}, {L_CP + 2*2032 - 512*7 - 192}
s_mul_i32 s{T6}, s{T1}, {UT_CH}
s_sub_u32 s{T6}, s{T6}, s{T2}
s_add_u32 s{T6}, s{T6}, {L_UT + UT_CH + 480 - 192}
s_lshl_b32 s{T2}, s{T0}, 7
s_sub_u32 s{T1}, {L_CP + 2*CP_CH + 2*2032 - 512*7 - 192}, s{T2}
s_sub_u32 s{T2}, {L_UT + 480 - 192}, s{T2}
v_sub_u32 v4, 0, v2
v_and_b32 v4, 3, v4
v_add_u32 v5, v2, v4
v_mul_u32_u24 v4, {CP_C}, v4
v_lshlrev_b32 v5, 1, v5
v_sub_u32 v4, v4, v5
v_lshl_add_u32 v4, v3, 4, v4
v_add_u32 v{C_A}, s{T4}, v4
v_add_u32 v{C_A2}, s{T1}, v4
v_lshlrev_b32 v5, 5, v2
v_lshl_add_u32 v5, v3, 4, v5
v_add_u32 v{C_B}, s{T6}, v5
v_add_u32 v{C_B2}, s{T2}, v5
v_lshl_add_u32 v4, v3, 2, v2
v_and_b32 v4, 15, v4
v_lshl_add_u32 v4, v3, 4, v4
v_lshlrev_b32 v{C_PW}, 4, v4""")
    a(f"""v_lshrrev_b32 v4, 2, v0
v_and_b32 v5, 3, v0
v_lshl_add_u32 v4, v5, 2, v4
v_and_b32 v4, 15, v4
v_lshl_add_u32 v4, v5, 4, v4
v_lshlrev_b32 v{C_PR}, 4, v4
s_and_b32 s{T0}, s{S_W}, 3
s_lshl_b32 s{T0}, s{T0}, 10
v_lshl_add_u32 v{C_UG}, v0, 3, s{T0}
s_and_b32 s{T0}, s{S_W}, 3
s_mul_i32 s{T1}, s{T0}, 2560
s_add_u32 s{T1}, s{T1}, {L_QST}
v_mul_u32_u24 v2, 160, v2
v_add_u32 v2, s{T1}, v2
v_and_b32 v3, 1, v3
v_mul_u32_u24 v3, 40, v3
v_add_u32 v2, v2, v3
v_lshrrev_b32 v3, 5, v0
v_lshl_add_u32 v{Q_R}, v3, 4, v2
v_mul_u32_u24 v3, 80, v3
v_add_u32 v{Q_R4}, v2, v3
s_lshl_b32 s{T0}, s{S_W}, 2
s_add_u32 s{T0}, s{T0}, {L_EV}
v_mov_b32 v{E_W}, s{T0}
v_and_b32 v2, 7, v0
v_lshlrev_b32 v2, 2, v2
v_add_u32 v{E_R}, {L_EV}, v2""")

def chan(a, dst, c):
    a(f"s_add_u32 s{dst}, s{S_CH0}, {c}" if c < 2 else f"s_mov_b32 s{dst}, s{S_CH2}")
def chan_w(a, dst):
    a(f"""s_sub_u32 s{dst}, s{S_W}, 5
s_add_u32 s{dst}, s{dst}, s{S_CH0}
s_cmp_eq_u32 s{S_W}, 7
s_cselect_b32 s{dst}, s{S_CH2}, s{dst}""")
def d_loads(a):
    for c in range(3):
        chan(a, T2, c)
        a(f"""s_lshl_b32 s{T2}, s{T2}, 1
s_and_b32 s{T2}, s{T2}, 0xfffffffc
s_load_dword s{S_D0+c}, s[{P_DSK}:{P_DSK+1}], s{T2}""")

def q_addrs(a):
    typed_offset(a)
    div10_offsets(a, WT4, None, 256, 2, True)
    a(f"""v_lshrrev_b32 v2, 5, v0
v_lshlrev_b32 v2, 4, v2
v_bfe_u32 v3, v0, 4, 1
v_lshl_add_u32 v2, v3, 2, v2
v_bfe_u32 v3, v0, 2, 2
v_add_u32 v2, v2, v3
v_mul_u32_u24 v2, 160, v2
v_and_b32 v3, 3, v0
v_lshl_add_u32 v2, v3, 3, v2
s_bitcmp0_b32 s{S_W}, 0
s_cselect_b32 s{T1}, 96, 0
v_add_u32 v{A_WQ}, s{T1}, v2
v_and_b32 v2, 15, v0
v_lshrrev_b32 v3, 4, v0
v_and_b32 v4, 7, v2
v_xor_b32 v4, v3, v4
v_lshlrev_b32 v5, 7, v2
v_lshl_add_u32 v{X_F0}, v4, 4, v5
v_xor_b32 v{X_F1}, 64, v{X_F0}
s_lshr_b32 s{T0}, s{S_W}, 1
s_mul_i32 s{T0}, s{T0}, 5120
s_add_u32 s{T0}, s{T0}, s{T1}
s_add_u32 s{T0}, s{T0}, {L_QST}
v_mul_u32_u24 v2, 160, v2
v_lshl_add_u32 v2, v3, 3, v2
v_add_u32 v{Q_W}, s{T0}, v2""")

ORDER = [16, 17, 18, 19] + list(range(16))
def xf(i, s):
    n = ORDER.index(s)
    if i == 0: return XF + 4*n
    return 144 + 4*n if n < 4 else (96 + 4*(n - 4) if n < 16 else 160 + 4*(n - 16))
def x_frags(a, i, kv=False):
    a(f"s_lshr_b32 s{T0}, s{S_HG}, 1")
    if not kv:
        a(f"""s_and_b32 s{T1}, s{S_W}, 2
s_add_u32 s{T0}, s{T0}, s{T1}
s_add_u32 s{T0}, s{T0}, {i}
s_and_b32 s{T0}, s{T0}, 3""")
    a(f"""s_lshl_b32 s{T0}, s{T0}, 11
s_add_u32 s{T1}, s{T0}, 40960
v_add_u32 v2, s{T0}, v{X_F0}
v_add_u32 v3, s{T0}, v{X_F1}
v_add_u32 v4, s{T1}, v{X_F0}
v_add_u32 v5, s{T1}, v{X_F1}""")
    for s in range(20):
        a(f"ds_read_b128 {vr(xf(i, s),4)}, v{2 + (s & 1) + 2*(s >= 10)} offset:{L_X + 8192*((s % 10) >> 1)}")

def finish_nonce(a, first=True):
    if first:
        a(f"s_waitcnt lgkmcnt(0)\ns_mul_i32 s{S_NONCE}, s{S_NONCE}, 0x9E3779B1\ns_add_u32 s{S_NONCE}, s{S_NONCE}, 0x7F4A7C15\nv_mov_b32 v{V_NON}, s{S_NONCE}")
    else:
        a(f"""s_waitcnt lgkmcnt(0)
s_cmp_eq_u32 s{S_W}, 4
s_cbranch_scc1 L_fn_done
s_mul_i32 s{S_NONCE}, s{S_NONCE}, 0x9E3779B1
s_add_u32 s{S_NONCE}, s{S_NONCE}, 0x7F4A7C15
v_mov_b32 v{V_NON}, s{S_NONCE}""")
        a.label("L_fn_done")

def kv_proj1(a, cfg):
    WR = 176; ACC = 200
    x_frags(a, 0, kv=True)
    def reads(s):
        b = WR + 8*(s % 3)
        for ct in range(2):
            for hf in range(2):
                a(f"ds_read_b64_tr_b16 {vr(b+4*ct+2*hf,2)}, v6 offset:{1280*s + 160*hf + 32*ct}")
    a(f"s_bitcmp1_b32 s{S_HG}, 0\ns_cbranch_scc1 L_kv_v")
    for kind in range(2):
        if kind: a.label("L_kv_v")
        reads(0); reads(1)
        for s in range(20):
            if s + 2 < 20: reads(s + 2)
            a(f"s_waitcnt lgkmcnt({4*min(2, 19 - s)})")
            b = WR + 8*(s % 3)
            for ct in range(2):
                A, B = vr(b+4*ct, 4), vr(xf(0, s), 4)
                if kind: A, B = B, A
                a(f"v_mfma_f32_16x16x32_bf16 {vr(ACC+4*ct,4)}, {A}, {B}, {vr(ACC+4*ct,4) if s else 0}")
        ev_signal(a, EV_TBL)
        a(f"""s_mul_i32 s{T0}, s{S_RB}, {BLK}
s_add_u32 s{T0}, s{T0}, {W_KV}
s_lshr_b32 s{T3}, s{S_HG}, 1
v_and_b32 v3, 15, v0
v_lshrrev_b32 v4, 4, v0""")
        if kind == 0:
            a(f"""s_lshr_b32 s{T1}, s{T3}, 1
s_lshl_b32 s{T1}, s{T1}, 10
s_and_b32 s{T2}, s{T3}, 1
s_lshl_b32 s{T2}, s{T2}, 8
s_add_u32 s{T1}, s{T1}, s{T2}
s_add_u32 s{T1}, s{T1}, s{T0}
v_lshrrev_b32 v5, 1, v4
v_lshlrev_b32 v5, 9, v5
v_lshl_add_u32 v5, v3, 4, v5
v_and_b32 v6, 1, v4
v_lshl_add_u32 v5, v6, 3, v5
s_lshl_b32 s{T2}, s{T3}, 7
s_add_u32 s{T2}, s{T2}, s{T0}
s_add_u32 s{T2}, s{T2}, 2048
v_lshlrev_b32 v6, 3, v3
v_cmp_gt_u32 vcc, 16, v0
s_mov_b32 s{T3}, {hx(f2u(LOG2E/math.sqrt(20.0)))}""")
            for j in range(8): a(f"v_mul_f32 v{ACC+j}, s{T3}, v{ACC+j}")
            a("s_branch L_kv_st")
        else:
            a(f"""s_mul_i32 s{T1}, s{T3}, 640
s_add_u32 s{T1}, s{T1}, s{T0}
s_add_u32 s{T1}, s{T1}, 2560
s_add_u32 s{T2}, s{T1}, 256
v_lshrrev_b32 v5, 1, v4
v_mul_u32_u24 v5, 320, v5
v_lshl_add_u32 v5, v3, 4, v5
v_and_b32 v6, 1, v4
v_lshl_add_u32 v5, v6, 3, v5
v_mov_b32 v6, v5
v_cmp_gt_u32 vcc, 4, v3""")
    a.label("L_kv_st")
    a(f"""v_cvt_pk_bf16_f32 v208, v{ACC}, v{ACC+1}
v_cvt_pk_bf16_f32 v209, v{ACC+2}, v{ACC+3}
v_cvt_pk_bf16_f32 v210, v{ACC+4}, v{ACC+5}
v_cvt_pk_bf16_f32 v211, v{ACC+6}, v{ACC+7}
buffer_store_dwordx2 v[208:209], v5, s[{SWS}:{SWS+3}], s{T1} offen sc1
s_and_saveexec_b64 s[{EX}:{EX+1}], vcc
buffer_store_dwordx2 v[210:211], v6, s[{SWS}:{SWS+3}], s{T2} offen sc1
s_mov_b64 exec, s[{EX}:{EX+1}]""")

def kv_proj(a, cfg):
    if KV1: return kv_proj1(a, cfg)
    WR = 176
    ACC = 200
    x_frags(a, 0, kv=True)
    def reads(s):
        b = WR + 4*(s % 4)
        for hf in range(2):
            a(f"ds_read_b64_tr_b16 {vr(b+2*hf,2)}, v6 offset:{1280*s + 160*hf}")
    a(f"s_bitcmp1_b32 s{S_HG}, 0\ns_cbranch_scc1 L_kv_v")
    for kind in range(2):
        if kind: a.label("L_kv_v")
        reads(0); reads(1); reads(2)
        for s in range(20):
            if s + 3 < 20: reads(s + 3)
            a(f"s_waitcnt lgkmcnt({2*min(3, 19 - s)})")
            b = WR + 4*(s % 4)
            A, B = vr(b, 4), vr(xf(0, s), 4)
            if kind: A, B = B, A
            a(f"v_mfma_f32_16x16x32_bf16 {vr(ACC,4)}, {A}, {B}, {vr(ACC,4) if s else 0}")
        ev_signal(a, EV_TBL)
        a(f"""s_mul_i32 s{T0}, s{S_RB}, {BLK}
s_add_u32 s{T0}, s{T0}, {W_KV}
s_lshr_b32 s{T3}, s{S_HG}, 1
v_and_b32 v3, 15, v0
v_lshrrev_b32 v4, 4, v0""")
        if kind == 0:
            a(f"""s_lshr_b32 s{T1}, s{T3}, 1
s_lshl_b32 s{T1}, s{T1}, 10
s_and_b32 s{T2}, s{T3}, 1
s_lshl_b32 s{T2}, s{T2}, 8
s_add_u32 s{T1}, s{T1}, s{T2}
s_add_u32 s{T1}, s{T1}, s{T0}
v_lshrrev_b32 v5, 1, v4
v_lshlrev_b32 v5, 9, v5
v_lshl_add_u32 v5, v3, 4, v5
v_and_b32 v6, 1, v4
v_lshl_add_u32 v5, v6, 3, v5
s_lshl_b32 s{T2}, s{T3}, 7
s_add_u32 s{T2}, s{T2}, s{T0}
s_add_u32 s{T2}, s{T2}, 2048
v_lshlrev_b32 v6, 3, v3
v_cmp_gt_u32 vcc, 16, v0
s_mov_b32 s{T3}, {hx(f2u(LOG2E/math.sqrt(20.0)))}
v_cvt_pk_bf16_f32 v{ACC}, v{ACC}, v{ACC+1}
v_cvt_pk_bf16_f32 v{ACC+2}, v{ACC+2}, v{ACC+3}
v_and_b32 v{ACC+1}, 0xffff0000, v{ACC}
v_lshlrev_b32 v{ACC}, 16, v{ACC}
v_and_b32 v{ACC+3}, 0xffff0000, v{ACC+2}
v_lshlrev_b32 v{ACC+2}, 16, v{ACC+2}
v_mul_f32 v{ACC}, s{T3}, v{ACC}
v_mul_f32 v{ACC+1}, s{T3}, v{ACC+1}
v_mul_f32 v{ACC+2}, s{T3}, v{ACC+2}
v_mul_f32 v{ACC+3}, s{T3}, v{ACC+3}""")
        else:
            a(f"""s_mul_i32 s{T1}, s{T3}, 640
s_add_u32 s{T1}, s{T1}, s{T0}
s_add_u32 s{T1}, s{T1}, 2560
s_add_u32 s{T2}, s{T1}, 256
v_lshrrev_b32 v5, 1, v4
v_mul_u32_u24 v5, 320, v5
v_lshl_add_u32 v5, v3, 4, v5
v_and_b32 v6, 1, v4
v_lshl_add_u32 v5, v6, 3, v5
v_mov_b32 v6, v5
v_cmp_gt_u32 vcc, 4, v3""")
        if kind == 0: a("s_branch L_kv_st")
    a.label("L_kv_st")
    a(f"""v_cvt_pk_bf16_f32 v208, v{ACC}, v{ACC+1}
v_cvt_pk_bf16_f32 v209, v{ACC+2}, v{ACC+3}
s_cmp_lg_u32 s{S_W}, 0
s_cbranch_scc1 L_kv_st1
buffer_store_dwordx2 v[208:209], v5, s[{SWS}:{SWS+3}], s{T1} offen sc1
s_branch L_kv_done""")
    a.label("L_kv_st1")
    a(f"""s_and_saveexec_b64 s[{EX}:{EX+1}], vcc
buffer_store_dwordx2 v[208:209], v6, s[{SWS}:{SWS+3}], s{T2} offen sc1
s_mov_b64 exec, s[{EX}:{EX+1}]""")
    a.label("L_kv_done")

def cmul(a, d, x, y, t):
    a(f"v_pk_mul_f32 {vr(t,2)}, {vr(x,2)}, {vr(y,2)} op_sel:[0,0] op_sel_hi:[0,1]")
    return f"v_pk_fma_f32 {vr(d,2)}, {vr(x,2)}, {vr(y,2)}, {vr(t,2)} op_sel:[1,1,0] op_sel_hi:[1,0,1] neg_lo:[1,0,0]"
def cmul_multi(a, items, tmps):
    for k in range(0, len(items), len(tmps)):
        grp = items[k:k+len(tmps)]
        second = [cmul(a, d, x, y, t) for (d, x, y), t in zip(grp, tmps)]
        for s in second: a(s)

LOG2E = 1.4426950408889634
def acc_exp(a, d, x, t):
    a(f"""v_mul_f32 v{t}, s{S_C1}, {x}
v_fma_f32 v{t+1}, {x}, s{S_C1}, -v{t}
v_fma_f32 v{t+1}, {x}, s{S_C2}, v{t+1}
v_exp_f32 v{t}, v{t}
v_fma_f32 v{t+1}, v{t+1}, s{S_C3}, 1.0
v_mul_f32 v{d}, v{t}, v{t+1}""")

KP = 56
def kgen_loads(a):
    chan_w(a, T2)
    a(f"""s_lshl_b32 s{T3}, s{T2}, 8
v_lshlrev_b32 v2, 2, v0""")
    for i, p in enumerate((P_LAR, P_AIM, P_CR, P_CI)):
        srd(a, SB, p, 640*256)
        a(f"buffer_load_dword v{KP+i}, v2, s[{SB}:{SB+3}], s{T3} offen {PNT}")
    a(f"""s_lshl_b32 s{T3}, s{T2}, 1
s_and_b32 s{T3}, s{T3}, 0xfffffffc
s_load_dword s{S_LDT}, s[{P_LDT}:{P_LDT+1}], s{T3}
s_and_b32 s35, s{T2}, 1
s_lshl_b32 s35, s35, 4""")

K_ACC = 170; K_DT = 182; K_AW = 8; K_AR = 12
def kgen_pre(a):
    hi = f2u(LOG2E); lo = f2u(LOG2E - struct.unpack("<f", struct.pack("<I", hi))[0])
    a(f"""s_mov_b32 s{S_C1}, {hx(hi)}
s_mov_b32 s{S_C2}, {hx(lo)}
s_mov_b32 s{S_C3}, {hx(f2u(math.log(2)))}
s_mov_b32 s{S_C4}, {hx(f2u(1/(2*math.pi)))}
s_sub_u32 s{T2}, s{S_W}, 5
s_mul_i32 s{T3}, s{T2}, {SCR_SZ}
s_add_u32 s{T3}, s{T3}, {L_SCR}
v_lshl_add_u32 v{K_AW}, v0, 2, s{T3}
v_add_u32 v{K_AW+1}, 1088, v{K_AW}
v_add_u32 v{K_AW+2}, 2176, v{K_AW}
v_add_u32 v{K_AW+3}, 3264, v{K_AW}
v_and_b32 v4, 15, v0
v_mul_u32_u24 v4, 272, v4
v_lshrrev_b32 v5, 4, v0
v_lshl_add_u32 v4, v5, 4, v4
v_add_u32 v{K_AR}, s{T3}, v4
s_lshr_b32 s{S_LDT}, s{S_LDT}, s35
s_lshl_b32 s{S_LDT}, s{S_LDT}, 16
v_mov_b32 v6, s{S_LDT}""")
    acc_exp(a, K_DT, "v6", 4)
    a(f"v_cvt_pk_bf16_f32 v{K_DT}, v{K_DT}, v{K_DT}\nv_lshlrev_b32 v{K_DT}, 16, v{K_DT}")

class Spread:
    def __init__(s, a, gap): s.a = a; s.gap = gap; s.q = []; s.n = 0
    def __call__(s, text):
        for l in text.split("\n"):
            if not l.strip(): continue
            s.a(l)
            if l.strip().startswith("ds_"):
                for it in s.q: it[1] += 1
            s.n += 1
            if s.q and s.n >= s.gap: s.one()
    def label(s, n): s.a.label(n)
    def one(s):
        ins, after = s.q.pop(0)
        s.a(f"s_waitcnt lgkmcnt({min(15, after)})\n{ins}"); s.n = 0
    def defer(s, items, first_gap):
        s.q += [[ins, len(items) - 1 - k] for k, ins in enumerate(items)]; s.n = s.gap - first_gap
    def drain(s):
        while s.q: s.one()

def kgen_round(a, rnd, hook=None):
    W1, W2, V8, V2, WW = 60, 62, 64, 66, 68
    G = 70
    FA, FB = 86, 88
    TM = [90, 92, 94, 96]
    PK = 98
    BF = 104; AF = 120; ACC = K_ACC
    DT, ER, TH = K_DT, K_DT+1, K_DT+2
    for i in range(4): a(f"v_lshlrev_b32 v{PK+i}, 16, v{KP+i}" if rnd == 0 else f"v_and_b32 v{PK+i}, 0xffff0000, v{KP+i}")
    acc_exp(a, ER, f"v{PK}", 4)
    a(f"""v_cvt_pk_bf16_f32 v{ER}, v{ER}, v{ER}
v_mul_f32 v{TH}, v{PK+1}, v{DT}
v_lshlrev_b32 v{ER}, 16, v{ER}
v_mul_f32 v{G}, v{PK+2}, v{DT}
v_mul_f32 v{ER}, v{ER}, v{DT}
v_mul_f32 v{G+1}, v{PK+3}, v{DT}
v_mul_f32 v{ER}, s{S_C1}, -v{ER}
v_mul_f32 v{TH}, s{S_C4}, v{TH}
v_add_f32 v{G}, v{G}, v{G}
v_add_f32 v{G+1}, v{G+1}, v{G+1}
v_mul_f32 v{TM[1]}, 0x41000000, v{ER}
v_mul_f32 v{TM[1]+1}, 0x41000000, v{TH}
v_mul_f32 v{TM[2]}, 0x43000000, v{ER}
v_mul_f32 v{TM[2]+1}, 0x43000000, v{TH}
v_fract_f32 v{TM[0]+1}, v{TH}
v_fract_f32 v{TM[1]+1}, v{TM[1]+1}
v_fract_f32 v{TM[2]+1}, v{TM[2]+1}
v_exp_f32 v{TM[0]}, v{ER}
v_exp_f32 v{TM[1]}, v{TM[1]}
v_exp_f32 v{TM[2]}, v{TM[2]}""")
    for k, dst in enumerate((W1, V8, WW)): a(f"v_cos_f32 v{dst}, v{TM[k]+1}\nv_sin_f32 v{dst+1}, v{TM[k]+1}")
    a(f"v_mov_b32 v{PK}, 0x3f80")
    for k, dst in enumerate((W1, V8, WW)): a(f"v_pk_mul_f32 {vr(dst,2)}, {vr(dst,2)}, {vr(TM[k],2)} op_sel_hi:[1,0]")
    pk = [1]; pend = [(0, PK)]
    def flush():
        if pend:
            row, r = pend.pop()
            a(f"ds_write_b32 v{K_AW + (row >> 2)}, v{r} offset:{272*(row & 3)}")
    def put(row, src, neg):
        r = PK + (pk[0] % 6); pk[0] += 1
        a(f"v_cvt_pk_bf16_f32 v{r}, v{src}, {'-' if neg else ''}v{src+1}")
        if pend and pend[0][0] >> 2 == row >> 2:
            row0, r0 = pend.pop()
            a(f"ds_write2_b32 v{K_AW + (row >> 2)}, v{r0}, v{r} offset0:{68*(row0 & 3)} offset1:{68*(row & 3)}")
        else:
            flush(); pend.append((row, r))
    cmul_multi(a, [(W2, W1, W1), (V2, V8, V8), (G+2, G, W1)], TM)
    put(1, V8, True); put(2, V2, True)
    fa, fb = V8, V2
    for k in range(7):
        items = [(FA, fa, V2)]
        if k < 6: items.append((FB, fb, V2))
        if k < 3: items += [(G+4+4*k, G+4*k, W2), (G+6+4*k, G+2+4*k, W2)]
        cmul_multi(a, items, TM)
        put(3+2*k, FA, True)
        if k < 6: put(4+2*k, FB, True)
        fa, fb = FA, FB
    flush()
    a.drain()
    for ks in range(4): a(f"ds_read_b128 {vr(BF+4*ks,4)}, v{K_AR} offset:{64*ks}")
    if hook: hook()
    def tile(T):
        flush()
        a.drain()
        for ks in range(4): a(f"ds_read_b128 {vr(AF+4*ks,4)}, v{K_AR} offset:{64*ks}")
        a.defer([f"v_mfma_f32_16x16x32_bf16 {vr(ACC+4*T,4)}, {vr(AF+4*ks,4)}, {vr(BF+4*ks,4)}, {vr(ACC+4*T,4) if ks or rnd else 0}" for ks in range(4)], KGAP0)
    def mm(T): pass
    for g in range(8): put(g, G+2*g, False)
    cmul_multi(a, [(G+2*g, G+2*g, WW) for g in range(8)], TM)
    for g in range(8): put(8+g, G+2*g, False)
    tile(0)
    ev = [0, 2, 4, 6]
    cmul_multi(a, [(G+2*g, G+2*g, WW) for g in ev], TM)
    mm(0)
    for i, g in enumerate(ev): put(i, G+2*g, False)
    cmul_multi(a, [(G+2*g, G+2*g, WW) for g in ev], TM)
    for i, g in enumerate(ev): put(4+i, G+2*g, False)
    for al in range(4):
        cmul_multi(a, [(G, G, WW), (G+8, G+8, WW)], TM)
        put(8+2*al, G, False); put(9+2*al, G+8, False)
    tile(1)
    cmul_multi(a, [(G, G, WW), (W2, WW, WW)], TM)
    mm(1)
    cmul_multi(a, [(G+2, G, WW)], TM)
    put(0, G, False); put(1, G+2, False)
    for k in range(1, 4):
        cmul_multi(a, [(G, G, W2), (G+2, G+2, W2)], TM)
        put(2*k, G, False); put(2*k+1, G+2, False)
    cmul_multi(a, [(G, G, W2)], TM)
    put(8, G, False)
    tile(2)
    mm(2)

def kgen_table(a):
    PK = 98; ACC = K_ACC
    a(f"""s_sub_u32 s{T2}, s{S_W}, 5
s_mul_i32 s{T3}, s{T2}, {TBL_SZ}
s_add_u32 s{T3}, s{T3}, {L_TBL}
v_and_b32 v4, 15, v0
v_lshrrev_b32 v5, 4, v0
v_lshrrev_b32 v6, 1, v5
v_and_b32 v7, 1, v5
v_lshlrev_b32 v8, 8, v6
v_lshl_add_u32 v8, v7, 3, v8
v_lshl_add_u32 v8, v4, 4, v8
v_add_u32 v8, s{T3}, v8
v_lshlrev_b32 v9, 7, v5
v_lshl_add_u32 v9, v4, 3, v9
v_add_u32 v10, 4, v9
v_lshlrev_b32 v11, 7, v7
v_lshl_add_u32 v11, v4, 2, v11
v_add_u32 v11, 256, v11
v_add_u32 v12, 64, v11
v_cmp_lt_u32 vcc, 1, v5
v_lshlrev_b32 v13, 7, v5
v_lshl_add_u32 v13, v4, 1, v13
v_cndmask_b32 v9, v9, v11, vcc
v_cndmask_b32 v10, v10, v12, vcc
v_add_u32 v13, s{T3}, v13
v_add_u32 v9, s{T3}, v9
v_add_u32 v10, s{T3}, v10
v_mov_b32 v2, 0
v_mov_b32 v3, 0
v_mov_b32 v4, s{T3}""")
    a.drain()
    chan_w(a, T0)
    a(f"""s_and_b32 s{T0}, s{T0}, 1
s_lshl_b32 s{T0}, s{T0}, 4
s_lshr_b32 s{S_D0}, s{S_D0}, s{T0}
s_lshl_b32 s{S_D0}, s{S_D0}, 16
s_mov_b64 exec, 1
v_add_f32 v{ACC}, s{S_D0}, v{ACC}
s_mov_b64 exec, -1""")
    for i in range(6): a(f"v_cvt_pk_bf16_f32 v{PK+i}, v{ACC+2*i}, v{ACC+2*i+1}")
    a(f"""ds_write_b64 v4, v[2:3]
ds_write_b64 v8, v[{PK}:{PK+1}] offset:8
ds_write_b32 v9, v{PK+2} offset:{8+512}
ds_write_b32 v10, v{PK+3} offset:{8+512}
ds_write_b16 v13, v{PK+4} offset:{8+1024}
ds_write_b16_d16_hi v13, v{PK+4} offset:{8+1024+32}
ds_write_b16 v13, v{PK+5} offset:{8+1024+64}
ds_write_b16_d16_hi v13, v{PK+5} offset:{8+1024+96}""")

def expand_index(a):
    AD = EXI; E = 60; LF = 66
    a(f"""s_sub_u32 s{T2}, s{S_W}, 4
s_lshl_b32 s{T3}, s{T2}, 9
s_sub_u32 s{T3}, 2048, s{T3}
v_lshlrev_b32 v4, 3, v0
v_sub_u32 v4, s{T3}, v4
v_cvt_f32_u32 v5, v4
s_mov_b32 s{T4}, {hx(L_TBL + 8 - 2*17024)}
s_mov_b32 s{T5}, {L_TBL + 8 + 256}
v_lshlrev_b32 v6, 1, v4
v_add_u32 v6, {L_TBL + 8}, v6""")
    for e in range(12):
        a(f"v_subrev_f32 v{LF+e}, {hx(f2u(float(e)))}, v5")
        if e >= 9: a(f"v_max_f32 v{LF+e}, 0, v{LF+e}")
    for k in range(6): a(f"v_cvt_pk_bf16_f32 v{E+k}, v{LF+2*k}, v{LF+2*k+1}")
    for e in range(12):
        a(f"v_mad_u32_u16 v{AD+e}, v{E+(e>>1)}, 2, s{T4} op_sel:[{e&1},0,0,0]")
        a(f"v_subrev_u32 v{LF+e}, {2*e}, v6")
    for e in range(12): a(f"v_med3_i32 v{AD+e}, v{AD+e}, v{LF+e}, s{T5}")

def expand(a, cfg):
    AD = EXI; O = 96
    E = lambda c: 60 + 12*c
    a(f"""s_sub_u32 s{T2}, s{S_W}, 4
s_lshl_b32 s{T3}, s{T2}, 10
s_add_u32 s{T3}, s{T3}, {L_CP}
v_add_u32 v4, s{T3}, v1""")
    for c in range(3):
        for e in range(12):
            a(f"ds_read_u16{'_d16_hi' if e & 1 else ''} v{E(c) + 6*(e & 1) + (e >> 1)}, v{AD+e} offset:{c*TBL_SZ}")
    for c in range(3):
        b = E(c)
        if not EXP128: a(f"v_add_u32 v5, {c*CP_CH + 2*CP_C}, v4\nv_add_u32 v6, {c*CP_CH + 3*CP_C}, v4")
        a(f"s_waitcnt lgkmcnt({min(15, 12*(2-c) + (4 if EXP128 else 6)*c)})")
        if not EXP128:
            for k in range(6): a(f"v_or_b32 v{b+k}, v{b+k}, v{b+6+k}")
            for k in range(5): a(f"v_alignbit_b32 v{O+k}, v{b+k+1}, v{b+k}, 16")
            a(f"""ds_write_b128 v4, {vr(b,4)} offset:{c*CP_CH}
ds_write2_b32 v5, v{b+1}, v{b+2} offset0:0 offset1:1
ds_write2_b32 v5, v{b+3}, v{b+4} offset0:2 offset1:3
ds_write_b128 v4, {vr(O,4)} offset:{c*CP_CH + CP_C}
ds_write2_b32 v6, v{O+1}, v{O+2} offset0:0 offset1:1
ds_write2_b32 v6, v{O+3}, v{O+4} offset0:2 offset1:3""")
        else:
            Y = 136; O1 = 140; O3 = 156
            for k in range(4): a(f"v_or_b32 v{Y+k}, v{b+k+1}, v{b+7+k}")
            for k in range(6): a(f"v_or_b32 v{b+k}, v{b+k}, v{b+6+k}")
            a(f"ds_write_b128 v4, {vr(Y,4)} offset:{c*CP_CH + 2*CP_C}")
            for k in range(4): a(f"v_alignbit_b32 v{O1+k}, v{b+k+1}, v{b+k}, 16")
            a(f"ds_write_b128 v4, {vr(b,4)} offset:{c*CP_CH}")
            for k in range(4): a(f"v_alignbit_b32 v{O3+k}, v{b+k+2}, v{b+k+1}, 16")
            a(f"ds_write_b128 v4, {vr(O1,4)} offset:{c*CP_CH + CP_C}\nds_write_b128 v4, {vr(O3,4)} offset:{c*CP_CH + 3*CP_C}")
    a(f"""s_cmp_lg_u32 s{S_W}, 5
s_cbranch_scc1 L_exp_done
v_lshrrev_b32 v5, 3, v0
v_mul_u32_u24 v6, {CP_CH}, v5
v_bfe_u32 v7, v0, 1, 2
v_mul_u32_u24 v7, {CP_C}, v7
v_and_b32 v8, 1, v0
v_lshl_add_u32 v7, v8, 4, v7
v_add_u32 v6, v6, v7
v_add_u32 v6, {L_CP + 4096}, v6
v_mov_b32 v8, 0
v_mov_b32 v9, 0
v_mov_b32 v10, 0
v_mov_b32 v11, 0
v_mul_u32_u24 v12, {TBL_SZ}, v0
v_add_u32 v12, {L_TBL + 8}, v12
v_mul_u32_u24 v13, {CP_CH}, v0
s_mov_b64 exec, 7
ds_read_u16 v12, v12
s_mov_b64 exec, 0xffffff
ds_write_b128 v6, v[8:11]
s_mov_b64 exec, 7
v_add_u32 v13, {L_CP + 4096}, v13
s_waitcnt lgkmcnt(0)
ds_write_b16 v13, v12
s_mov_b64 exec, -1""")
    a.label("L_exp_done")

def q_side(a, cfg):
    a(f"""s_setprio 2
s_waitcnt lgkmcnt(0)
s_load_dword s{S_NONCE}, s[{P_WS}:{P_WS+1}], {W_NONCE}""")
    srd(a, SA, P_X, 2048*1280)
    crit_loads(a)
    stamp(a, cfg, 0)
    rest_x(a, "lo")
    srd(a, SWS, P_WS, WS_SZ)
    q_addrs(a)
    a(f"s_bitcmp1_b32 s{S_W}, 0\ns_cbranch_scc1 L_q_wa1")
    wq_items(a, 16, 4, True).flush(a)
    a("s_branch L_q_wa2")
    a.label("L_q_wa1")
    wq_items(a, 16, 4, False).flush(a)
    a.label("L_q_wa2")
    stamp(a, cfg, 22)
    conv_addrs(a, False)
    finish_nonce(a)
    a(f"""v_lshrrev_b32 v6, 4, v0
v_lshlrev_b32 v6, 3, v6
v_bfe_u32 v7, v0, 2, 2
v_add_u32 v6, v6, v7
v_mul_u32_u24 v6, 40, v6
v_and_b32 v7, 3, v0
v_lshl_add_u32 v6, v7, 3, v6
s_lshl_b32 s{T0}, s{S_W}, 4
s_add_u32 s{T0}, s{T0}, {L_WK}
v_add_u32 v6, s{T0}, v6
s_bitcmp1_b32 s{S_W}, 0
s_cbranch_scc1 L_q_wb1
s_waitcnt vmcnt(21)
s_branch L_q_wb2""")
    a.label("L_q_wb1")
    a("s_waitcnt vmcnt(19)")
    a.label("L_q_wb2")
    ev_signal(a, EV_CRIT)
    a(f"s_setprio {KVPRIO}")
    stamp(a, cfg, 24)
    a(f"s_bitcmp1_b32 s{S_W}, 0\ns_cbranch_scc1 L_q_odd")
    if KV1: a(f"s_cmp_eq_u32 s{S_W}, 2\ns_cbranch_scc1 L_q_w2")
    ev_wait(a, EV_CRIT, 0x0f)
    stamp(a, cfg, 1)
    kv_proj(a, cfg)
    a(f"s_waitcnt vmcnt({7 + KV1})")
    ev_signal(a, EV_X)
    a("s_branch L_q_tail")
    if KV1:
        a.label("L_q_w2")
        a("s_waitcnt vmcnt(6)")
        ev_signal(a, EV_X)
        a("s_branch L_q_tail")
    a.label("L_q_odd")
    a("s_waitcnt vmcnt(4)")
    ev_signal(a, EV_X)
    if PF2:
        srd(a, SB, P_WQ, 512*1280)
        a(f"""s_mul_i32 s{T0}, s{S_J}, 20480
s_lshr_b32 s{T1}, s{S_W}, 1
s_mul_i32 s{T1}, s{T1}, 10240
s_add_u32 s{T0}, s{T0}, s{T1}""")
        for i in range(10):
            if i in (4, 8): a(f"s_add_u32 s{T0}, s{T0}, 4096")
            a(f"buffer_load_dwordx4 v[204:207], v1, s[{SB}:{SB+3}], s{T0} offen offset:{1024*(i & 3)}")
    a.label("L_q_tail")
    a("s_setprio 0")
    tail_addrs(a.sub("q"))
    a("; CUT q_main")
    ev_wait(a, EV_X, 0x0f)
    stamp(a, cfg, 2)
    x_frags(a, 0)
    x_frags(a, 1)
    if PF2:
        a(f"s_bitcmp1_b32 s{S_W}, 0\ns_cbranch_scc1 L_q_fr1\ns_waitcnt vmcnt(0) lgkmcnt(0)\ns_branch L_q_fr2")
        a.label("L_q_fr1")
        a("s_waitcnt vmcnt(10) lgkmcnt(0)")
        a.label("L_q_fr2")
    else:
        a("s_waitcnt vmcnt(0) lgkmcnt(0)")
    ev_signal(a, EV_FR)
    a(f"s_cmp_lg_u32 s{S_W}, 0\ns_cbranch_scc1 L_q_nokv0")
    ev_wait(a, EV_FR, 0x0f)
    a(f"""v_lshlrev_b32 v3, 10, v0
s_lshl_b32 s{T0}, s2, 2
s_add_u32 s{T0}, s{T0}, {W_FKV}
s_mov_b64 exec, 0xff
buffer_store_dword v{V_NON}, v3, s[{SWS}:{SWS+3}], s{T0} offen sc1
s_mov_b64 exec, -1
s_branch L_q_go""")
    a.label("L_q_nokv0")
    ev_wait(a, EV_FR, 0x0f)
    a.label("L_q_go")
    a(f"s_setprio {QPRIO}")
    stamp(a, cfg, 26)
    ACC = 200
    RING = [176, 188, 16, 28]
    a(f"s_bitcmp1_b32 s{S_W}, 0\ns_cbranch_scc1 L_q_three")
    for nct in (2, 3):
        if nct == 3: a.label("L_q_three")
        dma = wq_items(a, 0, 16, nct == 2)
        a(f"v_add_u32 v6, 51200, v{A_WQ}")
        for grp, (n0, n1) in enumerate(((0, 4), (4, 12), (12, 20))):
            depth = 1 if grp == 0 else 2
            ring = RING[:2] if grp == 0 else [RING[0], RING[1], 16 if nct == 3 else 16]
            slot = lambda n: ring[(n - n0) % (depth + 1)]
            def reads(n, ct):
                s = ORDER[n]; b = slot(n) + 4*ct
                base, off = (A_WQ, 5120*s) if s < 10 else (6, 5120*(s - 10))
                return [f"ds_read_b64_tr_b16 {vr(b+2*hf,2)}, v{base} offset:{off + 1280*hf + 32*ct}" for hf in range(2)]
            if grp == 1:
                a("s_waitcnt lgkmcnt(0)")
                ev_signal(a, EV_WQA)
                if UDMA:
                    ev_wait(a, EV_WQA, 0x1f)
                    a(f"s_lshl_b32 s{T3}, s{S_W}, 10")
                    for c in range(3):
                        chan(a, T1, c)
                        a(f"""s_lshl_b32 s{T1}, s{T1}, 12
s_add_u32 s{T1}, s{T1}, s{T3}
s_add_u32 m0, s{T3}, {L_UT + 512 + UT_CH*UPOS[c]}
s_add_u32 s{T1}, s{T1}, {W_UT}
buffer_load_dwordx4 v1, s[{SWS}:{SWS+3}], s{T1} offen sc1 lds""")
                dma.flush(a)
                stamp(a, cfg, 3)
                attn_init(a)
            if grp >= 1:
                a(f"s_waitcnt vmcnt({(12 if nct == 2 else 8)*(2-grp)})")
                if grp == 2 and nct == 2:
                    a(f"s_cmp_lg_u32 s{S_W}, 2\ns_cbranch_scc1 L_q_kvok")
                    poll(a, "kv", 7, 4, 208 + 12, pre=True)
                    a.label("L_q_kvok")
                ev_signal(a, EV_WQ + grp - 1)
                ev_wait(a, EV_WQ + grp - 1, 0x0f if grp == 1 else 0xff)
                if grp == 1 and nct == 2:
                    a(f"""s_cmp_lg_u32 s{S_W}, 2
s_cbranch_scc1 L_q_nopoll
s_lshl_b32 s{T0}, s{S_XCD}, 10
s_add_u32 s{T0}, s{T0}, {W_FKV}
v_add_u32 v7, s{T0}, v1
buffer_load_dwordx4 v[220:223], v7, s[{SWS}:{SWS+3}], 0 offen sc1""")
                    a.label("L_q_nopoll")
                if grp == 2:
                    a(f"""s_lshl_b32 s{S_DM}, s{S_W}, 10
s_add_u32 s{S_DO}, s{S_DM}, {W_KV}""")
                    dma = Dma([f"s_mov_b32 m0, s{S_DM}\ns_add_u32 s{S_DM}, s{S_DM}, 4096\nbuffer_load_dwordx4 v1, s[{SWS}:{SWS+3}], s{S_DO} offen sc1 lds\ns_add_u32 s{S_DO}, s{S_DO}, 4096"] * 10)
            if grp == 2: stamp(a, cfg, 25)
            for d in range(depth):
                for ct in range(nct):
                    for r in reads(n0 + d, ct): a(r)
            for n in range(n0, n1):
                s = ORDER[n]; b = slot(n)
                for ct in range(nct):
                    after = 2*(nct - 1 - ct)
                    for m in range(n + 1, n + depth):
                        if m < n1: after += 2*nct
                    if n + depth < n1: after += 2*ct
                    a(f"s_waitcnt lgkmcnt({after})")
                    for i in range(2):
                        acc = ACC + 12*i + 4*ct
                        a(f"v_mfma_f32_16x16x32_bf16 {vr(acc,4)}, {vr(b+4*ct,4)}, {vr(xf(i, s),4)}, {vr(acc,4) if n else 0}")
                        if grp == 0 and i == 0 and (n*nct + ct) < G0DMA: dma.pop(a)
                        if grp == 2 and i == 0 and ct < 2: dma.pop(a)
                    if n + depth < n1:
                        for r in reads(n + depth, ct): a(r)
        stamp(a, cfg, 6)
        a(f"s_setprio {Q2PRIO}")
        a("s_nop 7")
        for i in range(2):
            for ct in range(nct):
                acc = ACC + 12*i + 4*ct
                a(f"v_cvt_pk_bf16_f32 v{acc}, v{acc}, v{acc+1}\nv_cvt_pk_bf16_f32 v{acc+1}, v{acc+2}, v{acc+3}")
                a(f"ds_write_b64 v{Q_W}, {vr(acc,2)} offset:{2560*i + 32*ct}")
        if nct == 2: a("s_branch L_q_kv")
    a.label("L_q_kv")
    stamp(a, cfg, 7)
    a("s_waitcnt vmcnt(0) lgkmcnt(0)")
    ev_signal(a, EV_QD)
    if cfg.nonce_update:
        a(f"""s_or_b32 s{T2}, s2, s{S_W}
s_cmp_lg_u32 s{T2}, 0
s_cbranch_scc1 L_q_nn
v_mov_b32 v2, {W_NONCE}
s_mov_b64 exec, 1
buffer_store_dword v{V_NON}, v2, s[{SWS}:{SWS+3}], 0 offen
s_mov_b64 exec, -1""")
        a.label("L_q_nn")
    a("s_setprio 0")
    ev_wait(a, EV_QD, 0x0f)
    q_reads(a)
    attn_first(a, False)

def k_side(a, cfg):
    UT2 = [104, 120, 198]
    a(f"""s_setprio {K0PRIO}
s_cmp_eq_u32 s{S_W}, 4
s_cbranch_scc1 L_k_u
s_waitcnt lgkmcnt(0)
s_load_dword s{S_NONCE}, s[{P_WS}:{P_WS+1}], {W_NONCE}""")
    kgen_loads(a)
    a(f"s_load_dword s{S_D0}, s[{P_DSK}:{P_DSK+1}], s{T3}\ns_setprio {KAPRIO}")
    if PF3:
        a(f"s_cmp_lg_u32 s{S_W}, {PF3}\ns_cbranch_scc1 L_k_nopf3")
        srd(a, SB, P_WQ, 512*1280)
        a(f"s_mul_i32 s{T0}, s2, 2560")
        for i in range(3):
            if i == 2: a("s_mov_b32 exec_hi, 0")
            a(f"buffer_load_dwordx4 v[204:207], v1, s[{SB}:{SB+3}], s{T0} offen offset:{1024*i}")
        a("s_mov_b32 exec_hi, -1")
        a.label("L_k_nopf3")
    if PF:
        srd(a, SB, P_WQ, 512*1280)
        a(f"""s_mul_i32 s{T0}, s{S_J}, 20480
s_sub_u32 s{T1}, s{S_W}, 5
s_mul_i32 s{T1}, s{T1}, 7168
s_add_u32 s{T0}, s{T0}, s{T1}
s_add_u32 s{T1}, s{T0}, 4096""")
        for i in range(7):
            a(f"buffer_load_dwordx4 v[200:203], v1, s[{SB}:{SB+3}], s{T0 if i < 4 else T1} offen offset:{1024*(i & 3)}")
    a.label("L_k_nopf")
    srd(a, SWS, P_WS, WS_SZ)
    a("s_call_b64 s[92:93], L_sub_kaddr")
    stamp(a, cfg, 22)
    kgen_pre(a)
    a("; CUT k_gen")
    a(f"s_setprio {KPRIO}\ns_waitcnt vmcnt({7 if PF else 0})")
    stamp(a, cfg, 24)
    sp = Spread(a, KGAP)
    kgen_round(sp, 0)
    if not cfg.few: stamp(a, cfg, 1)
    kgen_round(sp, 1)
    kgen_table(sp)
    a("s_branch L_k_done")
    a("; CUT u_early")
    a.label("L_k_u")
    for i in range(5): div10_offsets(a, 8+i, None, 64*i, 2, False)
    a(f"s_waitcnt lgkmcnt(0)\ns_load_dword s{S_NONCE}, s[{P_WS}:{P_WS+1}], {W_NONCE}")
    srd(a, SB, P_U, 2048*1280)
    a(f"""s_mul_i32 s{T2}, s{S_J}, {64*1280}
s_mul_i32 s{T3}, s{S_XCD}, 160
s_add_u32 s{T2}, s{T2}, s{T3}
s_add_u32 s{T3}, s{T2}, 40960
s_mov_b32 m0, {L_UST}
s_nop 0""")
    for i in range(10):
        a(f"buffer_load_dwordx4 v{8+i%5}, s[{SB}:{SB+3}], s{T2 if i < 5 else T3} offen {UNT} lds")
        if i < 9: a(f"s_add_u32 m0, m0, 1024\ns_nop 0")
    srd(a, SWS, P_WS, WS_SZ)
    stamp(a, cfg, 22)
    a(f"""s_lshl_b32 s{T0}, s{S_W}, 2
s_add_u32 s{T0}, s{T0}, {L_EV}
v_mov_b32 v{E_W}, s{T0}
v_and_b32 v2, 3, v0
v_lshrrev_b32 v3, 4, v0
v_lshl_add_u32 v2, v3, 2, v2
v_and_b32 v3, 7, v2
v_lshrrev_b32 v4, 3, v2
v_bfe_u32 v5, v0, 2, 2
v_lshl_add_u32 v5, v3, 3, v5
v_mul_u32_u24 v5, 160, v5
v_lshl_add_u32 v5, v4, 3, v5
v_add_u32 v5, {L_UST}, v5
v_and_b32 v2, 3, v0
v_lshl_add_u32 v6, v4, 2, v2
v_bfe_u32 v3, v0, 2, 3
v_xor_b32 v7, v3, v6
v_lshlrev_b32 v6, 7, v6
v_lshl_add_u32 v6, v7, 4, v6
v_add_u32 v6, {L_UST}, v6
v_lshrrev_b32 v7, 3, v0
v_and_b32 v3, 7, v0
v_xor_b32 v3, v3, v7
v_lshlrev_b32 v7, 12, v7
v_lshl_add_u32 v7, v3, 4, v7
v_add_u32 v8, {L_UST}, v1
s_mul_i32 s{T2}, s{S_XCD}, {80*4096}
s_lshl_b32 s{T3}, s{S_J}, 7
s_add_u32 s{T2}, s{T2}, s{T3}
s_add_u32 s{T2}, s{T2}, {W_UT}""")
    finish_nonce(a)
    a("s_waitcnt vmcnt(0)")
    stamp(a, cfg, 24)
    UR = 60
    for i in range(10):
        for hf in range(2):
            a(f"ds_read_b64_tr_b16 {vr(UR+4*i+2*hf,2)}, v5 offset:{16*i + 640*hf}")
    a("s_waitcnt lgkmcnt(0)")
    for i in range(10): a(f"ds_write_b128 v6, {vr(UR+4*i,4)} offset:{1024*i}")
    for i in range(10): a(f"ds_read_b128 {vr(UR+40+4*i,4)}, v8 offset:{1024*i}")
    for k in range(10):
        a(f"s_waitcnt lgkmcnt({9-k})\nbuffer_store_dwordx4 {vr(UR+40+4*k,4)}, v7, s[{SWS}:{SWS+3}], s{T2} offen sc1\ns_add_u32 s{T2}, s{T2}, 32768")
    ev_signal(a, EV_TBL)
    stamp(a, cfg, 1)
    a(f"""s_lshl_b32 s{T0}, s{S_XCD}, 8
s_lshl_b32 s{T2}, s{S_J}, 2
s_add_u32 s{T0}, s{T0}, s{T2}
s_add_u32 s{T0}, s{T0}, {W_FU}
v_mov_b32 v7, 0
s_waitcnt vmcnt(0)
s_mov_b64 exec, 1
buffer_store_dword v{V_NON}, v7, s[{SWS}:{SWS+3}], s{T0} offen sc1
s_mov_b64 exec, -1
s_setprio 0""")
    a("; CUT u_main")
    a("s_call_b64 s[92:93], L_sub_kaddr")
    ev_wait(a, UEV, UMASK)
    a(f"""s_lshl_b32 s{T0}, s{S_XCD}, 8
s_add_u32 s{T0}, s{T0}, {W_FU}
v_lshl_add_u32 v3, v0, 2, s{T0}""")
    poll(a, "u", 3, 1, 4, lanes=32, sleep=USLEEP)
    stamp(a, cfg, 5)
    if UDMA: ev_signal(a, EV_WQA)
    for c in range(0 if UDMA else 3):
        chan(a, T0, c)
        a(f"s_lshl_b32 s{T0}, s{T0}, 12\ns_add_u32 s{T0}, s{T0}, {W_UT}")
        for i in range(4):
            a(f"buffer_load_dwordx4 {vr(UT2[c]+4*i,4)}, v1, s[{SWS}:{SWS+3}], s{T0} offen offset:{1024*i} sc1")
    a(f"s_setprio {KPRIO}\ns_branch L_k_exp")
    a.label("L_k_done")
    a("s_waitcnt lgkmcnt(0)")
    ev_signal(a, EV_TBL)
    stamp(a, cfg, 2)
    a.label("L_k_exp")
    ev_wait(a, EV_TBL, 0xf1 if KV1 else 0xf5)
    stamp(a, cfg, 26)
    expand(a, cfg)
    a("s_waitcnt lgkmcnt(0)")
    ev_signal(a, EV_WQ + 1)
    stamp(a, cfg, 3)
    a(f"s_cmp_eq_u32 s{S_W}, 5\ns_cbranch_scc1 L_k_c0\ns_cmp_eq_u32 s{S_W}, 6\ns_cbranch_scc1 L_k_c0")
    ev_wait(a, EV_WQA, 0x0f)
    a(f"s_cmp_eq_u32 s{S_W}, 4\ns_cbranch_scc1 {'L_k_c0' if UDMA else 'L_k_ut'}")
    a(f"""v_lshlrev_b32 v2, 3, v0
v_add_u32 v2, {L_UT}, v2
v_mov_b32 v4, 0
v_mov_b32 v5, 0""")
    for c in range(3): a(f"ds_write_b64 v2, v[4:5] offset:{UT_CH*c}")
    a("s_branch L_k_c0")
    a.label("L_k_ut")
    if not UDMA: a(f"v_add_u32 v2, {L_UT + 512}, v1\ns_waitcnt vmcnt(0)")
    for c in range(0 if UDMA else 3):
        for i in range(4): a(f"ds_write_b128 v2, {vr(UT2[c]+4*i,4)} offset:{UT_CH*UPOS[c] + 1024*i}")
    a.label("L_k_c0")
    a("s_waitcnt lgkmcnt(0)")
    ev_signal(a, EV_C0)
    if UDMA: ev_wait(a, EV_WQ, 0x0f)
    ev_wait(a, EV_C0, 0xf0)
    stamp(a, cfg, 9)
    a(f"s_setprio {CPRIO}")
    conv(a, cfg)
    ev_wait(a, EV_QD, 0x0f, 5)
    ev_signal(a, EV_C2, 5)
    q_reads(a)
    attn_first(a, False)
    ev_wait(a, EV_C2, 0xf0, 5)
    stamp(a, cfg, 28)
    y_epilogue(a, cfg)
    a("s_setprio 3")

def k_addrs(a):
    a.label("L_sub_kaddr")
    expand_index(a)
    typed_offset(a)
    conv_addrs(a, True)
    tail_addrs(a.sub("k"))
    attn_init(a)
    finish_nonce(a.sub("k"), False)
    a("s_setpc_b64 s[92:93]")

def q_reads(a):
    a(f"""ds_read2_b64 {vr(AR.QA,4)}, v{Q_R} offset0:0 offset1:1
ds_read2_b64 {vr(AR.QB,4)}, v{Q_R} offset0:10 offset1:11
ds_read_b64 {vr(AR.Q4,2)}, v{Q_R4} offset:32""")
    attn_clear(a)

def join(a, cfg):
    a.label("L_join")
    srd(a, SOUT, P_OUT, 2048*1280*2)
    stamp(a, cfg, 11)

class AR: pass
AR.S = [8, 40]; AR.CZ = 72; AR.OA = 104; AR.OB = 120
AR.K16 = 136; AR.K4 = 140; AR.V0 = 144; AR.V1 = 148
AR.IDX = 152; AR.aK16 = 153; AR.aK4 = 154; AR.aV = 155
AR.QA = 156; AR.QB = 160; AR.Q4 = 164

def attn_init(a):
    R = AR
    a(f"""s_mul_i32 s{T0}, s{S_KH}, {BLK}
v_add_u32 v{R.aK16}, s{T0}, v1
v_lshl_add_u32 v{R.aK4}, v0, 3, s{T0}
v_and_b32 v2, 31, v0
v_lshrrev_b32 v3, 5, v0
v_mul_u32_u24 v3, 320, v3
v_lshl_add_u32 v2, v2, 4, v3
v_add_u32 v{R.aV}, s{T0}, v2
v_mov_b32 v{R.IDX}, 0xdddd""")
    for i in range(8): a(f"v_mov_b32 v{R.V0+i}, 0")
    a(f"s_mov_b32 exec_lo, 0x00100000\ns_mov_b32 exec_hi, 0x00100000")
    for i in range(8): a(f"v_mov_b32 v{R.V0+i}, 0x3f803f80")
    a("s_mov_b64 exec, -1")

def attn_clear(a):
    R = AR
    for i in range(8): a(f"v_mov_b32 v{R.S[1]+24+i}, 0")
    a(f"""s_nop 0
v_mfma_f32_32x32x16_bf16 {vr(R.OA,16)}, {vr(R.S[1]+24,4)}, {vr(R.S[1]+24,4)}, 0
v_mfma_f32_32x32x16_bf16 {vr(R.OB,16)}, {vr(R.S[1]+24,4)}, {vr(R.S[1]+24,4)}, 0""")

class Dma:
    def __init__(s, items): s.items = list(items)
    def pop(s, a, n=1):
        for _ in range(n):
            if s.items: a(s.items.pop(0))
    def flush(s, a): s.pop(a, len(s.items))

S_DM = 90; S_DO = 91
def kv_dma_items(a, first, n):
    a(f"""s_lshl_b32 s{S_DM}, s{S_W}, 10
s_add_u32 s{S_DM}, s{S_DM}, {first*1024}
s_add_u32 s{S_DO}, s{S_DM}, {W_KV}""")
    return Dma([f"s_mov_b32 m0, s{S_DM}\ns_add_u32 s{S_DM}, s{S_DM}, 8192\nbuffer_load_dwordx4 v1, s[{SWS}:{SWS+3}], s{S_DO} offen sc1 lds\ns_add_u32 s{S_DO}, s{S_DO}, 8192"] * n)

TILES = ([0, 2, 5, 7], [1, 3, 4, 6])
def conv(a, cfg):
    ACC = [8, 40]; FA = [72, 160]; FB = [104, 192]
    def reads(task, i):
        st = task & 1
        va, vb, d = (C_A, C_B, 192 - 64*task) if task < 4 else (C_A2, C_B2, 192 - 64*(task - 4))
        return [f"ds_read_b128 {vr(FB[st]+4*i,4)}, v{vb} offset:{512*i + d}",
                f"ds_read_b64 {vr(FA[st]+4*i,2)}, v{va} offset:{512*(7-i) + d}",
                f"ds_read_b64 {vr(FA[st]+4*i+2,2)}, v{va} offset:{512*(7-i) + 8 + d}"]
    def run(task, pend, tiles, nxt, extra=None):
        st = task & 1; acc = ACC[task >= 4]
        queue = [(r, task) for r in pend] + ([(r, task+1) for i in range(8) for r in reads(task+1, i)] if nxt else [])
        issued_own = 24 - len(pend); issued_next = 0
        total = sum(i + 1 for i in tiles); nm = 0
        for i in tiles:
            while issued_own < 3*(i+1):
                a(queue.pop(0)[0]); issued_own += 1
            if extra is None: a(f"s_waitcnt lgkmcnt({min(15, issued_own - 3*(i+1) + issued_next)})")
            for j in range(i + 1):
                c = "0" if task in (0, 4) and j == 0 else vr(acc+4*i, 4)
                a(f"v_mfma_f32_16x16x32_bf16 {vr(acc+4*i,4)}, {vr(FA[st]+4*j,4)}, {vr(FB[st]+4*(i-j),4)}, {c}")
                nm += 1
                if extra and nm % 2 == 0: extra.pop(a)
                for rep in range(1 if total > 30 else 2):
                    if queue and (queue[0][1] == task or total - nm < 30):
                        if issued_own + issued_next - 3*(i+1) < 14 or queue[0][1] != task:
                            r, t = queue.pop(0); a(r)
                            if t == task: issued_own += 1
                            else: issued_next += 1
        return [r for r, t in queue]
    allr = [r for i in range(8) for r in reads(0, i)]
    for r in allr[:15]: a(r)
    pend = allr[15:]
    for task in range(4): pend = run(task, pend, range(8), True)
    assert not pend
    a(f"""s_sub_u32 s{T0}, s{S_W}, 4
s_lshl_b32 s{T1}, s{T0}, 13
s_add_u32 s{T1}, s{T1}, {L_P32}
s_lshl_b32 s{T0}, s{T0}, 12
s_add_u32 s{T0}, s{T0}, {L_P16}
v_add_u32 v3, s{T1}, v{C_PW}
v_add_u32 v4, s{T0}, v{C_PW}
v_mov_b32 v5, s{S_NONCE}""")
    ev_signal(a, EV_C1, 5)
    a(f"s_bitcmp1_b32 s{S_J}, 0\ns_cbranch_scc1 L_conv_odd")
    for par in range(2):
        if par: a.label("L_conv_odd")
        p = run(4, [], TILES[par], True)
        assert not p
        ev_wait(a, EV_C1, 0xf0, 5)
        wr = Dma([f"ds_write_b128 v3, {vr(ACC[0]+4*i,4)} offset:{1024*i}" for i in range(8)])
        run(5, [], TILES[par], False, wr)
        wr.flush(a)
        if par == 0: stamp(a, cfg, 10)
        a("s_nop 7")
        for n, i in enumerate(TILES[par]): a(f"ds_write_b128 v4, {vr(ACC[1]+4*i,4)} offset:{1024*n}")
        if par == 0: a("s_branch L_conv_done")
    a.label("L_conv_done")

def y_epilogue(a, cfg):
    hi = [sum((TILES[p][k] & 1) << k for k in range(4)) for p in range(2)]
    a(f"""s_sub_u32 s{T3}, s{S_W}, 4
s_lshl_b32 s{T0}, s{T3}, 11
s_add_u32 s{T0}, s{T0}, {L_P32}
v_add_u32 v2, s{T0}, v{C_PR}
s_lshl_b32 s{T0}, s{T3}, 10
s_add_u32 s{T0}, s{T0}, {L_P16}
v_add_u32 v3, s{T0}, v{C_PR}""")
    B = lambda t, c: [[72, 80], [88, 96]][t][c]
    for t in range(2):
        for c in range(2):
            for n in range(2): a(f"ds_read_b128 {vr(B(t, c)+4*n,4)}, v2 offset:{8192*(2*c+n) + 1024*t}")
    b2 = 166
    for n in range(4): a(f"ds_read_b128 {vr(b2+4*n,4)}, v3 offset:{4096*n}")
    a(f"""s_lshl_b32 s{T1}, s{S_CH0}, 12
s_add_u32 s{T1}, s{T1}, {W_YT}
s_add_u32 s{T2}, s{T1}, 4096
s_mov_b32 s{T5}, {hi[0]}
s_bitcmp1_b32 s{S_J}, 0
s_cselect_b32 s{T5}, {hi[1]}, s{T5}
s_lshr_b32 s{T5}, s{T5}, s{T3}
s_and_b32 s{T5}, s{T5}, 1
s_lshl_b32 s{T5}, s{T5}, 9
s_lshl_b32 s{T4}, s{S_CH2}, 12
s_add_u32 s{T4}, s{T4}, s{T5}
s_add_u32 s{T4}, s{T4}, {W_YT}""")
    left = 12
    for t in range(2):
        for c in range(2):
            b = B(t, c); left -= 2
            a(f"s_waitcnt lgkmcnt({left})")
            for j in range(4): a(f"v_add_f32 v{b+j}, v{b+j}, v{b+4+j}")
            a(f"""v_cvt_pk_bf16_f32 v{b+4}, v{b}, v{b+1}
v_cvt_pk_bf16_f32 v{b+5}, v{b+2}, v{b+3}
buffer_store_dwordx2 {vr(b+4,2)}, v{C_UG}, s[{SWS}:{SWS+3}], s{(T1, T2)[c]} offen offset:{512*t} sc1""")
    b = b2
    a("s_waitcnt lgkmcnt(0)")
    for j in range(4): a(f"v_add_f32 v{b+j}, v{b+j}, v{b+4+j}\nv_add_f32 v{b+8+j}, v{b+8+j}, v{b+12+j}")
    for j in range(4): a(f"v_add_f32 v{b+j}, v{b+j}, v{b+8+j}")
    a(f"""v_cvt_pk_bf16_f32 v{b+4}, v{b}, v{b+1}
v_cvt_pk_bf16_f32 v{b+5}, v{b+2}, v{b+3}
buffer_store_dwordx2 {vr(b+4,2)}, v{C_UG}, s[{SWS}:{SWS+3}], s{T4} offen sc1""")

def tail_addrs(a):
    w_tr_addr(a, A_W, 6)
    a(f"""v_and_b32 v6, 3, v0
v_lshrrev_b32 v7, 4, v0
v_lshl_add_u32 v6, v7, 2, v6
v_lshrrev_b32 v7, 1, v6
v_lshlrev_b32 v7, 3, v7
v_bfe_u32 v{A_YR}, v0, 2, 2
v_add_u32 v7, v7, v{A_YR}
v_lshlrev_b32 v7, 7, v7
v_and_b32 v6, 1, v6
v_lshl_add_u32 v7, v6, 3, v7
s_lshl_b32 s{T0}, s{S_W}, 4
s_add_u32 s{T0}, s{T0}, {L_YT}
v_add_u32 v{A_YR}, s{T0}, v7
v_lshrrev_b32 v6, 2, v0
v_and_b32 v7, 1, v6
v_and_b32 v{A_YW}, 3, v0
v_lshl_add_u32 v7, v7, 2, v{A_YW}
v_mul_u32_u24 v7, 160, v7
v_lshrrev_b32 v6, 1, v6
v_lshl_add_u32 v7, v6, 4, v7
s_mul_i32 s{T0}, s{S_W}, 1280
s_add_u32 s{T0}, s{T0}, {L_YS}
v_add_u32 v{A_YW}, s{T0}, v7
v_add_u32 v{A_YB}, s{T0}, v1""")
    for d, add in ((A_YG0, 0), (A_YG1, 64)):
        a(f"""v_add_u32 v6, {add}, v0
v_mul_u32_u24 v7, 6554, v6
v_lshrrev_b32 v7, 16, v7
v_mul_u32_u24 v{d}, 10, v7
v_sub_u32 v6, v6, v{d}
v_mul_u32_u24 v7, 2560, v7
v_lshl_add_u32 v{d}, v6, 4, v7""")
    a(f"""s_mul_i32 s{T0}, s{S_W}, {OT_SZ}
s_add_u32 s{T0}, s{T0}, {L_OT}
v_and_b32 v6, 15, v0
v_mul_u32_u24 v6, 80, v6
v_bfe_u32 v7, v0, 4, 1
v_mul_u32_u24 v7, 40, v7
v_add3_u32 v7, v6, v7, s{T0}
v_lshrrev_b32 v{A_OW}, 5, v0
v_lshl_add_u32 v{A_OW}, v{A_OW}, 3, v7
v_lshrrev_b32 v7, 4, v0
v_lshl_add_u32 v6, v7, 4, v6
v_add_u32 v{A_OB}, s{T0}, v6
s_lshl_b32 s{T0}, s{S_HG}, 1
s_add_u32 s{T0}, s{T0}, s{S_KH}
s_mul_i32 s{T0}, s{T0}, 1280
s_lshl_b32 s{T2}, s{S_RB}, 2
s_add_u32 s{T2}, s{T2}, s{S_RT}
s_mul_i32 s{T2}, s{T2}, 20480
s_add_u32 s{T0}, s{T0}, s{T2}
s_add_u32 s{T0}, s{T0}, {W_O}
v_add_u32 v{A_OG}, s{T0}, v1
s_mul_i32 s{T0}, s{S_W}, 3072
s_add_u32 s{T0}, s{T0}, {L_XCH}
v_add_u32 v{A_XW}, s{T0}, v1
s_xor_b32 s{T0}, s{S_W}, 4
s_mul_i32 s{T0}, s{T0}, 3072
s_add_u32 s{T0}, s{T0}, {L_XCH}
v_add_u32 v{A_XR}, s{T0}, v1
v_lshrrev_b32 v6, 3, v0
v_lshlrev_b32 v6, 12, v6
v_and_b32 v7, 7, v0
v_lshl_add_u32 v{A_YD}, v7, 4, v6
s_lshl_b32 s{T0}, s{S_RB}, 8
s_add_u32 s{T0}, s{T0}, {W_FO}
v_lshl_add_u32 v{A_FO}, v0, 2, s{T0}
s_mul_i32 s{T0}, s{S_W}, {OT_SZ}
s_add_u32 s{T0}, s{T0}, {L_OT}
v_and_b32 v6, 15, v0
s_mul_i32 s{T3}, s{S_KH}, 32
s_sub_u32 s{T3}, 96, s{T3}
v_mul_u32_u24 v6, s{T3}, v6
v_lshrrev_b32 v7, 4, v0
v_lshl_add_u32 v6, v7, 3, v6
v_add_u32 v{A_PW}, s{T0}, v6
s_cmp_eq_u32 s{S_KH}, 0
s_cbranch_scc0 L_ta_hi
v_mul_u32_u24 v6, 10923, v0
v_lshrrev_b32 v6, 16, v6
v_mul_u32_u24 v7, 6, v6
v_sub_u32 v7, v0, v7
v_mul_u32_u24 v6, 2560, v6
v_lshl_add_u32 v{A_PG0}, v7, 4, v6
v_add_u32 v7, 64, v0
v_mul_u32_u24 v6, 10923, v7
v_lshrrev_b32 v6, 16, v6
v_mul_u32_u24 v{A_PG1}, 6, v6
v_sub_u32 v7, v7, v{A_PG1}
v_mul_u32_u24 v6, 2560, v6
v_lshl_add_u32 v{A_PG1}, v7, 4, v6
s_branch L_ta_done""")
    a.label("L_ta_hi")
    a(f"""v_lshrrev_b32 v6, 2, v0
v_mul_u32_u24 v6, 2560, v6
v_and_b32 v7, 3, v0
v_lshl_add_u32 v6, v7, 4, v6
v_add_u32 v{A_PG0}, 96, v6
v_mov_b32 v{A_PG1}, 0""")
    a.label("L_ta_done")

def attn_half(a, cur, par, oK16, oV0, oV1, oK4, cz, extra=None):
    R = AR; S = R.S[cur]; N = R.S[1-cur]
    e = lambda k: a(f"v_exp_f32 v{S+k}, v{S+k} ; PHYS")
    x = extra if extra else (lambda: None)
    def vread(dst, off):
        a(f"s_mov_b64 exec, s[{VM}:{VM+1}]\nds_read_b128 {vr(dst,4)}, v{R.aV} offset:{off}\ns_mov_b64 exec, -1")
    a("s_waitcnt lgkmcnt(1)")
    a(f"v_mfma_f32_32x32x16_bf16 {vr(N,16)}, {vr(R.K16,4)}, {vr(R.QA,4)}, {vr(R.CZ,16) if cz else 0}")
    for k in range(0, 4): e(k)
    a(f"v_smfmac_f32_32x32x32_bf16 {vr(R.OB,16)}, {vr(R.V1,4)}, {vr(N+24,8)}, v{R.IDX}")
    vread(R.V1, oV1)
    for k in range(4, 8): e(k)
    a(f"v_mfma_f32_32x32x16_bf16 {vr(N+16,16)}, {vr(R.K16,4)}, {vr(R.QB,4)}, {vr(R.CZ+16,16) if cz else 0}")
    a(f"ds_read_b128 {vr(R.K16,4)}, v{R.aK16} offset:{oK16}")
    for k in range(8, 12): e(k)
    a("s_waitcnt lgkmcnt(2)")
    a(f"v_smfmac_f32_32x32x32_bf16 {vr(R.OA,16)}, {vr(R.V0,4)}, {vr(S,8)}, v{R.IDX}")
    x()
    for k in range(12, 16): e(k)
    a(f"v_mfma_f32_32x32x4bf16_1k {vr(N,32)}, {vr(R.K4,2)}, {vr(R.Q4,2)}, {vr(N,32)} cbsz:1 abid:{1-par} ; PHYS")
    if oK4 is not None: a(f"ds_read_b64 {vr(R.K4,2)}, v{R.aK4} offset:{oK4}")
    for k in range(16, 20): e(k)
    x()
    for k in range(20, 24): e(k)
    a(f"s_waitcnt lgkmcnt({1 + (oK4 is not None)})")
    a(f"v_smfmac_f32_32x32x32_bf16 {vr(R.OA,16)}, {vr(R.V1,4)}, {vr(S+8,8)}, v{R.IDX}")
    for k in range(24, 28): e(k)
    a(f"v_smfmac_f32_32x32x32_bf16 {vr(R.OB,16)}, {vr(R.V0,4)}, {vr(S+16,8)}, v{R.IDX}")
    vread(R.V0, oV0)
    x()
    for k in range(28, 32): e(k)

def attn_first(a, cz):
    R = AR
    a(f"""ds_read_b128 {vr(R.K16,4)}, v{R.aK16}
ds_read_b64 {vr(R.K4,2)}, v{R.aK4} offset:2048
s_waitcnt lgkmcnt(0)
v_mfma_f32_32x32x16_bf16 {vr(R.S[0],16)}, {vr(R.K16,4)}, {vr(R.QA,4)}, {vr(R.CZ,16) if cz else 0}
v_mfma_f32_32x32x16_bf16 {vr(R.S[0]+16,16)}, {vr(R.K16,4)}, {vr(R.QB,4)}, {vr(R.CZ+16,16) if cz else 0}
ds_read_b128 {vr(R.K16,4)}, v{R.aK16} offset:1024
s_mov_b64 exec, s[{VM}:{VM+1}]
ds_read_b128 {vr(R.V0,4)}, v{R.aV} offset:2560
s_mov_b64 exec, -1
s_nop 7
v_mfma_f32_32x32x4bf16_1k {vr(R.S[0],32)}, {vr(R.K4,2)}, {vr(R.Q4,2)}, {vr(R.S[0],32)} cbsz:1 abid:0
s_nop 15
s_nop 2""")

def attn_body(a, cz, extra=None, prio=True, mid=None):
    R = AR; ST = 2*BLK
    for b in range(4):
        if b == 3 and mid: mid()
        base = b*ST; nxt = base + ST
        if prio is True: a(f"s_setprio {3-b}")
        elif prio and prio[b] is not None: a(f"s_setprio {prio[b]}")
        attn_half(a, 0, 0, nxt, base + 2560 + 1280, base + 2560 + 640, nxt + 2048, cz, extra)
        attn_half(a, 1, 1, nxt + 1024, nxt + 2560, base + 2560 + 1920, None, cz, extra)
    a(f"""v_add_u32 v{R.aK16}, {4*ST}, v{R.aK16}
v_add_u32 v{R.aK4}, {4*ST}, v{R.aK4}
v_add_u32 v{R.aV}, {4*ST}, v{R.aV}""")

def attention(a, cfg):
    R = AR
    dma = kv_dma_items(a, 40, 5)
    stamp(a, cfg, 12)
    mid0 = lambda: a(f"""s_lshl_b32 s{T0}, s{S_XCD}, 10
s_lshl_b32 s{T1}, s{S_J}, 5
s_add_u32 s{T0}, s{T0}, s{T1}
s_lshl_b32 s{T1}, s{S_W}, 2
s_add_u32 s{T0}, s{T0}, s{T1}
s_add_u32 s{T0}, s{T0}, {W_FY}
v_mov_b32 v2, s{S_NONCE}
v_mov_b32 v3, 0
s_waitcnt vmcnt(0)
s_mov_b64 exec, 1
buffer_store_dword v2, v3, s[{SWS}:{SWS+3}], s{T0} offen sc1
s_mov_b64 exec, -1
s_barrier""")
    attn_body(a, False, lambda: dma.pop(a), mid=mid0, prio=PRI[PSCH][0])
    stamp(a, cfg, 4)
    dma = kv_dma_items(a, 80, 10)
    cb = [0]
    def slotb():
        cb[0] += 1
        if BDM == 1 or cb[0] % 3 != 0: dma.pop(a)
    if BDM == 3: dma.flush(a)
    attn_body(a, False, slotb, mid=lambda: a("s_waitcnt vmcnt(0)\ns_barrier"), prio=PRI[PSCH][1])
    stamp(a, cfg, 16)
    def mid2():
        a(f"""s_cmp_lg_u32 s{S_W}, 7
s_cbranch_scc1 L_attn_nosample
s_lshl_b32 s{T0}, s{S_XCD}, 10
s_add_u32 s{T0}, s{T0}, {W_FY}
v_add_u32 v2, s{T0}, v1
buffer_load_dwordx4 v[4:7], v2, s[{SWS}:{SWS+3}], 0 offen sc1""")
        a.label("L_attn_nosample")
    attn_body(a, False, mid=mid2, prio=PRI[PSCH][2])
    a(f"""s_cmp_lg_u32 s{S_W}, 7
s_cbranch_scc1 L_attn_nopoll
s_waitcnt vmcnt(0)""")
    poll(a, "y", 2, 4, 4, pre=True)
    a.label("L_attn_nopoll")
    stamp(a, cfg, 23)
    a("s_barrier")
    stamp(a, cfg, 30)
    a.label("L_tail_dma")
    tail_dma_body(a, cfg)

def tail_dma_items(a, tag):
    srd(a, SA, P_WO, 640*1280)
    a(f"""s_mul_i32 s{S_DO}, s{S_HG}, 160
s_lshl_b32 s{S_DM}, s{S_W}, 10""")
    n = [0]
    def item():
        n[0] += 1
        return f"""s_cmp_ge_u32 s{S_W}, 5
s_cbranch_scc1 L_tds{tag}_{n[0]}
s_mov_b32 m0, s{S_DM}
s_add_u32 s{S_DM}, s{S_DM}, 5120
buffer_load_dwordx4 v{WT}, s[{SA}:{SA+3}], s{S_DO} offen {WOF} lds
s_add_u32 s{S_DO}, s{S_DO}, 40960
L_tds{tag}_{n[0]}:"""
    return Dma([item() for _ in range(20)])

def y_dma(a):
    a(f"""s_cmp_lt_u32 s{S_W}, 5
s_cbranch_scc1 L_yd_done
s_sub_u32 s{T2}, s{S_W}, 5
s_mul_i32 s{T3}, s{S_XCD}, {80*4096}
s_lshl_b32 s{T4}, s{S_J}, 7
s_add_u32 s{T3}, s{T3}, s{T4}
s_lshl_b32 s{T4}, s{T2}, 15
s_add_u32 s{T3}, s{T3}, s{T4}
s_lshl_b32 s{T4}, s{T2}, 10
s_add_u32 m0, s{T4}, {L_YT}
s_add_u32 s{T3}, s{T3}, {W_YT}""")
    for i in range(4):
        if i == 3: a(f"s_cmp_lg_u32 s{S_W}, 5\ns_cbranch_scc1 L_yd_done")
        a(f"buffer_load_dwordx4 v{A_YD}, s[{SWS}:{SWS+3}], s{T3} offen sc1 lds")
        if i < 3: a(f"s_add_u32 m0, m0, 3072\ns_add_u32 s{T3}, s{T3}, {3*32768}")
    a.label("L_yd_done")

def tail_dma_body(a, cfg):
    R = AR
    if YEARLY: y_dma(a)
    dma = tail_dma_items(a, "m")
    cnt = [0]
    def slot():
        cnt[0] += 1
        if TDM == 0: return
        if TDM == 1 or cnt[0] % 3 != 0: dma.pop(a)
    attn_body(a, False, slot, prio=PRI[PSCH][3])
    dma.flush(a)
    a(f"v_smfmac_f32_32x32x32_bf16 {vr(R.OB,16)}, {vr(R.V1,4)}, {vr(R.S[1]+24,8)}, v{R.IDX}\ns_setprio 0")

def o_finish(a, cfg):
    R = AR
    X = 8; Y = 24
    a.label("L_ofin")
    stamp(a, cfg, 13)
    a(f"""v_mov_b32 v4, {L_DEC}
v_mov_b32 v5, 0
s_mov_b32 s{T0}, {hx(f2u(2.0**-40))}
s_mov_b32 s{T1}, {hx(f2u(2.0**40))}
s_waitcnt vmcnt(0) lgkmcnt(0)
s_nop 4
s_barrier""")
    stamp(a, cfg, 29)
    a(f"ds_write_b32 v4, v5\ns_cmp_eq_u32 s{S_KH}, 0\ns_cbranch_scc0 L_ox_hi")
    for kh in range(2):
        if kh: a.label("L_ox_hi")
        send, keep = (R.OB, R.OA) if kh == 0 else (R.OA, R.OB)
        for q in range(3): a(f"ds_write_b128 v{A_XW}, {vr(send+4*q,4)} offset:{1024*q}")
        a("s_waitcnt lgkmcnt(0)\ns_barrier")
        for q in (2, 0, 1): a(f"ds_read_b128 {vr(X+4*q,4)}, v{A_XR} offset:{1024*q}")
        a(f"s_waitcnt lgkmcnt(2)\nv_add_f32 v{Y}, v{X+8}, v{keep+8}\nv_add_f32 v{Y+1}, v{X+8}, v{keep+8}")
        for j in range(4): a(f"v_add_f32 v{X+8+j}, v{X+8+j}, v{keep+8+j}")
        a(f"v_permlane32_swap_b32 v{Y}, v{Y+1}\ns_waitcnt lgkmcnt(0)")
        for j in range(8): a(f"v_add_f32 v{X+j}, v{X+j}, v{keep+j}")
        if kh == 0: a("s_branch L_ox_done")
    a.label("L_ox_done")
    a(f"""v_rcp_f32 v{Y}, v{Y+1}
v_cmp_le_f32 vcc, s{T0}, v{Y+1}
v_cmp_ge_f32 s[{T2}:{T3}], s{T1}, v{Y+1}""")
    for k in range(12): a(f"v_mul_f32 v{X+k}, v{X+k}, v{Y}")
    for k in range(6): a(f"v_cvt_pk_bf16_f32 v{Y+2+k}, v{X+2*k}, v{X+2*k+1}")
    a(f"""ds_write_b64 v{A_OW}, {vr(Y+2,2)}
ds_write_b64 v{A_OW}, {vr(Y+4,2)} offset:16
s_mov_b32 exec_hi, 0
ds_write_b64 v{A_OW}, {vr(Y+6,2)} offset:32
s_mov_b32 exec_hi, -1
ds_read_b128 {vr(X,4)}, v{A_OB}
ds_read_b128 {vr(X+4,4)}, v{A_OB} offset:64
s_and_b64 vcc, vcc, s[{T2}:{T3}]
s_cmp_eq_u64 vcc, -1
s_cbranch_scc1 L_ox_ok
s_cmp_lg_u32 s{S_FB}, 0
s_cbranch_scc1 L_ox_ok
v_mov_b32 v5, 1
ds_write_b32 v4, v5
s_waitcnt lgkmcnt(0)""")
    a.label("L_ox_ok")
    a(f"""s_waitcnt lgkmcnt(1)
buffer_store_dwordx4 {vr(X,4)}, v{A_OG}, s[{SWS}:{SWS+3}], 0 offen sc1
s_mov_b64 exec, 0xffff
s_waitcnt lgkmcnt(0)
buffer_store_dwordx4 {vr(X+4,4)}, v{A_OG}, s[{SWS}:{SWS+3}], 0 offen offset:1024 sc1
s_mov_b64 exec, -1
s_barrier""")
    stamp(a, cfg, 14)
    a(f"ds_read_b32 v5, v4")

def fallback(a, cfg):
    R = AR
    a.label("L_fallback")
    a(f"s_mov_b32 s{S_FB}, 1\ns_waitcnt vmcnt(0) lgkmcnt(0)\ns_barrier")
    kv_dma_items(a, 0, 20).flush(a)
    a(f"""v_mov_b32 v{R.aK16}, v1
v_lshlrev_b32 v{R.aK4}, 3, v0
v_mov_b32 v2, 0xff7fffff
v_mov_b32 v3, 0xff7fffff
s_mov_b32 s{S_IT}, 0
s_waitcnt vmcnt(0)
s_barrier""")
    a.label("L_fb_loop")
    for par in range(2):
        a(f"""ds_read_b128 {vr(R.K16,4)}, v{R.aK16} offset:{1024*par}
ds_read_b64 {vr(R.K4,2)}, v{R.aK4} offset:2048
s_waitcnt lgkmcnt(0)
v_mfma_f32_32x32x16_bf16 {vr(R.S[0],16)}, {vr(R.K16,4)}, {vr(R.QA,4)}, 0
v_mfma_f32_32x32x16_bf16 {vr(R.S[0]+16,16)}, {vr(R.K16,4)}, {vr(R.QB,4)}, 0
s_nop 9
v_mfma_f32_32x32x4bf16_1k {vr(R.S[0],32)}, {vr(R.K4,2)}, {vr(R.Q4,2)}, {vr(R.S[0],32)} cbsz:1 abid:{par}
s_nop 15
s_nop 3""")
        for k in range(0, 16, 2):
            a(f"v_max3_f32 v2, v2, v{R.S[0]+k}, v{R.S[0]+k+1}\nv_max3_f32 v3, v3, v{R.S[0]+16+k}, v{R.S[0]+17+k}")
    a(f"""v_add_u32 v{R.aK16}, {BLK}, v{R.aK16}
v_add_u32 v{R.aK4}, {BLK}, v{R.aK4}
s_add_u32 s{S_IT}, s{S_IT}, 1
s_cmp_lt_u32 s{S_IT}, 32
s_cbranch_scc1 L_fb_loop
v_mov_b32 v4, v2
v_mov_b32 v5, v3
s_nop 1
v_permlane32_swap_b32 v2, v4
v_permlane32_swap_b32 v3, v5
v_max_f32 v2, v2, v4
v_max_f32 v3, v3, v5""")
    for i in range(16): a(f"v_sub_f32 v{R.CZ+i}, 0, v2\nv_sub_f32 v{R.CZ+16+i}, 0, v3")
    attn_init(a)
    attn_clear(a)
    attn_first(a, True)
    a(f"s_mov_b32 s{S_IT}, 0")
    a.label("L_fb_attn")
    attn_body(a, True, prio=False)
    a(f"""s_add_u32 s{S_IT}, s{S_IT}, 1
s_cmp_lt_u32 s{S_IT}, 4
s_cbranch_scc1 L_fb_attn
v_smfmac_f32_32x32x32_bf16 {vr(R.OB,16)}, {vr(R.V1,4)}, {vr(R.S[1]+24,8)}, v{R.IDX}
s_waitcnt lgkmcnt(0)
s_barrier""")
    y_dma(a.sub("f"))
    tail_dma_items(a, "f").flush(a)
    a("s_branch L_ofin")

def out_proj(a, cfg):
    WF = 40; OF = 186; ACC = 8
    NPRE = 7
    def wreads(i, b, cts=range(5)):
        for ct in cts:
            for hf in range(2):
                a(f"ds_read_b64_tr_b16 {vr(b+4*ct+2*hf,2)}, v{A_W} offset:{5120*i + 1280*hf + 32*ct}")
    a(f"""s_lshl_b32 s{T0}, s{S_HG}, 2
s_lshl_b32 s{T1}, s{S_RB}, 8
s_add_u32 s{T0}, s{T0}, s{T1}
s_add_u32 s{T0}, s{T0}, {W_FO}
ds_read_b64_tr_b16 v[8:9], v{A_YR}
ds_read_b64_tr_b16 v[10:11], v{A_YR} offset:512
ds_read_b64_tr_b16 v[12:13], v{A_YR} offset:8192
ds_read_b64_tr_b16 v[14:15], v{A_YR} offset:8704
v_mov_b32 v2, s{S_NONCE}
v_mov_b32 v3, 0
s_waitcnt lgkmcnt(4)
v_readfirstlane_b32 s{T2}, v5
s_waitcnt lgkmcnt(2)
ds_write_b128 v{A_YW}, v[8:11]
s_mov_b64 exec, 0xffff
s_waitcnt lgkmcnt(1)
ds_write_b128 v{A_YW}, v[12:15] offset:128
s_mov_b64 exec, -1
s_cmp_lg_u32 s{T2}, 0
s_cbranch_scc1 L_fallback
ds_read_b128 v[16:19], v{A_YB}
ds_read_b128 v[20:23], v{A_YB} offset:1024""")
    wreads(0, WF)
    a(f"""s_waitcnt vmcnt(0)
s_barrier
s_cmp_lg_u32 s{S_W}, 0
s_cbranch_scc1 L_op_noflag
s_mov_b64 exec, 1
buffer_store_dword v2, v3, s[{SWS}:{SWS+3}], s{T0} offen sc1
s_mov_b64 exec, -1""")
    a.label("L_op_noflag")
    stamp(a, cfg, 15)
    a(f"""s_lshl_b32 s{T0}, s{S_J}, 6
s_lshl_b32 s{T1}, s{S_W}, 3
s_add_u32 s{T0}, s{T0}, s{T1}
s_mul_i32 s{T0}, s{T0}, 2560
s_mul_i32 s{T1}, s{S_XCD}, 160
s_add_u32 s{T0}, s{T0}, s{T1}
s_add_u32 s{T0}, s{T0}, 1280
s_waitcnt lgkmcnt(10)
buffer_store_dwordx4 v[16:19], v{A_YG0}, s[{SOUT}:{SOUT+3}], s{T0} offen {YST}
s_mov_b64 exec, 0xffff
buffer_store_dwordx4 v[20:23], v{A_YG1}, s[{SOUT}:{SOUT+3}], s{T0} offen {YST}
s_mov_b64 exec, -1""")
    for i in range(1, NPRE): wreads(i, WF + 20*i)
    a(f"""s_and_b32 s{T2}, s{S_W}, 3
s_lshl_b32 s{T0}, s{S_RB}, 2
s_add_u32 s{T0}, s{T0}, s{T2}
s_mul_i32 s{T3}, s{T0}, {16*2560}
s_mul_i32 s{T0}, s{T0}, 20480
s_mul_i32 s{T1}, s{S_KH}, 10240
s_add_u32 s{T0}, s{T0}, s{T1}
s_add_u32 s{T0}, s{T0}, {W_O}
s_add_u32 s{T1}, s{T0}, 4096
s_add_u32 s{T2}, s{T0}, 8192
s_mul_i32 s{T4}, s{S_HG}, 160
s_add_u32 s{T3}, s{T3}, s{T4}
s_mul_i32 s{T4}, s{S_W}, {OT_SZ}
s_add_u32 s{T4}, s{T4}, {L_OT}
v_add_u32 v7, s{T4}, v1""")
    stamp(a, cfg, 17)
    a(f"s_cmp_lg_u32 s{S_W}, 0\ns_cbranch_scc1 L_op_nopoll")
    poll(a, "o", A_FO, 1, 4, lanes=8)
    a.label("L_op_nopoll")
    a("s_barrier")
    stamp(a, cfg, 18)
    if OPRIO:
        a(f"s_cmp_eq_u32 s{S_KH}, 0\ns_cbranch_scc1 L_op_p0\ns_setprio 2\ns_branch L_op_p1")
        a.label("L_op_p0"); a("s_setprio 3"); a.label("L_op_p1")
    for i in range(10):
        if OPRIO and i == 5:
            a(f"s_cmp_eq_u32 s{S_KH}, 0\ns_cbranch_scc1 L_op_p2\ns_setprio 0\ns_branch L_op_p3")
            a.label("L_op_p2"); a("s_setprio 1"); a.label("L_op_p3")
        a(f"buffer_load_dwordx4 {vr(OF+4*i,4)}, v1, s[{SWS}:{SWS+3}], s{(T0, T1, T2)[i >> 2]} offen offset:{1024*(i & 3)} sc1")
    if OPRIO: a("s_setprio 0")
    a("s_waitcnt lgkmcnt(0)")
    for i in range(10):
        b = WF + 20*(i if i < NPRE else i - NPRE)
        a(f"s_waitcnt vmcnt({9-i})" + (f" lgkmcnt({min(15, 10*(9-i))})" if i >= NPRE else ""))
        for ct in range(5):
            c = "0" if i == 0 else vr(ACC+4*ct, 4)
            a(f"v_mfma_f32_16x16x32_bf16 {vr(ACC+4*ct,4)}, {vr(b+4*ct,4)}, {vr(OF+4*i,4)}, {c}")
        if i < 10 - NPRE: wreads(NPRE + i, b)
    stamp(a, cfg, 19)
    a(f"s_cmp_eq_u32 s{S_KH}, 0\ns_cbranch_scc0 L_px_hi")
    X = 40
    for kh in range(2):
        if kh: a.label("L_px_hi")
        send = [3, 4] if kh == 0 else [0, 1, 2]
        keep = [0, 1, 2] if kh == 0 else [3, 4]
        a("s_nop 5" if kh == 0 else "s_nop 5")
        for n, ct in enumerate(send): a(f"ds_write_b128 v{A_XW}, {vr(ACC+4*ct,4)} offset:{1024*n}")
        a("s_waitcnt lgkmcnt(0)\ns_barrier")
        for n, ct in enumerate(keep): a(f"ds_read_b128 {vr(X+4*n,4)}, v{A_XR} offset:{1024*n}")
        for n, ct in enumerate(keep):
            a(f"s_waitcnt lgkmcnt({len(keep)-1})")
            for j in range(4): a(f"v_add_f32 v{X+4*n+j}, v{X+4*n+j}, v{ACC+4*ct+j}")
            a(f"v_cvt_pk_bf16_f32 v{X+16+2*n}, v{X+4*n}, v{X+4*n+1}\nv_cvt_pk_bf16_f32 v{X+17+2*n}, v{X+4*n+2}, v{X+4*n+3}")
            a(f"ds_write_b64 v{A_PW}, {vr(X+16+2*n,2)} offset:{32*n}")
        a(f"ds_read_b128 {vr(X+24,4)}, v7")
        if kh == 0:
            a(f"""ds_read_b128 {vr(X+28,4)}, v7 offset:1024
s_waitcnt lgkmcnt(1)
buffer_store_dwordx4 {vr(X+24,4)}, v{A_PG0}, s[{SOUT}:{SOUT+3}], s{T3} offen {OST}
s_mov_b32 exec_hi, 0
s_waitcnt lgkmcnt(0)
buffer_store_dwordx4 {vr(X+28,4)}, v{A_PG1}, s[{SOUT}:{SOUT+3}], s{T3} offen {OST}
s_mov_b32 exec_hi, -1
s_branch L_px_done""")
        else:
            a(f"s_waitcnt lgkmcnt(0)\nbuffer_store_dwordx4 {vr(X+24,4)}, v{A_PG0}, s[{SOUT}:{SOUT+3}], s{T3} offen {OST}")
    a.label("L_px_done")
    if cfg.stamps:
        a("s_waitcnt vmcnt(0)")
        stamp(a, cfg, 20)
        stamp_flush(a, cfg)
        stamp_debug(a, cfg)

def build(cfg):
    a = Asm()
    prologue(a, cfg)
    a(f"s_cmp_ge_u32 s{S_W}, 4\ns_cbranch_scc1 L_kside")
    q_side(a, cfg)
    a("s_branch L_join")
    a("; CUT k_early")
    a.label("L_kside")
    k_side(a, cfg)
    join(a, cfg)
    attention(a, cfg)
    o_finish(a, cfg)
    out_proj(a, cfg)
    a.label("L_end")
    a("s_endpgm")
    a("; CUT kaddr")
    k_addrs(a)
    a("; CUT fb")
    a.label("L_code_end")
    fallback(a, cfg)
    linear = list(a.lines)
    if LAYOUT:
        parts = {}; cur = "head"; parts[cur] = []
        for l in a.lines:
            if l.startswith("; CUT "): cur = l[6:]; parts[cur] = []
            else: parts[cur].append(l)
        br = lambda n: [f"s_branch L_cut_{n}"]; lb = lambda n: [f"L_cut_{n}:"]
        a.lines = (parts["head"] + br("q_main") + parts["k_early"] + br("k_gen") + parts["kaddr"] + parts["u_early"] + br("u_main")
                   + lb("k_gen") + parts["k_gen"] + lb("q_main") + parts["q_main"] + lb("u_main") + parts["u_main"] + parts["fb"])
    probs = check([l for l in linear if not l.startswith('; CUT')])
    for p in probs: print("HAZARD", p, file=sys.stderr)
    head = open("cdna_kernels/%s.s.ref" % NAME).read().split("; Override")[0]
    txt = head + f"""; @launch grid=(256,1,1) block=(512,1,1) lds=163840
.amdgcn_target "amdgcn-amd-amdhsa--gfx950"
.text
.globl {NAME}_kernel
.p2align 8
.type {NAME}_kernel,@function
{NAME}_kernel:
""" + a.text() + f""".section .rodata,"a"
.p2align 6
.amdhsa_kernel {NAME}_kernel
  .amdhsa_next_free_vgpr 256
  .amdhsa_next_free_sgpr 96
  .amdhsa_accum_offset 256
  .amdhsa_group_segment_fixed_size 0
  .amdhsa_kernarg_size 120
  .amdhsa_user_sgpr_count 2
  .amdhsa_user_sgpr_kernarg_segment_ptr 1
  .amdhsa_system_sgpr_workgroup_id_x 1
  .amdhsa_float_denorm_mode_32 3
.end_amdhsa_kernel
"""
    return txt, len(probs)

if __name__ == "__main__":
    cfg = Cfg()
    out = sys.argv[1]
    for o in sys.argv[2:]:
        if o == "stamps": cfg.stamps = True
        if o == "dbg": cfg.dbg = True
        if o.startswith("few="): cfg.stamps = True; cfg.few = [int(x) for x in o[4:].split(",")]
        if "=" in o and o.split("=")[0].isupper(): globals()[o.split("=")[0]] = int(o.split("=")[1]) if o.split("=")[1].isdigit() else o.split("=")[1].replace("_", " ")
        if o.startswith("dbgstamp="): cfg.stamps = True; cfg.dbgstamp = [int(x) for x in o[9:].split(",")]
    txt, n = build(cfg)
    open(out, "w").write(txt)
    print("written", out, len(txt), "bytes; hazards:", n)
```

```python
import sys, struct, math
from asmlib import Asm, vr, sr, check
NAME = "concat_heads__grouped_kv_mqa__ssm_conv_s4d__prompt"
def f2u(x): return struct.unpack("<I", struct.pack("<f", x))[0]
def hx(x): return "0x%08x" % (x & 0xffffffff)

L_WQ = 0; L_X = 0; L_WK = 102400; L_SCR = 128000; SCR_SZ = 4352; L_UST = 141056; NWQA = 4
L_CP = 102400; CP_CH = 16640; CP_C = 4160
L_TBL = 154112; TBL_SZ = 1552; L_QST = 152320
L_UT = 81920; UT_CH = 4608; L_PART = 95744; L_QX = 0
L_YT = 102400; L_XCH = 122880; L_OT = 147456; OT_SZ = 1536; L_DEC = 159744; L_YS = 112640
BLK = 5120
W_NONCE = 0; W_FU = 0x1000; W_FKV = 0x2000; W_FY = 0x4000; W_FO = 0x6000
W_KV = 0x10000; W_UT = 0x40000; W_YT = 0x2C0000; W_O = 0x540000; W_DBG = 0x800000; W_STAMP = 0xF00000; WS_SZ = 0x1000000
P_X, P_WQ, P_WK, P_WV, P_WO, P_U, P_LAR, P_AIM, P_CR, P_CI, P_LDT, P_DSK, P_OUT, P_DBG, P_WS = range(4, 34, 2)
SA, SB, SWS, SOUT = 36, 40, 44, 48
S_W, S_XCD, S_J, S_RB, S_HG, S_NONCE, S_CH0, S_CH2 = 52, 53, 54, 55, 56, 57, 58, 59
VM = 60
T0, T1, T2, T3, T4, T5, T6, T7 = range(62, 70)
S_RT, S_KH, S_FB, S_IT = 70, 71, 72, 73
EX = 74
S_LDT = 76; S_D0 = 77
S_C1, S_C2, S_C3, S_C4 = 80, 81, 82, 83
ST0 = 84
SPIN_MAX = 1000000
SLEEP = 1
USLEEP = 4
PF = 0; W4P = 2; OPRIO = 1; G0DMA = 6; UDMA = 0; EXP128 = 1; PSCH = 0; YEARLY = 1; WOF = ''; TDM = 1; BDM = 1; XNT = ''; UNT = ''; PNT = ''; TAQ = 0; PPOLL = 0; WPRE = 1; PF3 = 0; K0PRIO = 3; KAPRIO = 3; KV1 = 0; KGAP = 5; KGAP0 = 24; PF2 = 0; KVPRIO = 0; CPF = 1024; CPF0 = 1; LAYOUT = 1
UEV = 1; UMASK = 0x0f
YST = 'nt'; OST = 'nt'
QPRIO = 2; KPRIO = 1; CPRIO = 1; Q2PRIO = 3

DESC = """;
"""

class Cfg:
    dbg = False; stamps = False; few = None; dbgstamp = None; stop_after = None; nonce_update = True

N_ = None
PRI = [[[N_, N_, N_, 0], [3, 2, 1, 0], [3, 2, 1, 0], [3, 2, 1, 0]],
       [[N_, N_, N_, 3], [2, 1, 0, 3], [3, 2, 1, 0], [3, 2, 1, 0]],
       [[N_, N_, N_, 0], [N_]*4, [N_]*4, [N_]*4],
       [[N_, N_, N_, 3], [2, 1, 0, 3], [2, 2, 1, 0], [3, 2, 1, 0]]]
def srd(a, base, ptr, size):
    a(f"s_mov_b32 s{base}, s{ptr}\ns_mov_b32 s{base+1}, s{ptr+1}\ns_mov_b32 s{base+2}, {size}\ns_mov_b32 s{base+3}, 0x00020000")

_stamp_n = [0]
def stamp(a, cfg, idx, cyc=False):
    if not cfg.stamps or cyc: return
    if cfg.few and idx not in cfg.few: return
    a(f"""s_memrealtime s[{ST0}:{ST0+1}]
s_memtime s[86:87]
s_waitcnt lgkmcnt(0)
v_writelane_b32 v255, s{ST0}, {idx}
v_writelane_b32 v255, s86, {idx+32}""")
def stamp_flush(a, cfg):
    if not cfg.stamps: return
    a(f"""s_lshl_b32 s86, s2, 3
s_add_u32 s86, s86, s{S_W}
s_lshl_b32 s86, s86, 8
s_add_u32 s86, s86, {W_STAMP}
v_lshlrev_b32 v254, 2, v0
buffer_store_dword v255, v254, s[{SWS}:{SWS+3}], s86 offen""")

SEL = [0, 24, 1, 2, 26, 3, 6, 8, 10, 11, 12, 13, 14, 18, 19, 20]
def stamp_debug(a, cfg):
    if not cfg.dbgstamp: return
    a(f"""s_cmp_lg_u32 s2, {cfg.dbgstamp[0]}
s_cbranch_scc1 L_dbgst_done
s_cmp_lg_u32 s{S_W}, {cfg.dbgstamp[1]}
s_cbranch_scc1 L_dbgst_done
v_readlane_b32 s86, v255, 21
v_mov_b32 v254, 0""")
    for k, i in enumerate(SEL):
        a(f"v_readlane_b32 s87, v255, {i}\ns_nop 3\ns_sub_u32 s87, s87, s86\nv_writelane_b32 v254, s87, {k}")
    srd(a, SA, P_DBG, 256)
    a(f"""v_lshlrev_b32 v253, 2, v0
s_mov_b64 exec, 0xffff
buffer_store_dword v254, v253, s[{SA}:{SA+3}], 0 offen
s_mov_b64 exec, -1""")
    a.label("L_dbgst_done")

def dump_lds(a, cfg, tag, lo, n8):
    if not cfg.dbg: return
    a(f"""s_cmp_ge_u32 s2, 4
s_cbranch_scc1 L_dump_{tag}
s_lshl_b32 s86, s{S_W}, 10
s_mul_i32 s87, s2, {n8*8192}
s_add_u32 s87, s87, {W_DBG}
s_add_u32 s87, s87, s86
s_add_u32 s86, s86, {lo}
v_add_u32 v250, s86, v1
s_mov_b32 s88, 0""")
    a.label(f"L_dumpl_{tag}")
    a(f"""ds_read_b128 v[252:255], v250
s_waitcnt lgkmcnt(0)
buffer_store_dwordx4 v[252:255], v1, s[{SWS}:{SWS+3}], s87 offen
s_waitcnt vmcnt(0)
v_add_u32 v250, 8192, v250
s_add_u32 s87, s87, 8192
s_add_u32 s88, s88, 1
s_cmp_lt_u32 s88, {n8}
s_cbranch_scc1 L_dumpl_{tag}""")
    a.label(f"L_dump_{tag}")

def poll(a, tag, vaddr, nload, vt, lanes=64, sleep=0, pre=False):
    sfx = {1: "dword", 2: "dwordx2", 4: "dwordx4"}[nload]
    if lanes < 64: a(f"s_mov_b32 exec_lo, {hx((1 << lanes) - 1)}\ns_mov_b32 exec_hi, 0")
    a(f"s_mov_b32 s{T7}, 0")
    if pre: a(f"s_branch L_pollc_{tag}")
    a.label(f"L_poll_{tag}")
    a(f"buffer_load_{sfx} {vr(vt, nload)}, v{vaddr}, s[{SWS}:{SWS+3}], 0 offen sc1")
    a("s_waitcnt vmcnt(0)")
    a.label(f"L_pollc_{tag}")
    for i in range(nload): a(f"v_xor_b32 v{vt+i}, s{S_NONCE}, v{vt+i}")
    if nload == 2: a(f"v_or_b32 v{vt}, v{vt}, v{vt+1}")
    if nload == 4: a(f"v_or_b32 v{vt}, v{vt}, v{vt+1}\nv_or3_b32 v{vt}, v{vt}, v{vt+2}, v{vt+3}")
    a(f"""v_cmp_ne_u32 vcc, 0, v{vt}
s_add_u32 s{T7}, s{T7}, 1
s_nop 2
s_cmp_eq_u64 vcc, 0
s_cbranch_scc1 L_polld_{tag}
{f"s_sleep {sleep}" if sleep else ""}
s_cmp_lt_u32 s{T7}, {SPIN_MAX}
s_cbranch_scc1 L_poll_{tag}""")
    a.label(f"L_polld_{tag}")
    if lanes < 64: a("s_mov_b64 exec, -1")

def div10_offsets(a, vdst, cbase_s, cbase_imm, vt, perm):
    if cbase_s is not None: a(f"v_add_u32 v{vt}, s{cbase_s}, v0")
    else: a(f"v_add_u32 v{vt}, {cbase_imm}, v0")
    a(f"""v_mul_u32_u24 v{vt+1}, 6554, v{vt}
v_lshrrev_b32 v{vt+1}, 16, v{vt+1}
v_mul_u32_u24 v{vt+2}, 10, v{vt+1}
v_sub_u32 v{vt}, v{vt}, v{vt+2}""")
    if perm:
        a(f"""v_lshrrev_b32 v{vt+2}, 2, v{vt+1}
v_lshrrev_b32 v{vt+3}, 3, v{vt+1}
v_xor_b32 v{vt+2}, v{vt+2}, v{vt+3}
v_and_b32 v{vt+2}, 1, v{vt+2}
v_mul_u32_u24 v{vt+2}, 12, v{vt+2}
v_xor_b32 v{vt+1}, v{vt+1}, v{vt+2}""")
    a(f"""v_mul_u32_u24 v{vt+1}, 1280, v{vt+1}
v_lshl_add_u32 v{vdst}, v{vt}, 4, v{vt+1}""")

XF = 16
VX = 250
WT = 245
C_A, C_B, C_PW, C_PR, C_UG, C_UL = 242, 243, 244, 251, 252, 253
C_A2, C_B2 = 246, 247
Q_W, A_WQ, V_NON, Q_R, Q_R4 = 13, 14, 15, 224, 225
E_W, E_R = 248, 249
L_EV = 162560
EV_CRIT, EV_X, EV_FR, EV_WQ, EV_TBL, EV_WQA, EV_EXP, EV_QD, EV_C0, EV_C1, EV_C2, EV_US = 0, 1, 2, 3, 7, 8, 9, 10, 5, 6, 11, 12
X_F0, X_F1 = 246, 247
EXI = 186
def ev_signal(a, e, vn=None):
    a(f"s_mov_b64 exec, 1\nds_write_b32 v{E_W}, v{vn or V_NON} offset:{32*e}\ns_mov_b64 exec, -1")
_evn = [0]
def ev_wait(a, e, mask, vn=None):
    _evn[0] += 1; n = _evn[0]
    a(f"s_mov_b32 s{T7}, 0")
    a.label(f"L_ev_{n}")
    a(f"""ds_read_b32 v2, v{E_R} offset:{32*e}
s_add_u32 s{T7}, s{T7}, 1
s_waitcnt lgkmcnt(0)
v_cmp_eq_u32 vcc, v2, v{vn or V_NON}
s_cmp_ge_u32 s{T7}, {SPIN_MAX}
s_cbranch_scc1 L_evd_{n}
s_nop 1
s_and_b32 s{T0}, vcc_lo, {mask}
s_cmp_eq_u32 s{T0}, {mask}
s_cbranch_scc1 L_evd_{n}
s_sleep {SLEEP}
s_branch L_ev_{n}""")
    a.label(f"L_evd_{n}")

def prologue(a, cfg):
    a(f"""s_cmp_ge_u32 s2, 256
s_cbranch_scc1 L_end""")
    stamp(a, cfg, 21)
    a(f"""s_load_dwordx16 s[4:19], s[0:1], 0
s_load_dwordx2 s[32:33], s[0:1], 112
s_load_dwordx8 s[20:27], s[0:1], 64
s_load_dwordx4 s[28:31], s[0:1], 96
v_lshrrev_b32 v1, 6, v0
v_and_b32 v0, 63, v0
s_and_b32 s{S_XCD}, s2, 7
v_readfirstlane_b32 s{S_W}, v1
s_lshr_b32 s{S_J}, s2, 3
s_lshr_b32 s{T0}, s{S_J}, 3
s_lshl_b32 s{S_RB}, s{S_XCD}, 2
s_add_u32 s{S_RB}, s{S_RB}, s{T0}
s_and_b32 s{S_HG}, s{S_J}, 7
v_lshlrev_b32 v1, 4, v0""")
    if CPF:
        a("s_getpc_b64 s[92:93]")
        a.label("L_pc")
        a(f"""s_sub_u32 s92, s92, L_pc - {NAME}_kernel
s_subb_u32 s93, s93, 0
s_lshl_b32 s{T0}, s{S_W}, 10
v_add_u32 v3, s{T0}, v1
v_add_co_u32 v4, vcc, s92, v3
v_mov_b32 v5, s93
s_mul_i32 s{T1}, s{S_J}, {CPF}
v_addc_co_u32 v5, vcc, 0, v5, vcc
s_cmp_lt_u32 s{S_W}, 6
{"global_load_dwordx4 v[200:203], v[4:5], off" if CPF0 else ""}
s_cbranch_scc1 L_nocp
s_add_u32 s{T1}, s{T1}, {8192 - 6*1024 if CPF0 else -6*1024 & 0xffffffff}
v_add_u32 v3, s{T1}, v3
v_min_u32 v3, L_code_end - {NAME}_kernel - 16, v3
v_add_co_u32 v4, vcc, s92, v3
v_mov_b32 v5, s93
s_nop 0
v_addc_co_u32 v5, vcc, 0, v5, vcc
global_load_dwordx4 v[200:203], v[4:5], off""")
        a.label("L_nocp")
    a(f"""v_lshrrev_b32 v2, 3, v0
v_and_b32 v3, 7, v0
v_xor_b32 v3, v3, v2
v_mul_u32_u24 v2, 1280, v2
v_lshl_add_u32 v{VX}, v3, 4, v2
v_mov_b32 v{WT}, 0
s_lshr_b32 s{T0}, s{S_J}, 1
s_mul_i32 s{T0}, s{T0}, 5
s_mul_i32 s{S_CH0}, s{S_XCD}, 80
s_add_u32 s{S_CH0}, s{S_CH0}, s{T0}
s_add_u32 s{S_CH2}, s{S_CH0}, 2
s_and_b32 s{T0}, s{S_J}, 1
s_mul_i32 s{T0}, s{T0}, 3
s_add_u32 s{S_CH0}, s{S_CH0}, s{T0}
s_lshr_b32 s{T0}, s{S_HG}, 1
s_add_u32 s{S_RT}, s{T0}, s{S_W}
s_and_b32 s{S_RT}, s{S_RT}, 3
s_lshr_b32 s{S_KH}, s{S_W}, 2
s_mov_b32 s{S_FB}, 0
s_mov_b32 s{VM}, 0x000fffff
s_mov_b32 s{VM+1}, 0x000fffff
s_mul_i32 s{T5}, s{S_RB}, {64*1280}""")

def x_loop(a, tag, n_s, n_imm):
    a(f"s_mov_b32 s{T2}, {n_imm}" if n_s is None else f"s_mov_b32 s{T2}, s{n_s}")
    a.label(f"L_xl_{tag}")
    a(f"""s_mul_i32 s{T0}, s{T3}, {8*1280}
s_lshl_b32 s{T1}, s{T4}, 7
s_add_u32 s{T0}, s{T0}, s{T1}
s_lshl_b32 s{T1}, s{T4}, 3
s_add_u32 s{T1}, s{T1}, s{T3}
s_lshl_b32 m0, s{T1}, 10
s_add_u32 s{T0}, s{T0}, s{T5}
buffer_load_dwordx4 v{VX}, s[{SA}:{SA+3}], s{T0} offen {XNT} lds
s_add_u32 s{T4}, s{T4}, 1
s_cmp_eq_u32 s{T4}, 10
s_cselect_b32 s{T4}, 0, s{T4}
s_addc_u32 s{T3}, s{T3}, 0
s_and_b32 s{T3}, s{T3}, 7
s_sub_u32 s{T2}, s{T2}, 1
s_cmp_lg_u32 s{T2}, 0
s_cbranch_scc1 L_xl_{tag}""")

def crit_loads(a):
    a(f"""s_and_b32 s{T3}, s{S_HG}, 6
s_and_b32 s{T4}, s{S_W}, 1
s_add_u32 s{T3}, s{T3}, s{T4}
s_lshr_b32 s{T4}, s{S_W}, 1
s_mul_i32 s{T0}, s{T3}, {8*1280}
s_lshl_b32 s{T1}, s{T4}, 7
s_add_u32 s{T0}, s{T0}, s{T1}
s_add_u32 s{T0}, s{T0}, s{T5}
s_lshl_b32 s{T1}, s{T4}, 3
s_add_u32 s{T1}, s{T1}, s{T3}
s_lshl_b32 m0, s{T1}, 10
s_bitcmp1_b32 s{S_HG}, 0""")
    for i in range(5):
        a(f"buffer_load_dwordx4 v{VX}, s[{SA}:{SA+3}], s{T0} offen {XNT} lds")
        if i < 4: a(f"s_add_u32 m0, m0, 16384\ns_add_u32 s{T0}, s{T0}, 256")
    a(f"""s_bitcmp1_b32 s{S_HG}, 0
s_cselect_b32 s{SB}, s{P_WV}, s{P_WK}
s_cselect_b32 s{SB+1}, s{P_WV+1}, s{P_WK+1}
s_mov_b32 s{SB+2}, 25600
s_mov_b32 s{SB+3}, 0x00020000
s_lshl_b32 s{T0}, s{S_W}, 10
s_add_u32 m0, s{T0}, {L_WK}
s_nop 0""")
    for i in range(7):
        if i == 6: a(f"s_cmp_lg_u32 s{S_W}, 0\ns_cbranch_scc1 L_wk_done")
        a(f"buffer_load_dwordx4 v1, s[{SB}:{SB+3}], s{T0} offen lds")
        if i < 6: a(f"s_add_u32 m0, m0, 4096\ns_add_u32 s{T0}, s{T0}, 4096")
    a.label("L_wk_done")

def rest_x(a, tag):
    a(f"""s_mul_i32 s{T4}, s{S_W}, 15
s_mul_i32 s{T3}, s{T4}, 205
s_lshr_b32 s{T3}, s{T3}, 11
s_mul_i32 s{T1}, s{T3}, 10
s_sub_u32 s{T4}, s{T4}, s{T1}
s_and_b32 s{T1}, s{S_HG}, 6
s_add_u32 s{T3}, s{T3}, s{T1}
s_add_u32 s{T3}, s{T3}, 2
s_and_b32 s{T3}, s{T3}, 7""")
    x_loop(a, tag, None, 15)

WT4 = 8
def wq_items(a, first, n, even):
    srd(a, SB, P_WQ, 640*1280)
    a(f"""s_lshl_b32 s{S_DM}, s{S_W}, 10
s_add_u32 s{S_DM}, s{S_DM}, {first*5120}
s_mul_i32 s{S_DO}, s{S_HG}, 160
s_add_u32 s{S_DO}, s{S_DO}, {first*40960}""")
    one = f"s_mov_b32 m0, s{S_DM}\ns_add_u32 s{S_DM}, s{S_DM}, 5120\nbuffer_load_dwordx4 v{WT}, s[{SB}:{SB+3}], s{S_DO} offen lds\ns_add_u32 s{S_DO}, s{S_DO}, 40960"
    if not even: return Dma([one] * n)
    a(f"""s_lshr_b32 s{T2}, s{S_W}, 1
s_add_u32 s{T2}, s{T2}, {first}
s_mul_i32 s92, s{T2}, 5120
s_add_u32 s92, s92, 4096
s_mul_i32 s93, s{T2}, 40960
s_mul_i32 s{T2}, s{S_HG}, 160
s_add_u32 s93, s93, s{T2}""")
    four = f"s_mov_b32 m0, s92\ns_add_u32 s92, s92, 10240\nbuffer_load_dwordx4 v{WT4}, s[{SB}:{SB+3}], s93 offen lds\ns_add_u32 s93, s93, 81920"
    return Dma([x for k in range(n // 2) for x in (one, one, four)])

def typed_offset(a):
    a(f"s_lshl_b32 s{T2}, s{S_W}, 6")
    div10_offsets(a, WT, T2, None, 2, True)

A_YR, A_YW, A_YB, A_YG0, A_YG1, A_W, A_OW, A_OB, A_OG, A_XW, A_XR, A_PW, A_PG0, A_PG1, A_YD, A_FO = range(226, 242)
def w_tr_addr(a, v, t):
    a(f"""v_lshrrev_b32 v{v}, 5, v0
v_lshlrev_b32 v{v}, 4, v{v}
v_bfe_u32 v{t}, v0, 4, 1
v_lshl_add_u32 v{v}, v{t}, 2, v{v}
v_bfe_u32 v{t}, v0, 2, 2
v_add_u32 v{v}, v{v}, v{t}
v_mul_u32_u24 v{v}, 160, v{v}
v_and_b32 v{t}, 3, v0
v_lshl_add_u32 v{v}, v{t}, 3, v{v}
s_mul_i32 s{T0}, s{S_KH}, 51200
v_add_u32 v{v}, s{T0}, v{v}""")

L_P16 = 86528; L_P32 = 102912
UPOS = [1, 2, 0]
def conv_addrs(a, kside):
    a(f"""v_and_b32 v2, 15, v0
v_lshrrev_b32 v3, 4, v0""")
    if kside:
        a(f"""s_sub_u32 s{T0}, s{S_W}, 4
s_lshr_b32 s{T1}, s{T0}, 1
s_and_b32 s{T2}, s{T0}, 1
s_lshl_b32 s{T2}, s{T2}, 8
s_mul_i32 s{T4}, s{T1}, {CP_CH}
s_sub_u32 s{T4}, s{T4}, s{T2}
s_add_u32 s{T4}, s{T4}, {L_CP + 2*2032 - 512*7 - 192}
s_mul_i32 s{T6}, s{T1}, {UT_CH}
s_sub_u32 s{T6}, s{T6}, s{T2}
s_add_u32 s{T6}, s{T6}, {L_UT + UT_CH + 480 - 192}
s_lshl_b32 s{T2}, s{T0}, 7
s_sub_u32 s{T1}, {L_CP + 2*CP_CH + 2*2032 - 512*7 - 192}, s{T2}
s_sub_u32 s{T2}, {L_UT + 480 - 192}, s{T2}
v_sub_u32 v4, 0, v2
v_and_b32 v4, 3, v4
v_add_u32 v5, v2, v4
v_mul_u32_u24 v4, {CP_C}, v4
v_lshlrev_b32 v5, 1, v5
v_sub_u32 v4, v4, v5
v_lshl_add_u32 v4, v3, 4, v4
v_add_u32 v{C_A}, s{T4}, v4
v_add_u32 v{C_A2}, s{T1}, v4
v_lshlrev_b32 v5, 5, v2
v_lshl_add_u32 v5, v3, 4, v5
v_add_u32 v{C_B}, s{T6}, v5
v_add_u32 v{C_B2}, s{T2}, v5
v_lshl_add_u32 v4, v3, 2, v2
v_and_b32 v4, 15, v4
v_lshl_add_u32 v4, v3, 4, v4
v_lshlrev_b32 v{C_PW}, 4, v4""")
    a(f"""v_lshrrev_b32 v4, 2, v0
v_and_b32 v5, 3, v0
v_lshl_add_u32 v4, v5, 2, v4
v_and_b32 v4, 15, v4
v_lshl_add_u32 v4, v5, 4, v4
v_lshlrev_b32 v{C_PR}, 4, v4
s_and_b32 s{T0}, s{S_W}, 3
s_lshl_b32 s{T0}, s{T0}, 10
v_lshl_add_u32 v{C_UG}, v0, 3, s{T0}
s_and_b32 s{T0}, s{S_W}, 3
s_mul_i32 s{T1}, s{T0}, 2560
s_add_u32 s{T1}, s{T1}, {L_QST}
v_mul_u32_u24 v2, 160, v2
v_add_u32 v2, s{T1}, v2
v_and_b32 v3, 1, v3
v_mul_u32_u24 v3, 40, v3
v_add_u32 v2, v2, v3
v_lshrrev_b32 v3, 5, v0
v_lshl_add_u32 v{Q_R}, v3, 4, v2
v_mul_u32_u24 v3, 80, v3
v_add_u32 v{Q_R4}, v2, v3
s_lshl_b32 s{T0}, s{S_W}, 2
s_add_u32 s{T0}, s{T0}, {L_EV}
v_mov_b32 v{E_W}, s{T0}
v_and_b32 v2, 7, v0
v_lshlrev_b32 v2, 2, v2
v_add_u32 v{E_R}, {L_EV}, v2""")

def chan(a, dst, c):
    a(f"s_add_u32 s{dst}, s{S_CH0}, {c}" if c < 2 else f"s_mov_b32 s{dst}, s{S_CH2}")
def chan_w(a, dst):
    a(f"""s_sub_u32 s{dst}, s{S_W}, 5
s_add_u32 s{dst}, s{dst}, s{S_CH0}
s_cmp_eq_u32 s{S_W}, 7
s_cselect_b32 s{dst}, s{S_CH2}, s{dst}""")
def d_loads(a):
    for c in range(3):
        chan(a, T2, c)
        a(f"""s_lshl_b32 s{T2}, s{T2}, 1
s_and_b32 s{T2}, s{T2}, 0xfffffffc
s_load_dword s{S_D0+c}, s[{P_DSK}:{P_DSK+1}], s{T2}""")

def q_addrs(a):
    typed_offset(a)
    div10_offsets(a, WT4, None, 256, 2, True)
    a(f"""v_lshrrev_b32 v2, 5, v0
v_lshlrev_b32 v2, 4, v2
v_bfe_u32 v3, v0, 4, 1
v_lshl_add_u32 v2, v3, 2, v2
v_bfe_u32 v3, v0, 2, 2
v_add_u32 v2, v2, v3
v_mul_u32_u24 v2, 160, v2
v_and_b32 v3, 3, v0
v_lshl_add_u32 v2, v3, 3, v2
s_bitcmp0_b32 s{S_W}, 0
s_cselect_b32 s{T1}, 96, 0
v_add_u32 v{A_WQ}, s{T1}, v2
v_and_b32 v2, 15, v0
v_lshrrev_b32 v3, 4, v0
v_and_b32 v4, 7, v2
v_xor_b32 v4, v3, v4
v_lshlrev_b32 v5, 7, v2
v_lshl_add_u32 v{X_F0}, v4, 4, v5
v_xor_b32 v{X_F1}, 64, v{X_F0}
s_lshr_b32 s{T0}, s{S_W}, 1
s_mul_i32 s{T0}, s{T0}, 5120
s_add_u32 s{T0}, s{T0}, s{T1}
s_add_u32 s{T0}, s{T0}, {L_QST}
v_mul_u32_u24 v2, 160, v2
v_lshl_add_u32 v2, v3, 3, v2
v_add_u32 v{Q_W}, s{T0}, v2""")

ORDER = [16, 17, 18, 19] + list(range(16))
def xf(i, s):
    n = ORDER.index(s)
    if i == 0: return XF + 4*n
    return 144 + 4*n if n < 4 else (96 + 4*(n - 4) if n < 16 else 160 + 4*(n - 16))
def x_frags(a, i, kv=False):
    a(f"s_lshr_b32 s{T0}, s{S_HG}, 1")
    if not kv:
        a(f"""s_and_b32 s{T1}, s{S_W}, 2
s_add_u32 s{T0}, s{T0}, s{T1}
s_add_u32 s{T0}, s{T0}, {i}
s_and_b32 s{T0}, s{T0}, 3""")
    a(f"""s_lshl_b32 s{T0}, s{T0}, 11
s_add_u32 s{T1}, s{T0}, 40960
v_add_u32 v2, s{T0}, v{X_F0}
v_add_u32 v3, s{T0}, v{X_F1}
v_add_u32 v4, s{T1}, v{X_F0}
v_add_u32 v5, s{T1}, v{X_F1}""")
    for s in range(20):
        a(f"ds_read_b128 {vr(xf(i, s),4)}, v{2 + (s & 1) + 2*(s >= 10)} offset:{L_X + 8192*((s % 10) >> 1)}")

def finish_nonce(a, first=True):
    if first:
        a(f"s_waitcnt lgkmcnt(0)\ns_mul_i32 s{S_NONCE}, s{S_NONCE}, 0x9E3779B1\ns_add_u32 s{S_NONCE}, s{S_NONCE}, 0x7F4A7C15\nv_mov_b32 v{V_NON}, s{S_NONCE}")
    else:
        a(f"""s_waitcnt lgkmcnt(0)
s_cmp_eq_u32 s{S_W}, 4
s_cbranch_scc1 L_fn_done
s_mul_i32 s{S_NONCE}, s{S_NONCE}, 0x9E3779B1
s_add_u32 s{S_NONCE}, s{S_NONCE}, 0x7F4A7C15
v_mov_b32 v{V_NON}, s{S_NONCE}""")
        a.label("L_fn_done")

def kv_proj1(a, cfg):
    WR = 176; ACC = 200
    x_frags(a, 0, kv=True)
    def reads(s):
        b = WR + 8*(s % 3)
        for ct in range(2):
            for hf in range(2):
                a(f"ds_read_b64_tr_b16 {vr(b+4*ct+2*hf,2)}, v6 offset:{1280*s + 160*hf + 32*ct}")
    a(f"s_bitcmp1_b32 s{S_HG}, 0\ns_cbranch_scc1 L_kv_v")
    for kind in range(2):
        if kind: a.label("L_kv_v")
        reads(0); reads(1)
        for s in range(20):
            if s + 2 < 20: reads(s + 2)
            a(f"s_waitcnt lgkmcnt({4*min(2, 19 - s)})")
            b = WR + 8*(s % 3)
            for ct in range(2):
                A, B = vr(b+4*ct, 4), vr(xf(0, s), 4)
                if kind: A, B = B, A
                a(f"v_mfma_f32_16x16x32_bf16 {vr(ACC+4*ct,4)}, {A}, {B}, {vr(ACC+4*ct,4) if s else 0}")
        ev_signal(a, EV_TBL)
        a(f"""s_mul_i32 s{T0}, s{S_RB}, {BLK}
s_add_u32 s{T0}, s{T0}, {W_KV}
s_lshr_b32 s{T3}, s{S_HG}, 1
v_and_b32 v3, 15, v0
v_lshrrev_b32 v4, 4, v0""")
        if kind == 0:
            a(f"""s_lshr_b32 s{T1}, s{T3}, 1
s_lshl_b32 s{T1}, s{T1}, 10
s_and_b32 s{T2}, s{T3}, 1
s_lshl_b32 s{T2}, s{T2}, 8
s_add_u32 s{T1}, s{T1}, s{T2}
s_add_u32 s{T1}, s{T1}, s{T0}
v_lshrrev_b32 v5, 1, v4
v_lshlrev_b32 v5, 9, v5
v_lshl_add_u32 v5, v3, 4, v5
v_and_b32 v6, 1, v4
v_lshl_add_u32 v5, v6, 3, v5
s_lshl_b32 s{T2}, s{T3}, 7
s_add_u32 s{T2}, s{T2}, s{T0}
s_add_u32 s{T2}, s{T2}, 2048
v_lshlrev_b32 v6, 3, v3
v_cmp_gt_u32 vcc, 16, v0
s_mov_b32 s{T3}, {hx(f2u(LOG2E/math.sqrt(20.0)))}""")
            for j in range(8): a(f"v_mul_f32 v{ACC+j}, s{T3}, v{ACC+j}")
            a("s_branch L_kv_st")
        else:
            a(f"""s_mul_i32 s{T1}, s{T3}, 640
s_add_u32 s{T1}, s{T1}, s{T0}
s_add_u32 s{T1}, s{T1}, 2560
s_add_u32 s{T2}, s{T1}, 256
v_lshrrev_b32 v5, 1, v4
v_mul_u32_u24 v5, 320, v5
v_lshl_add_u32 v5, v3, 4, v5
v_and_b32 v6, 1, v4
v_lshl_add_u32 v5, v6, 3, v5
v_mov_b32 v6, v5
v_cmp_gt_u32 vcc, 4, v3""")
    a.label("L_kv_st")
    a(f"""v_cvt_pk_bf16_f32 v208, v{ACC}, v{ACC+1}
v_cvt_pk_bf16_f32 v209, v{ACC+2}, v{ACC+3}
v_cvt_pk_bf16_f32 v210, v{ACC+4}, v{ACC+5}
v_cvt_pk_bf16_f32 v211, v{ACC+6}, v{ACC+7}
buffer_store_dwordx2 v[208:209], v5, s[{SWS}:{SWS+3}], s{T1} offen sc1
s_and_saveexec_b64 s[{EX}:{EX+1}], vcc
buffer_store_dwordx2 v[210:211], v6, s[{SWS}:{SWS+3}], s{T2} offen sc1
s_mov_b64 exec, s[{EX}:{EX+1}]""")

def kv_proj(a, cfg):
    a("; ---- k|v projection")
    if KV1: return kv_proj1(a, cfg)
    WR = 176
    ACC = 200
    x_frags(a, 0, kv=True)
    def reads(s):
        b = WR + 4*(s % 4)
        for hf in range(2):
            a(f"ds_read_b64_tr_b16 {vr(b+2*hf,2)}, v6 offset:{1280*s + 160*hf}")
    a(f"s_bitcmp1_b32 s{S_HG}, 0\ns_cbranch_scc1 L_kv_v")
    for kind in range(2):
        if kind: a.label("L_kv_v")
        reads(0); reads(1); reads(2)
        for s in range(20):
            if s + 3 < 20: reads(s + 3)
            a(f"s_waitcnt lgkmcnt({2*min(3, 19 - s)})")
            b = WR + 4*(s % 4)
            A, B = vr(b, 4), vr(xf(0, s), 4)
            if kind: A, B = B, A
            a(f"v_mfma_f32_16x16x32_bf16 {vr(ACC,4)}, {A}, {B}, {vr(ACC,4) if s else 0}")
        ev_signal(a, EV_TBL)
        a(f"""s_mul_i32 s{T0}, s{S_RB}, {BLK}
s_add_u32 s{T0}, s{T0}, {W_KV}
s_lshr_b32 s{T3}, s{S_HG}, 1
v_and_b32 v3, 15, v0
v_lshrrev_b32 v4, 4, v0""")
        if kind == 0:
            a(f"""s_lshr_b32 s{T1}, s{T3}, 1
s_lshl_b32 s{T1}, s{T1}, 10
s_and_b32 s{T2}, s{T3}, 1
s_lshl_b32 s{T2}, s{T2}, 8
s_add_u32 s{T1}, s{T1}, s{T2}
s_add_u32 s{T1}, s{T1}, s{T0}
v_lshrrev_b32 v5, 1, v4
v_lshlrev_b32 v5, 9, v5
v_lshl_add_u32 v5, v3, 4, v5
v_and_b32 v6, 1, v4
v_lshl_add_u32 v5, v6, 3, v5
s_lshl_b32 s{T2}, s{T3}, 7
s_add_u32 s{T2}, s{T2}, s{T0}
s_add_u32 s{T2}, s{T2}, 2048
v_lshlrev_b32 v6, 3, v3
v_cmp_gt_u32 vcc, 16, v0
s_mov_b32 s{T3}, {hx(f2u(LOG2E/math.sqrt(20.0)))}
v_cvt_pk_bf16_f32 v{ACC}, v{ACC}, v{ACC+1}
v_cvt_pk_bf16_f32 v{ACC+2}, v{ACC+2}, v{ACC+3}
v_and_b32 v{ACC+1}, 0xffff0000, v{ACC}
v_lshlrev_b32 v{ACC}, 16, v{ACC}
v_and_b32 v{ACC+3}, 0xffff0000, v{ACC+2}
v_lshlrev_b32 v{ACC+2}, 16, v{ACC+2}
v_mul_f32 v{ACC}, s{T3}, v{ACC}
v_mul_f32 v{ACC+1}, s{T3}, v{ACC+1}
v_mul_f32 v{ACC+2}, s{T3}, v{ACC+2}
v_mul_f32 v{ACC+3}, s{T3}, v{ACC+3}""")
        else:
            a(f"""s_mul_i32 s{T1}, s{T3}, 640
s_add_u32 s{T1}, s{T1}, s{T0}
s_add_u32 s{T1}, s{T1}, 2560
s_add_u32 s{T2}, s{T1}, 256
v_lshrrev_b32 v5, 1, v4
v_mul_u32_u24 v5, 320, v5
v_lshl_add_u32 v5, v3, 4, v5
v_and_b32 v6, 1, v4
v_lshl_add_u32 v5, v6, 3, v5
v_mov_b32 v6, v5
v_cmp_gt_u32 vcc, 4, v3""")
        if kind == 0: a("s_branch L_kv_st")
    a.label("L_kv_st")
    a(f"""v_cvt_pk_bf16_f32 v208, v{ACC}, v{ACC+1}
v_cvt_pk_bf16_f32 v209, v{ACC+2}, v{ACC+3}
s_cmp_lg_u32 s{S_W}, 0
s_cbranch_scc1 L_kv_st1
buffer_store_dwordx2 v[208:209], v5, s[{SWS}:{SWS+3}], s{T1} offen sc1
s_branch L_kv_done""")
    a.label("L_kv_st1")
    a(f"""s_and_saveexec_b64 s[{EX}:{EX+1}], vcc
buffer_store_dwordx2 v[208:209], v6, s[{SWS}:{SWS+3}], s{T2} offen sc1
s_mov_b64 exec, s[{EX}:{EX+1}]""")
    a.label("L_kv_done")

def cmul(a, d, x, y, t):
    a(f"v_pk_mul_f32 {vr(t,2)}, {vr(x,2)}, {vr(y,2)} op_sel:[0,0] op_sel_hi:[0,1]")
    return f"v_pk_fma_f32 {vr(d,2)}, {vr(x,2)}, {vr(y,2)}, {vr(t,2)} op_sel:[1,1,0] op_sel_hi:[1,0,1] neg_lo:[1,0,0]"
def cmul_multi(a, items, tmps):
    for k in range(0, len(items), len(tmps)):
        grp = items[k:k+len(tmps)]
        second = [cmul(a, d, x, y, t) for (d, x, y), t in zip(grp, tmps)]
        for s in second: a(s)

LOG2E = 1.4426950408889634
def acc_exp(a, d, x, t):
    a(f"""v_mul_f32 v{t}, s{S_C1}, {x}
v_fma_f32 v{t+1}, {x}, s{S_C1}, -v{t}
v_fma_f32 v{t+1}, {x}, s{S_C2}, v{t+1}
v_exp_f32 v{t}, v{t}
v_fma_f32 v{t+1}, v{t+1}, s{S_C3}, 1.0
v_mul_f32 v{d}, v{t}, v{t+1}""")

KP = 56
def kgen_loads(a):
    chan_w(a, T2)
    a(f"""s_lshl_b32 s{T3}, s{T2}, 8
v_lshlrev_b32 v2, 2, v0""")
    for i, p in enumerate((P_LAR, P_AIM, P_CR, P_CI)):
        srd(a, SB, p, 640*256)
        a(f"buffer_load_dword v{KP+i}, v2, s[{SB}:{SB+3}], s{T3} offen {PNT}")
    a(f"""s_lshl_b32 s{T3}, s{T2}, 1
s_and_b32 s{T3}, s{T3}, 0xfffffffc
s_load_dword s{S_LDT}, s[{P_LDT}:{P_LDT+1}], s{T3}
s_and_b32 s35, s{T2}, 1
s_lshl_b32 s35, s35, 4""")

K_ACC = 170; K_DT = 182; K_AW = 8; K_AR = 12
def kgen_pre(a):
    hi = f2u(LOG2E); lo = f2u(LOG2E - struct.unpack("<f", struct.pack("<I", hi))[0])
    a(f"""s_mov_b32 s{S_C1}, {hx(hi)}
s_mov_b32 s{S_C2}, {hx(lo)}
s_mov_b32 s{S_C3}, {hx(f2u(math.log(2)))}
s_mov_b32 s{S_C4}, {hx(f2u(1/(2*math.pi)))}
s_sub_u32 s{T2}, s{S_W}, 5
s_mul_i32 s{T3}, s{T2}, {SCR_SZ}
s_add_u32 s{T3}, s{T3}, {L_SCR}
v_lshl_add_u32 v{K_AW}, v0, 2, s{T3}
v_add_u32 v{K_AW+1}, 1088, v{K_AW}
v_add_u32 v{K_AW+2}, 2176, v{K_AW}
v_add_u32 v{K_AW+3}, 3264, v{K_AW}
v_and_b32 v4, 15, v0
v_mul_u32_u24 v4, 272, v4
v_lshrrev_b32 v5, 4, v0
v_lshl_add_u32 v4, v5, 4, v4
v_add_u32 v{K_AR}, s{T3}, v4
s_lshr_b32 s{S_LDT}, s{S_LDT}, s35
s_lshl_b32 s{S_LDT}, s{S_LDT}, 16
v_mov_b32 v6, s{S_LDT}""")
    acc_exp(a, K_DT, "v6", 4)
    a(f"v_cvt_pk_bf16_f32 v{K_DT}, v{K_DT}, v{K_DT}\nv_lshlrev_b32 v{K_DT}, 16, v{K_DT}")

class Spread:
    def __init__(s, a, gap): s.a = a; s.gap = gap; s.q = []; s.n = 0
    def __call__(s, text):
        for l in text.split("\n"):
            if not l.strip(): continue
            s.a(l)
            if l.strip().startswith("ds_"):
                for it in s.q: it[1] += 1
            s.n += 1
            if s.q and s.n >= s.gap: s.one()
    def label(s, n): s.a.label(n)
    def one(s):
        ins, after = s.q.pop(0)
        s.a(f"s_waitcnt lgkmcnt({min(15, after)})\n{ins}"); s.n = 0
    def defer(s, items, first_gap):
        s.q += [[ins, len(items) - 1 - k] for k, ins in enumerate(items)]; s.n = s.gap - first_gap
    def drain(s):
        while s.q: s.one()

def kgen_round(a, rnd, hook=None):
    W1, W2, V8, V2, WW = 60, 62, 64, 66, 68
    G = 70
    FA, FB = 86, 88
    TM = [90, 92, 94, 96]
    PK = 98
    BF = 104; AF = 120; ACC = K_ACC
    DT, ER, TH = K_DT, K_DT+1, K_DT+2
    for i in range(4): a(f"v_lshlrev_b32 v{PK+i}, 16, v{KP+i}" if rnd == 0 else f"v_and_b32 v{PK+i}, 0xffff0000, v{KP+i}")
    acc_exp(a, ER, f"v{PK}", 4)
    a(f"""v_cvt_pk_bf16_f32 v{ER}, v{ER}, v{ER}
v_mul_f32 v{TH}, v{PK+1}, v{DT}
v_lshlrev_b32 v{ER}, 16, v{ER}
v_mul_f32 v{G}, v{PK+2}, v{DT}
v_mul_f32 v{ER}, v{ER}, v{DT}
v_mul_f32 v{G+1}, v{PK+3}, v{DT}
v_mul_f32 v{ER}, s{S_C1}, -v{ER}
v_mul_f32 v{TH}, s{S_C4}, v{TH}
v_add_f32 v{G}, v{G}, v{G}
v_add_f32 v{G+1}, v{G+1}, v{G+1}
v_mul_f32 v{TM[1]}, 0x41000000, v{ER}
v_mul_f32 v{TM[1]+1}, 0x41000000, v{TH}
v_mul_f32 v{TM[2]}, 0x43000000, v{ER}
v_mul_f32 v{TM[2]+1}, 0x43000000, v{TH}
v_fract_f32 v{TM[0]+1}, v{TH}
v_fract_f32 v{TM[1]+1}, v{TM[1]+1}
v_fract_f32 v{TM[2]+1}, v{TM[2]+1}
v_exp_f32 v{TM[0]}, v{ER}
v_exp_f32 v{TM[1]}, v{TM[1]}
v_exp_f32 v{TM[2]}, v{TM[2]}""")
    for k, dst in enumerate((W1, V8, WW)): a(f"v_cos_f32 v{dst}, v{TM[k]+1}\nv_sin_f32 v{dst+1}, v{TM[k]+1}")
    a(f"v_mov_b32 v{PK}, 0x3f80")
    for k, dst in enumerate((W1, V8, WW)): a(f"v_pk_mul_f32 {vr(dst,2)}, {vr(dst,2)}, {vr(TM[k],2)} op_sel_hi:[1,0]")
    pk = [1]; pend = [(0, PK)]
    def flush():
        if pend:
            row, r = pend.pop()
            a(f"ds_write_b32 v{K_AW + (row >> 2)}, v{r} offset:{272*(row & 3)}")
    def put(row, src, neg):
        r = PK + (pk[0] % 6); pk[0] += 1
        a(f"v_cvt_pk_bf16_f32 v{r}, v{src}, {'-' if neg else ''}v{src+1}")
        if pend and pend[0][0] >> 2 == row >> 2:
            row0, r0 = pend.pop()
            a(f"ds_write2_b32 v{K_AW + (row >> 2)}, v{r0}, v{r} offset0:{68*(row0 & 3)} offset1:{68*(row & 3)}")
        else:
            flush(); pend.append((row, r))
    cmul_multi(a, [(W2, W1, W1), (V2, V8, V8), (G+2, G, W1)], TM)
    put(1, V8, True); put(2, V2, True)
    fa, fb = V8, V2
    for k in range(7):
        items = [(FA, fa, V2)]
        if k < 6: items.append((FB, fb, V2))
        if k < 3: items += [(G+4+4*k, G+4*k, W2), (G+6+4*k, G+2+4*k, W2)]
        cmul_multi(a, items, TM)
        put(3+2*k, FA, True)
        if k < 6: put(4+2*k, FB, True)
        fa, fb = FA, FB
    flush()
    a.drain()
    for ks in range(4): a(f"ds_read_b128 {vr(BF+4*ks,4)}, v{K_AR} offset:{64*ks}")
    if hook: hook()
    def tile(T):
        flush()
        a.drain()
        for ks in range(4): a(f"ds_read_b128 {vr(AF+4*ks,4)}, v{K_AR} offset:{64*ks}")
        a.defer([f"v_mfma_f32_16x16x32_bf16 {vr(ACC+4*T,4)}, {vr(AF+4*ks,4)}, {vr(BF+4*ks,4)}, {vr(ACC+4*T,4) if ks or rnd else 0}" for ks in range(4)], KGAP0)
    def mm(T): pass
    for g in range(8): put(g, G+2*g, False)
    cmul_multi(a, [(G+2*g, G+2*g, WW) for g in range(8)], TM)
    for g in range(8): put(8+g, G+2*g, False)
    tile(0)
    ev = [0, 2, 4, 6]
    cmul_multi(a, [(G+2*g, G+2*g, WW) for g in ev], TM)
    mm(0)
    for i, g in enumerate(ev): put(i, G+2*g, False)
    cmul_multi(a, [(G+2*g, G+2*g, WW) for g in ev], TM)
    for i, g in enumerate(ev): put(4+i, G+2*g, False)
    for al in range(4):
        cmul_multi(a, [(G, G, WW), (G+8, G+8, WW)], TM)
        put(8+2*al, G, False); put(9+2*al, G+8, False)
    tile(1)
    cmul_multi(a, [(G, G, WW), (W2, WW, WW)], TM)
    mm(1)
    cmul_multi(a, [(G+2, G, WW)], TM)
    put(0, G, False); put(1, G+2, False)
    for k in range(1, 4):
        cmul_multi(a, [(G, G, W2), (G+2, G+2, W2)], TM)
        put(2*k, G, False); put(2*k+1, G+2, False)
    cmul_multi(a, [(G, G, W2)], TM)
    put(8, G, False)
    tile(2)
    mm(2)

def kgen_table(a):
    a("; ---- tap table")
    PK = 98; ACC = K_ACC
    a(f"""s_sub_u32 s{T2}, s{S_W}, 5
s_mul_i32 s{T3}, s{T2}, {TBL_SZ}
s_add_u32 s{T3}, s{T3}, {L_TBL}
v_and_b32 v4, 15, v0
v_lshrrev_b32 v5, 4, v0
v_lshrrev_b32 v6, 1, v5
v_and_b32 v7, 1, v5
v_lshlrev_b32 v8, 8, v6
v_lshl_add_u32 v8, v7, 3, v8
v_lshl_add_u32 v8, v4, 4, v8
v_add_u32 v8, s{T3}, v8
v_lshlrev_b32 v9, 7, v5
v_lshl_add_u32 v9, v4, 3, v9
v_add_u32 v10, 4, v9
v_lshlrev_b32 v11, 7, v7
v_lshl_add_u32 v11, v4, 2, v11
v_add_u32 v11, 256, v11
v_add_u32 v12, 64, v11
v_cmp_lt_u32 vcc, 1, v5
v_lshlrev_b32 v13, 7, v5
v_lshl_add_u32 v13, v4, 1, v13
v_cndmask_b32 v9, v9, v11, vcc
v_cndmask_b32 v10, v10, v12, vcc
v_add_u32 v13, s{T3}, v13
v_add_u32 v9, s{T3}, v9
v_add_u32 v10, s{T3}, v10
v_mov_b32 v2, 0
v_mov_b32 v3, 0
v_mov_b32 v4, s{T3}""")
    a.drain()
    chan_w(a, T0)
    a(f"""s_and_b32 s{T0}, s{T0}, 1
s_lshl_b32 s{T0}, s{T0}, 4
s_lshr_b32 s{S_D0}, s{S_D0}, s{T0}
s_lshl_b32 s{S_D0}, s{S_D0}, 16
s_mov_b64 exec, 1
v_add_f32 v{ACC}, s{S_D0}, v{ACC}
s_mov_b64 exec, -1""")
    for i in range(6): a(f"v_cvt_pk_bf16_f32 v{PK+i}, v{ACC+2*i}, v{ACC+2*i+1}")
    a(f"""ds_write_b64 v4, v[2:3]
ds_write_b64 v8, v[{PK}:{PK+1}] offset:8
ds_write_b32 v9, v{PK+2} offset:{8+512}
ds_write_b32 v10, v{PK+3} offset:{8+512}
ds_write_b16 v13, v{PK+4} offset:{8+1024}
ds_write_b16_d16_hi v13, v{PK+4} offset:{8+1024+32}
ds_write_b16 v13, v{PK+5} offset:{8+1024+64}
ds_write_b16_d16_hi v13, v{PK+5} offset:{8+1024+96}""")

def expand_index(a):
    AD = EXI; E = 60; LF = 66
    a(f"""s_sub_u32 s{T2}, s{S_W}, 4
s_lshl_b32 s{T3}, s{T2}, 9
s_sub_u32 s{T3}, 2048, s{T3}
v_lshlrev_b32 v4, 3, v0
v_sub_u32 v4, s{T3}, v4
v_cvt_f32_u32 v5, v4
s_mov_b32 s{T4}, {hx(L_TBL + 8 - 2*17024)}
s_mov_b32 s{T5}, {L_TBL + 8 + 256}
v_lshlrev_b32 v6, 1, v4
v_add_u32 v6, {L_TBL + 8}, v6""")
    for e in range(12):
        a(f"v_subrev_f32 v{LF+e}, {hx(f2u(float(e)))}, v5")
        if e >= 9: a(f"v_max_f32 v{LF+e}, 0, v{LF+e}")
    for k in range(6): a(f"v_cvt_pk_bf16_f32 v{E+k}, v{LF+2*k}, v{LF+2*k+1}")
    for e in range(12):
        a(f"v_mad_u32_u16 v{AD+e}, v{E+(e>>1)}, 2, s{T4} op_sel:[{e&1},0,0,0]")
        a(f"v_subrev_u32 v{LF+e}, {2*e}, v6")
    for e in range(12): a(f"v_med3_i32 v{AD+e}, v{AD+e}, v{LF+e}, s{T5}")

def expand(a, cfg):
    a("; ---- four shifted copies of the reversed taps")
    AD = EXI; O = 96
    E = lambda c: 60 + 12*c
    a(f"""s_sub_u32 s{T2}, s{S_W}, 4
s_lshl_b32 s{T3}, s{T2}, 10
s_add_u32 s{T3}, s{T3}, {L_CP}
v_add_u32 v4, s{T3}, v1""")
    for c in range(3):
        for e in range(12):
            a(f"ds_read_u16{'_d16_hi' if e & 1 else ''} v{E(c) + 6*(e & 1) + (e >> 1)}, v{AD+e} offset:{c*TBL_SZ}")
    for c in range(3):
        b = E(c)
        if not EXP128: a(f"v_add_u32 v5, {c*CP_CH + 2*CP_C}, v4\nv_add_u32 v6, {c*CP_CH + 3*CP_C}, v4")
        a(f"s_waitcnt lgkmcnt({min(15, 12*(2-c) + (4 if EXP128 else 6)*c)})")
        if not EXP128:
            for k in range(6): a(f"v_or_b32 v{b+k}, v{b+k}, v{b+6+k}")
            for k in range(5): a(f"v_alignbit_b32 v{O+k}, v{b+k+1}, v{b+k}, 16")
            a(f"""ds_write_b128 v4, {vr(b,4)} offset:{c*CP_CH}
ds_write2_b32 v5, v{b+1}, v{b+2} offset0:0 offset1:1
ds_write2_b32 v5, v{b+3}, v{b+4} offset0:2 offset1:3
ds_write_b128 v4, {vr(O,4)} offset:{c*CP_CH + CP_C}
ds_write2_b32 v6, v{O+1}, v{O+2} offset0:0 offset1:1
ds_write2_b32 v6, v{O+3}, v{O+4} offset0:2 offset1:3""")
        else:
            Y = 136; O1 = 140; O3 = 156
            for k in range(4): a(f"v_or_b32 v{Y+k}, v{b+k+1}, v{b+7+k}")
            for k in range(6): a(f"v_or_b32 v{b+k}, v{b+k}, v{b+6+k}")
            a(f"ds_write_b128 v4, {vr(Y,4)} offset:{c*CP_CH + 2*CP_C}")
            for k in range(4): a(f"v_alignbit_b32 v{O1+k}, v{b+k+1}, v{b+k}, 16")
            a(f"ds_write_b128 v4, {vr(b,4)} offset:{c*CP_CH}")
            for k in range(4): a(f"v_alignbit_b32 v{O3+k}, v{b+k+2}, v{b+k+1}, 16")
            a(f"ds_write_b128 v4, {vr(O1,4)} offset:{c*CP_CH + CP_C}\nds_write_b128 v4, {vr(O3,4)} offset:{c*CP_CH + 3*CP_C}")
    a(f"""s_cmp_lg_u32 s{S_W}, 5
s_cbranch_scc1 L_exp_done
v_lshrrev_b32 v5, 3, v0
v_mul_u32_u24 v6, {CP_CH}, v5
v_bfe_u32 v7, v0, 1, 2
v_mul_u32_u24 v7, {CP_C}, v7
v_and_b32 v8, 1, v0
v_lshl_add_u32 v7, v8, 4, v7
v_add_u32 v6, v6, v7
v_add_u32 v6, {L_CP + 4096}, v6
v_mov_b32 v8, 0
v_mov_b32 v9, 0
v_mov_b32 v10, 0
v_mov_b32 v11, 0
v_mul_u32_u24 v12, {TBL_SZ}, v0
v_add_u32 v12, {L_TBL + 8}, v12
v_mul_u32_u24 v13, {CP_CH}, v0
s_mov_b64 exec, 7
ds_read_u16 v12, v12
s_mov_b64 exec, 0xffffff
ds_write_b128 v6, v[8:11]
s_mov_b64 exec, 7
v_add_u32 v13, {L_CP + 4096}, v13
s_waitcnt lgkmcnt(0)
ds_write_b16 v13, v12
s_mov_b64 exec, -1""")
    a.label("L_exp_done")

def q_side(a, cfg):
    a("; ---- waves 0..3: loads, k|v projection, q projection")
    a(f"""s_setprio 2
s_waitcnt lgkmcnt(0)
s_load_dword s{S_NONCE}, s[{P_WS}:{P_WS+1}], {W_NONCE}""")
    srd(a, SA, P_X, 2048*1280)
    crit_loads(a)
    stamp(a, cfg, 0)
    rest_x(a, "lo")
    srd(a, SWS, P_WS, WS_SZ)
    q_addrs(a)
    a(f"s_bitcmp1_b32 s{S_W}, 0\ns_cbranch_scc1 L_q_wa1")
    wq_items(a, 16, 4, True).flush(a)
    a("s_branch L_q_wa2")
    a.label("L_q_wa1")
    wq_items(a, 16, 4, False).flush(a)
    a.label("L_q_wa2")
    stamp(a, cfg, 22)
    conv_addrs(a, False)
    finish_nonce(a)
    a(f"""v_lshrrev_b32 v6, 4, v0
v_lshlrev_b32 v6, 3, v6
v_bfe_u32 v7, v0, 2, 2
v_add_u32 v6, v6, v7
v_mul_u32_u24 v6, 40, v6
v_and_b32 v7, 3, v0
v_lshl_add_u32 v6, v7, 3, v6
s_lshl_b32 s{T0}, s{S_W}, 4
s_add_u32 s{T0}, s{T0}, {L_WK}
v_add_u32 v6, s{T0}, v6
s_bitcmp1_b32 s{S_W}, 0
s_cbranch_scc1 L_q_wb1
s_waitcnt vmcnt(21)
s_branch L_q_wb2""")
    a.label("L_q_wb1")
    a("s_waitcnt vmcnt(19)")
    a.label("L_q_wb2")
    ev_signal(a, EV_CRIT)
    a(f"s_setprio {KVPRIO}")
    stamp(a, cfg, 24)
    a(f"s_bitcmp1_b32 s{S_W}, 0\ns_cbranch_scc1 L_q_odd")
    if KV1: a(f"s_cmp_eq_u32 s{S_W}, 2\ns_cbranch_scc1 L_q_w2")
    ev_wait(a, EV_CRIT, 0x0f)
    stamp(a, cfg, 1)
    kv_proj(a, cfg)
    a(f"s_waitcnt vmcnt({7 + KV1})")
    ev_signal(a, EV_X)
    a("s_branch L_q_tail")
    if KV1:
        a.label("L_q_w2")
        a("s_waitcnt vmcnt(6)")
        ev_signal(a, EV_X)
        a("s_branch L_q_tail")
    a.label("L_q_odd")
    a("s_waitcnt vmcnt(4)")
    ev_signal(a, EV_X)
    if PF2:
        srd(a, SB, P_WQ, 512*1280)
        a(f"""s_mul_i32 s{T0}, s{S_J}, 20480
s_lshr_b32 s{T1}, s{S_W}, 1
s_mul_i32 s{T1}, s{T1}, 10240
s_add_u32 s{T0}, s{T0}, s{T1}""")
        for i in range(10):
            if i in (4, 8): a(f"s_add_u32 s{T0}, s{T0}, 4096")
            a(f"buffer_load_dwordx4 v[204:207], v1, s[{SB}:{SB+3}], s{T0} offen offset:{1024*(i & 3)}")
    a.label("L_q_tail")
    a("s_setprio 0")
    if not TAQ: tail_addrs(a.sub("q"))
    a("; CUT q_main")
    ev_wait(a, EV_X, 0x0f)
    stamp(a, cfg, 2)
    x_frags(a, 0)
    x_frags(a, 1)
    if PF2:
        a(f"s_bitcmp1_b32 s{S_W}, 0\ns_cbranch_scc1 L_q_fr1\ns_waitcnt vmcnt(0) lgkmcnt(0)\ns_branch L_q_fr2")
        a.label("L_q_fr1")
        a("s_waitcnt vmcnt(10) lgkmcnt(0)")
        a.label("L_q_fr2")
    else:
        a("s_waitcnt vmcnt(0) lgkmcnt(0)")
    ev_signal(a, EV_FR)
    a(f"s_cmp_lg_u32 s{S_W}, 0\ns_cbranch_scc1 L_q_nokv0")
    ev_wait(a, EV_FR, 0x0f)
    a(f"""v_lshlrev_b32 v3, 10, v0
s_lshl_b32 s{T0}, s2, 2
s_add_u32 s{T0}, s{T0}, {W_FKV}
s_mov_b64 exec, 0xff
buffer_store_dword v{V_NON}, v3, s[{SWS}:{SWS+3}], s{T0} offen sc1
s_mov_b64 exec, -1
s_branch L_q_go""")
    a.label("L_q_nokv0")
    ev_wait(a, EV_FR, 0x0f)
    a.label("L_q_go")
    a(f"s_setprio {QPRIO}")
    stamp(a, cfg, 26)
    ACC = 200
    RING = [176, 188, 16, 28]
    a(f"s_bitcmp1_b32 s{S_W}, 0\ns_cbranch_scc1 L_q_three")
    for nct in (2, 3):
        if nct == 3: a.label("L_q_three")
        dma = wq_items(a, 0, 16, nct == 2)
        a(f"v_add_u32 v6, 51200, v{A_WQ}")
        for grp, (n0, n1) in enumerate(((0, 4), (4, 12), (12, 20))):
            depth = 1 if grp == 0 else 2
            ring = RING[:2] if grp == 0 else [RING[0], RING[1], 16 if nct == 3 else 16]
            slot = lambda n: ring[(n - n0) % (depth + 1)]
            def reads(n, ct):
                s = ORDER[n]; b = slot(n) + 4*ct
                base, off = (A_WQ, 5120*s) if s < 10 else (6, 5120*(s - 10))
                return [f"ds_read_b64_tr_b16 {vr(b+2*hf,2)}, v{base} offset:{off + 1280*hf + 32*ct}" for hf in range(2)]
            if grp == 1:
                a("s_waitcnt lgkmcnt(0)")
                ev_signal(a, EV_WQA)
                if UDMA:
                    ev_wait(a, EV_WQA, 0x1f)
                    a(f"s_lshl_b32 s{T3}, s{S_W}, 10")
                    for c in range(3):
                        chan(a, T1, c)
                        a(f"""s_lshl_b32 s{T1}, s{T1}, 12
s_add_u32 s{T1}, s{T1}, s{T3}
s_add_u32 m0, s{T3}, {L_UT + 512 + UT_CH*UPOS[c]}
s_add_u32 s{T1}, s{T1}, {W_UT}
buffer_load_dwordx4 v1, s[{SWS}:{SWS+3}], s{T1} offen sc1 lds""")
                dma.flush(a)
                stamp(a, cfg, 3)
                attn_init(a)
                if TAQ: tail_addrs(a.sub(f"q{nct}"))
            if grp >= 1:
                a(f"s_waitcnt vmcnt({(12 if nct == 2 else 8)*(2-grp)})")
                if grp == 2 and nct == 2:
                    a(f"s_cmp_lg_u32 s{S_W}, 2\ns_cbranch_scc1 L_q_kvok")
                    poll(a, "kv", 7, 4, 208 + 12, pre=True)
                    a.label("L_q_kvok")
                ev_signal(a, EV_WQ + grp - 1)
                ev_wait(a, EV_WQ + grp - 1, 0x0f if grp == 1 else 0xff)
                if grp == 1 and nct == 2:
                    a(f"""s_cmp_lg_u32 s{S_W}, 2
s_cbranch_scc1 L_q_nopoll
s_lshl_b32 s{T0}, s{S_XCD}, 10
s_add_u32 s{T0}, s{T0}, {W_FKV}
v_add_u32 v7, s{T0}, v1
buffer_load_dwordx4 v[220:223], v7, s[{SWS}:{SWS+3}], 0 offen sc1""")
                    a.label("L_q_nopoll")
                if grp == 2:
                    a(f"""s_lshl_b32 s{S_DM}, s{S_W}, 10
s_add_u32 s{S_DO}, s{S_DM}, {W_KV}""")
                    dma = Dma([f"s_mov_b32 m0, s{S_DM}\ns_add_u32 s{S_DM}, s{S_DM}, 4096\nbuffer_load_dwordx4 v1, s[{SWS}:{SWS+3}], s{S_DO} offen sc1 lds\ns_add_u32 s{S_DO}, s{S_DO}, 4096"] * 10)
            if grp == 2: stamp(a, cfg, 25)
            for d in range(depth):
                for ct in range(nct):
                    for r in reads(n0 + d, ct): a(r)
            for n in range(n0, n1):
                s = ORDER[n]; b = slot(n)
                for ct in range(nct):
                    after = 2*(nct - 1 - ct)
                    for m in range(n + 1, n + depth):
                        if m < n1: after += 2*nct
                    if n + depth < n1: after += 2*ct
                    a(f"s_waitcnt lgkmcnt({after})")
                    for i in range(2):
                        acc = ACC + 12*i + 4*ct
                        a(f"v_mfma_f32_16x16x32_bf16 {vr(acc,4)}, {vr(b+4*ct,4)}, {vr(xf(i, s),4)}, {vr(acc,4) if n else 0}")
                        if grp == 0 and i == 0 and (n*nct + ct) < G0DMA: dma.pop(a)
                        if grp == 2 and i == 0 and ct < 2: dma.pop(a)
                    if n + depth < n1:
                        for r in reads(n + depth, ct): a(r)
        stamp(a, cfg, 6)
        a(f"s_setprio {Q2PRIO}")
        a("s_nop 7")
        for i in range(2):
            for ct in range(nct):
                acc = ACC + 12*i + 4*ct
                a(f"v_cvt_pk_bf16_f32 v{acc}, v{acc}, v{acc+1}\nv_cvt_pk_bf16_f32 v{acc+1}, v{acc+2}, v{acc+3}")
                a(f"ds_write_b64 v{Q_W}, {vr(acc,2)} offset:{2560*i + 32*ct}")
        if nct == 2: a("s_branch L_q_kv")
    a.label("L_q_kv")
    stamp(a, cfg, 7)
    a("s_waitcnt vmcnt(0) lgkmcnt(0)")
    ev_signal(a, EV_QD)
    if cfg.nonce_update:
        a(f"""s_or_b32 s{T2}, s2, s{S_W}
s_cmp_lg_u32 s{T2}, 0
s_cbranch_scc1 L_q_nn
v_mov_b32 v2, {W_NONCE}
s_mov_b64 exec, 1
buffer_store_dword v{V_NON}, v2, s[{SWS}:{SWS+3}], 0 offen
s_mov_b64 exec, -1""")
        a.label("L_q_nn")
    a("s_setprio 0")
    ev_wait(a, EV_QD, 0x0f)
    q_reads(a)
    attn_first(a, False)

def k_side(a, cfg):
    a("; ---- waves 4..7: taps, u tile, convolution")
    UT2 = [104, 120, 198]
    a(f"""s_setprio {K0PRIO}
s_cmp_eq_u32 s{S_W}, 4
s_cbranch_scc1 L_k_u
s_waitcnt lgkmcnt(0)
s_load_dword s{S_NONCE}, s[{P_WS}:{P_WS+1}], {W_NONCE}""")
    kgen_loads(a)
    a(f"s_load_dword s{S_D0}, s[{P_DSK}:{P_DSK+1}], s{T3}\ns_setprio {KAPRIO}")
    if PF3:
        a(f"s_cmp_lg_u32 s{S_W}, {PF3}\ns_cbranch_scc1 L_k_nopf3")
        srd(a, SB, P_WQ, 512*1280)
        a(f"s_mul_i32 s{T0}, s2, 2560")
        for i in range(3):
            if i == 2: a("s_mov_b32 exec_hi, 0")
            a(f"buffer_load_dwordx4 v[204:207], v1, s[{SB}:{SB+3}], s{T0} offen offset:{1024*i}")
        a("s_mov_b32 exec_hi, -1")
        a.label("L_k_nopf3")
    if PF:
        srd(a, SB, P_WQ, 512*1280)
        a(f"""s_mul_i32 s{T0}, s{S_J}, 20480
s_sub_u32 s{T1}, s{S_W}, 5
s_mul_i32 s{T1}, s{T1}, 7168
s_add_u32 s{T0}, s{T0}, s{T1}
s_add_u32 s{T1}, s{T0}, 4096""")
        for i in range(7):
            a(f"buffer_load_dwordx4 v[200:203], v1, s[{SB}:{SB+3}], s{T0 if i < 4 else T1} offen offset:{1024*(i & 3)}")
    a.label("L_k_nopf")
    srd(a, SWS, P_WS, WS_SZ)
    a("s_call_b64 s[92:93], L_sub_kaddr")
    stamp(a, cfg, 22)
    kgen_pre(a)
    a("; CUT k_gen")
    a(f"s_setprio {KPRIO}\ns_waitcnt vmcnt({7 if PF else 0})")
    stamp(a, cfg, 24)
    sp = Spread(a, KGAP)
    kgen_round(sp, 0)
    if not cfg.few: stamp(a, cfg, 1)
    kgen_round(sp, 1)
    kgen_table(sp)
    a("s_branch L_k_done")
    a("; CUT u_early")
    a.label("L_k_u")
    for i in range(5): div10_offsets(a, 8+i, None, 64*i, 2, False)
    a(f"s_waitcnt lgkmcnt(0)\ns_load_dword s{S_NONCE}, s[{P_WS}:{P_WS+1}], {W_NONCE}")
    srd(a, SB, P_U, 2048*1280)
    a(f"""s_mul_i32 s{T2}, s{S_J}, {64*1280}
s_mul_i32 s{T3}, s{S_XCD}, 160
s_add_u32 s{T2}, s{T2}, s{T3}
s_add_u32 s{T3}, s{T2}, 40960
s_mov_b32 m0, {L_UST}
s_nop 0""")
    for i in range(10):
        a(f"buffer_load_dwordx4 v{8+i%5}, s[{SB}:{SB+3}], s{T2 if i < 5 else T3} offen {UNT} lds")
        if i < 9: a(f"s_add_u32 m0, m0, 1024\ns_nop 0")
    srd(a, SWS, P_WS, WS_SZ)
    stamp(a, cfg, 22)
    a(f"""s_lshl_b32 s{T0}, s{S_W}, 2
s_add_u32 s{T0}, s{T0}, {L_EV}
v_mov_b32 v{E_W}, s{T0}
v_and_b32 v2, 3, v0
v_lshrrev_b32 v3, 4, v0
v_lshl_add_u32 v2, v3, 2, v2
v_and_b32 v3, 7, v2
v_lshrrev_b32 v4, 3, v2
v_bfe_u32 v5, v0, 2, 2
v_lshl_add_u32 v5, v3, 3, v5
v_mul_u32_u24 v5, 160, v5
v_lshl_add_u32 v5, v4, 3, v5
v_add_u32 v5, {L_UST}, v5
v_and_b32 v2, 3, v0
v_lshl_add_u32 v6, v4, 2, v2
v_bfe_u32 v3, v0, 2, 3
v_xor_b32 v7, v3, v6
v_lshlrev_b32 v6, 7, v6
v_lshl_add_u32 v6, v7, 4, v6
v_add_u32 v6, {L_UST}, v6
v_lshrrev_b32 v7, 3, v0
v_and_b32 v3, 7, v0
v_xor_b32 v3, v3, v7
v_lshlrev_b32 v7, 12, v7
v_lshl_add_u32 v7, v3, 4, v7
v_add_u32 v8, {L_UST}, v1
s_mul_i32 s{T2}, s{S_XCD}, {80*4096}
s_lshl_b32 s{T3}, s{S_J}, 7
s_add_u32 s{T2}, s{T2}, s{T3}
s_add_u32 s{T2}, s{T2}, {W_UT}""")
    finish_nonce(a)
    a("s_waitcnt vmcnt(0)")
    stamp(a, cfg, 24)
    UR = 60
    for i in range(10):
        for hf in range(2):
            a(f"ds_read_b64_tr_b16 {vr(UR+4*i+2*hf,2)}, v5 offset:{16*i + 640*hf}")
    a("s_waitcnt lgkmcnt(0)")
    for i in range(10): a(f"ds_write_b128 v6, {vr(UR+4*i,4)} offset:{1024*i}")
    for i in range(10): a(f"ds_read_b128 {vr(UR+40+4*i,4)}, v8 offset:{1024*i}")
    for k in range(10):
        a(f"s_waitcnt lgkmcnt({9-k})\nbuffer_store_dwordx4 {vr(UR+40+4*k,4)}, v7, s[{SWS}:{SWS+3}], s{T2} offen sc1\ns_add_u32 s{T2}, s{T2}, 32768")
    ev_signal(a, EV_TBL)
    stamp(a, cfg, 1)
    a(f"""s_lshl_b32 s{T0}, s{S_XCD}, 8
s_lshl_b32 s{T2}, s{S_J}, 2
s_add_u32 s{T0}, s{T0}, s{T2}
s_add_u32 s{T0}, s{T0}, {W_FU}
v_mov_b32 v7, 0
s_waitcnt vmcnt(0)
s_mov_b64 exec, 1
buffer_store_dword v{V_NON}, v7, s[{SWS}:{SWS+3}], s{T0} offen sc1
s_mov_b64 exec, -1
s_setprio 0""")
    a("; CUT u_main")
    a("s_call_b64 s[92:93], L_sub_kaddr")
    ev_wait(a, UEV, UMASK)
    a(f"""s_lshl_b32 s{T0}, s{S_XCD}, 8
s_add_u32 s{T0}, s{T0}, {W_FU}
v_lshl_add_u32 v3, v0, 2, s{T0}""")
    poll(a, "u", 3, 1, 4, lanes=32, sleep=USLEEP)
    stamp(a, cfg, 5)
    if UDMA: ev_signal(a, EV_WQA)
    for c in range(0 if UDMA else 3):
        chan(a, T0, c)
        a(f"s_lshl_b32 s{T0}, s{T0}, 12\ns_add_u32 s{T0}, s{T0}, {W_UT}")
        for i in range(4):
            a(f"buffer_load_dwordx4 {vr(UT2[c]+4*i,4)}, v1, s[{SWS}:{SWS+3}], s{T0} offen offset:{1024*i} sc1")
    a(f"s_setprio {KPRIO}\ns_branch L_k_exp")
    a.label("L_k_done")
    a("s_waitcnt lgkmcnt(0)")
    ev_signal(a, EV_TBL)
    stamp(a, cfg, 2)
    a.label("L_k_exp")
    ev_wait(a, EV_TBL, 0xf1 if KV1 else 0xf5)
    stamp(a, cfg, 26)
    expand(a, cfg)
    a("s_waitcnt lgkmcnt(0)")
    ev_signal(a, EV_WQ + 1)
    stamp(a, cfg, 3)
    a(f"s_cmp_eq_u32 s{S_W}, 5\ns_cbranch_scc1 L_k_c0\ns_cmp_eq_u32 s{S_W}, 6\ns_cbranch_scc1 L_k_c0")
    ev_wait(a, EV_WQA, 0x0f)
    a(f"s_cmp_eq_u32 s{S_W}, 4\ns_cbranch_scc1 {'L_k_c0' if UDMA else 'L_k_ut'}")
    a(f"""v_lshlrev_b32 v2, 3, v0
v_add_u32 v2, {L_UT}, v2
v_mov_b32 v4, 0
v_mov_b32 v5, 0""")
    for c in range(3): a(f"ds_write_b64 v2, v[4:5] offset:{UT_CH*c}")
    a("s_branch L_k_c0")
    a.label("L_k_ut")
    if not UDMA: a(f"v_add_u32 v2, {L_UT + 512}, v1\ns_waitcnt vmcnt(0)")
    for c in range(0 if UDMA else 3):
        for i in range(4): a(f"ds_write_b128 v2, {vr(UT2[c]+4*i,4)} offset:{UT_CH*UPOS[c] + 1024*i}")
    a.label("L_k_c0")
    a("s_waitcnt lgkmcnt(0)")
    ev_signal(a, EV_C0)
    if UDMA: ev_wait(a, EV_WQ, 0x0f)
    ev_wait(a, EV_C0, 0xf0)
    stamp(a, cfg, 9)
    a(f"s_setprio {CPRIO}")
    conv(a, cfg)
    ev_wait(a, EV_QD, 0x0f, 5)
    ev_signal(a, EV_C2, 5)
    q_reads(a)
    attn_first(a, False)
    ev_wait(a, EV_C2, 0xf0, 5)
    stamp(a, cfg, 28)
    y_epilogue(a, cfg)
    a("s_setprio 3")

def k_addrs(a):
    a("; ---- lane addresses of waves 4..7")
    a.label("L_sub_kaddr")
    expand_index(a)
    typed_offset(a)
    conv_addrs(a, True)
    tail_addrs(a.sub("k"))
    attn_init(a)
    finish_nonce(a.sub("k"), False)
    a("s_setpc_b64 s[92:93]")

def q_reads(a):
    a(f"""ds_read2_b64 {vr(AR.QA,4)}, v{Q_R} offset0:0 offset1:1
ds_read2_b64 {vr(AR.QB,4)}, v{Q_R} offset0:10 offset1:11
ds_read_b64 {vr(AR.Q4,2)}, v{Q_R4} offset:32""")
    attn_clear(a)

def join(a, cfg):
    a.label("L_join")
    srd(a, SOUT, P_OUT, 2048*1280*2)
    stamp(a, cfg, 11)

class AR: pass
AR.S = [8, 40]; AR.CZ = 72; AR.OA = 104; AR.OB = 120
AR.K16 = 136; AR.K4 = 140; AR.V0 = 144; AR.V1 = 148
AR.IDX = 152; AR.aK16 = 153; AR.aK4 = 154; AR.aV = 155
AR.QA = 156; AR.QB = 160; AR.Q4 = 164

def attn_init(a):
    R = AR
    a(f"""s_mul_i32 s{T0}, s{S_KH}, {BLK}
v_add_u32 v{R.aK16}, s{T0}, v1
v_lshl_add_u32 v{R.aK4}, v0, 3, s{T0}
v_and_b32 v2, 31, v0
v_lshrrev_b32 v3, 5, v0
v_mul_u32_u24 v3, 320, v3
v_lshl_add_u32 v2, v2, 4, v3
v_add_u32 v{R.aV}, s{T0}, v2
v_mov_b32 v{R.IDX}, 0xdddd""")
    for i in range(8): a(f"v_mov_b32 v{R.V0+i}, 0")
    a(f"s_mov_b32 exec_lo, 0x00100000\ns_mov_b32 exec_hi, 0x00100000")
    for i in range(8): a(f"v_mov_b32 v{R.V0+i}, 0x3f803f80")
    a("s_mov_b64 exec, -1")

def attn_clear(a):
    R = AR
    for i in range(8): a(f"v_mov_b32 v{R.S[1]+24+i}, 0")
    a(f"""s_nop 0
v_mfma_f32_32x32x16_bf16 {vr(R.OA,16)}, {vr(R.S[1]+24,4)}, {vr(R.S[1]+24,4)}, 0
v_mfma_f32_32x32x16_bf16 {vr(R.OB,16)}, {vr(R.S[1]+24,4)}, {vr(R.S[1]+24,4)}, 0""")

class Dma:
    def __init__(s, items): s.items = list(items)
    def pop(s, a, n=1):
        for _ in range(n):
            if s.items: a(s.items.pop(0))
    def flush(s, a): s.pop(a, len(s.items))

S_DM = 90; S_DO = 91
def kv_dma_items(a, first, n):
    a(f"""s_lshl_b32 s{S_DM}, s{S_W}, 10
s_add_u32 s{S_DM}, s{S_DM}, {first*1024}
s_add_u32 s{S_DO}, s{S_DM}, {W_KV}""")
    return Dma([f"s_mov_b32 m0, s{S_DM}\ns_add_u32 s{S_DM}, s{S_DM}, 8192\nbuffer_load_dwordx4 v1, s[{SWS}:{SWS+3}], s{S_DO} offen sc1 lds\ns_add_u32 s{S_DO}, s{S_DO}, 8192"] * n)

TILES = ([0, 2, 5, 7], [1, 3, 4, 6])
def conv(a, cfg):
    a("; ---- Toeplitz convolution: residue tasks")
    ACC = [8, 40]; FA = [72, 160]; FB = [104, 192]
    def reads(task, i):
        st = task & 1
        va, vb, d = (C_A, C_B, 192 - 64*task) if task < 4 else (C_A2, C_B2, 192 - 64*(task - 4))
        return [f"ds_read_b128 {vr(FB[st]+4*i,4)}, v{vb} offset:{512*i + d}",
                f"ds_read_b64 {vr(FA[st]+4*i,2)}, v{va} offset:{512*(7-i) + d}",
                f"ds_read_b64 {vr(FA[st]+4*i+2,2)}, v{va} offset:{512*(7-i) + 8 + d}"]
    def run(task, pend, tiles, nxt, extra=None):
        st = task & 1; acc = ACC[task >= 4]
        queue = [(r, task) for r in pend] + ([(r, task+1) for i in range(8) for r in reads(task+1, i)] if nxt else [])
        issued_own = 24 - len(pend); issued_next = 0
        total = sum(i + 1 for i in tiles); nm = 0
        for i in tiles:
            while issued_own < 3*(i+1):
                a(queue.pop(0)[0]); issued_own += 1
            if extra is None: a(f"s_waitcnt lgkmcnt({min(15, issued_own - 3*(i+1) + issued_next)})")
            for j in range(i + 1):
                c = "0" if task in (0, 4) and j == 0 else vr(acc+4*i, 4)
                a(f"v_mfma_f32_16x16x32_bf16 {vr(acc+4*i,4)}, {vr(FA[st]+4*j,4)}, {vr(FB[st]+4*(i-j),4)}, {c}")
                nm += 1
                if extra and nm % 2 == 0: extra.pop(a)
                for rep in range(1 if total > 30 else 2):
                    if queue and (queue[0][1] == task or total - nm < 30):
                        if issued_own + issued_next - 3*(i+1) < 14 or queue[0][1] != task:
                            r, t = queue.pop(0); a(r)
                            if t == task: issued_own += 1
                            else: issued_next += 1
        return [r for r, t in queue]
    allr = [r for i in range(8) for r in reads(0, i)]
    for r in allr[:15]: a(r)
    pend = allr[15:]
    for task in range(4): pend = run(task, pend, range(8), True)
    assert not pend
    a(f"""s_sub_u32 s{T0}, s{S_W}, 4
s_lshl_b32 s{T1}, s{T0}, 13
s_add_u32 s{T1}, s{T1}, {L_P32}
s_lshl_b32 s{T0}, s{T0}, 12
s_add_u32 s{T0}, s{T0}, {L_P16}
v_add_u32 v3, s{T1}, v{C_PW}
v_add_u32 v4, s{T0}, v{C_PW}
v_mov_b32 v5, s{S_NONCE}""")
    ev_signal(a, EV_C1, 5)
    a(f"s_bitcmp1_b32 s{S_J}, 0\ns_cbranch_scc1 L_conv_odd")
    for par in range(2):
        if par: a.label("L_conv_odd")
        p = run(4, [], TILES[par], True)
        assert not p
        ev_wait(a, EV_C1, 0xf0, 5)
        wr = Dma([f"ds_write_b128 v3, {vr(ACC[0]+4*i,4)} offset:{1024*i}" for i in range(8)])
        run(5, [], TILES[par], False, wr)
        wr.flush(a)
        if par == 0: stamp(a, cfg, 10)
        a("s_nop 7")
        for n, i in enumerate(TILES[par]): a(f"ds_write_b128 v4, {vr(ACC[1]+4*i,4)} offset:{1024*n}")
        if par == 0: a("s_branch L_conv_done")
    a.label("L_conv_done")

def y_epilogue(a, cfg):
    a("; ---- convolution epilogue")
    hi = [sum((TILES[p][k] & 1) << k for k in range(4)) for p in range(2)]
    a(f"""s_sub_u32 s{T3}, s{S_W}, 4
s_lshl_b32 s{T0}, s{T3}, 11
s_add_u32 s{T0}, s{T0}, {L_P32}
v_add_u32 v2, s{T0}, v{C_PR}
s_lshl_b32 s{T0}, s{T3}, 10
s_add_u32 s{T0}, s{T0}, {L_P16}
v_add_u32 v3, s{T0}, v{C_PR}""")
    B = lambda t, c: [[72, 80], [88, 96]][t][c]
    for t in range(2):
        for c in range(2):
            for n in range(2): a(f"ds_read_b128 {vr(B(t, c)+4*n,4)}, v2 offset:{8192*(2*c+n) + 1024*t}")
    b2 = 166
    for n in range(4): a(f"ds_read_b128 {vr(b2+4*n,4)}, v3 offset:{4096*n}")
    a(f"""s_lshl_b32 s{T1}, s{S_CH0}, 12
s_add_u32 s{T1}, s{T1}, {W_YT}
s_add_u32 s{T2}, s{T1}, 4096
s_mov_b32 s{T5}, {hi[0]}
s_bitcmp1_b32 s{S_J}, 0
s_cselect_b32 s{T5}, {hi[1]}, s{T5}
s_lshr_b32 s{T5}, s{T5}, s{T3}
s_and_b32 s{T5}, s{T5}, 1
s_lshl_b32 s{T5}, s{T5}, 9
s_lshl_b32 s{T4}, s{S_CH2}, 12
s_add_u32 s{T4}, s{T4}, s{T5}
s_add_u32 s{T4}, s{T4}, {W_YT}""")
    left = 12
    for t in range(2):
        for c in range(2):
            b = B(t, c); left -= 2
            a(f"s_waitcnt lgkmcnt({left})")
            for j in range(4): a(f"v_add_f32 v{b+j}, v{b+j}, v{b+4+j}")
            a(f"""v_cvt_pk_bf16_f32 v{b+4}, v{b}, v{b+1}
v_cvt_pk_bf16_f32 v{b+5}, v{b+2}, v{b+3}
buffer_store_dwordx2 {vr(b+4,2)}, v{C_UG}, s[{SWS}:{SWS+3}], s{(T1, T2)[c]} offen offset:{512*t} sc1""")
    b = b2
    a("s_waitcnt lgkmcnt(0)")
    for j in range(4): a(f"v_add_f32 v{b+j}, v{b+j}, v{b+4+j}\nv_add_f32 v{b+8+j}, v{b+8+j}, v{b+12+j}")
    for j in range(4): a(f"v_add_f32 v{b+j}, v{b+j}, v{b+8+j}")
    a(f"""v_cvt_pk_bf16_f32 v{b+4}, v{b}, v{b+1}
v_cvt_pk_bf16_f32 v{b+5}, v{b+2}, v{b+3}
buffer_store_dwordx2 {vr(b+4,2)}, v{C_UG}, s[{SWS}:{SWS+3}], s{T4} offen sc1""")

def tail_addrs(a):
    w_tr_addr(a, A_W, 4)
    a(f"""v_and_b32 v4, 3, v0
v_lshrrev_b32 v5, 4, v0
v_lshl_add_u32 v4, v5, 2, v4
v_lshrrev_b32 v5, 1, v4
v_lshlrev_b32 v5, 3, v5
v_bfe_u32 v{A_YR}, v0, 2, 2
v_add_u32 v5, v5, v{A_YR}
v_lshlrev_b32 v5, 7, v5
v_and_b32 v4, 1, v4
v_lshl_add_u32 v5, v4, 3, v5
s_lshl_b32 s{T0}, s{S_W}, 4
s_add_u32 s{T0}, s{T0}, {L_YT}
v_add_u32 v{A_YR}, s{T0}, v5
v_lshrrev_b32 v4, 2, v0
v_and_b32 v5, 1, v4
v_and_b32 v{A_YW}, 3, v0
v_lshl_add_u32 v5, v5, 2, v{A_YW}
v_mul_u32_u24 v5, 160, v5
v_lshrrev_b32 v4, 1, v4
v_lshl_add_u32 v5, v4, 4, v5
s_mul_i32 s{T0}, s{S_W}, 1280
s_add_u32 s{T0}, s{T0}, {L_YS}
v_add_u32 v{A_YW}, s{T0}, v5
v_add_u32 v{A_YB}, s{T0}, v1""")
    for d, add in ((A_YG0, 0), (A_YG1, 64)):
        a(f"""v_add_u32 v4, {add}, v0
v_mul_u32_u24 v5, 6554, v4
v_lshrrev_b32 v5, 16, v5
v_mul_u32_u24 v{d}, 10, v5
v_sub_u32 v4, v4, v{d}
v_mul_u32_u24 v5, 2560, v5
v_lshl_add_u32 v{d}, v4, 4, v5""")
    a(f"""s_mul_i32 s{T0}, s{S_W}, {OT_SZ}
s_add_u32 s{T0}, s{T0}, {L_OT}
v_and_b32 v4, 15, v0
v_mul_u32_u24 v4, 80, v4
v_bfe_u32 v5, v0, 4, 1
v_mul_u32_u24 v5, 40, v5
v_add3_u32 v5, v4, v5, s{T0}
v_lshrrev_b32 v{A_OW}, 5, v0
v_lshl_add_u32 v{A_OW}, v{A_OW}, 3, v5
v_lshrrev_b32 v5, 4, v0
v_lshl_add_u32 v4, v5, 4, v4
v_add_u32 v{A_OB}, s{T0}, v4
s_lshl_b32 s{T0}, s{S_HG}, 1
s_add_u32 s{T0}, s{T0}, s{S_KH}
s_mul_i32 s{T0}, s{T0}, 1280
s_lshl_b32 s{T2}, s{S_RB}, 2
s_add_u32 s{T2}, s{T2}, s{S_RT}
s_mul_i32 s{T2}, s{T2}, 20480
s_add_u32 s{T0}, s{T0}, s{T2}
s_add_u32 s{T0}, s{T0}, {W_O}
v_add_u32 v{A_OG}, s{T0}, v1
s_mul_i32 s{T0}, s{S_W}, 3072
s_add_u32 s{T0}, s{T0}, {L_XCH}
v_add_u32 v{A_XW}, s{T0}, v1
s_xor_b32 s{T0}, s{S_W}, 4
s_mul_i32 s{T0}, s{T0}, 3072
s_add_u32 s{T0}, s{T0}, {L_XCH}
v_add_u32 v{A_XR}, s{T0}, v1
v_lshrrev_b32 v4, 3, v0
v_lshlrev_b32 v4, 12, v4
v_and_b32 v5, 7, v0
v_lshl_add_u32 v{A_YD}, v5, 4, v4
s_lshl_b32 s{T0}, s{S_RB}, 8
s_add_u32 s{T0}, s{T0}, {W_FO}
v_lshl_add_u32 v{A_FO}, v0, 2, s{T0}
s_mul_i32 s{T0}, s{S_W}, {OT_SZ}
s_add_u32 s{T0}, s{T0}, {L_OT}
v_and_b32 v4, 15, v0
s_mul_i32 s{T3}, s{S_KH}, 32
s_sub_u32 s{T3}, 96, s{T3}
v_mul_u32_u24 v4, s{T3}, v4
v_lshrrev_b32 v5, 4, v0
v_lshl_add_u32 v4, v5, 3, v4
v_add_u32 v{A_PW}, s{T0}, v4
s_cmp_eq_u32 s{S_KH}, 0
s_cbranch_scc0 L_ta_hi
v_mul_u32_u24 v4, 10923, v0
v_lshrrev_b32 v4, 16, v4
v_mul_u32_u24 v5, 6, v4
v_sub_u32 v5, v0, v5
v_mul_u32_u24 v4, 2560, v4
v_lshl_add_u32 v{A_PG0}, v5, 4, v4
v_add_u32 v5, 64, v0
v_mul_u32_u24 v4, 10923, v5
v_lshrrev_b32 v4, 16, v4
v_mul_u32_u24 v{A_PG1}, 6, v4
v_sub_u32 v5, v5, v{A_PG1}
v_mul_u32_u24 v4, 2560, v4
v_lshl_add_u32 v{A_PG1}, v5, 4, v4
s_branch L_ta_done""")
    a.label("L_ta_hi")
    a(f"""v_lshrrev_b32 v4, 2, v0
v_mul_u32_u24 v4, 2560, v4
v_and_b32 v5, 3, v0
v_lshl_add_u32 v4, v5, 4, v4
v_add_u32 v{A_PG0}, 96, v4
v_mov_b32 v{A_PG1}, 0""")
    a.label("L_ta_done")

def attn_half(a, cur, par, oK16, oV0, oV1, oK4, cz, extra=None):
    R = AR; S = R.S[cur]; N = R.S[1-cur]
    e = lambda k: a(f"v_exp_f32 v{S+k}, v{S+k} ; PHYS")
    x = extra if extra else (lambda: None)
    def vread(dst, off):
        a(f"s_mov_b64 exec, s[{VM}:{VM+1}]\nds_read_b128 {vr(dst,4)}, v{R.aV} offset:{off}\ns_mov_b64 exec, -1")
    a("s_waitcnt lgkmcnt(1)")
    a(f"v_mfma_f32_32x32x16_bf16 {vr(N,16)}, {vr(R.K16,4)}, {vr(R.QA,4)}, {vr(R.CZ,16) if cz else 0}")
    for k in range(0, 4): e(k)
    a(f"v_smfmac_f32_32x32x32_bf16 {vr(R.OB,16)}, {vr(R.V1,4)}, {vr(N+24,8)}, v{R.IDX}")
    vread(R.V1, oV1)
    for k in range(4, 8): e(k)
    a(f"v_mfma_f32_32x32x16_bf16 {vr(N+16,16)}, {vr(R.K16,4)}, {vr(R.QB,4)}, {vr(R.CZ+16,16) if cz else 0}")
    a(f"ds_read_b128 {vr(R.K16,4)}, v{R.aK16} offset:{oK16}")
    for k in range(8, 12): e(k)
    a("s_waitcnt lgkmcnt(2)")
    a(f"v_smfmac_f32_32x32x32_bf16 {vr(R.OA,16)}, {vr(R.V0,4)}, {vr(S,8)}, v{R.IDX}")
    x()
    for k in range(12, 16): e(k)
    a(f"v_mfma_f32_32x32x4bf16_1k {vr(N,32)}, {vr(R.K4,2)}, {vr(R.Q4,2)}, {vr(N,32)} cbsz:1 abid:{1-par} ; PHYS")
    if oK4 is not None: a(f"ds_read_b64 {vr(R.K4,2)}, v{R.aK4} offset:{oK4}")
    for k in range(16, 20): e(k)
    x()
    for k in range(20, 24): e(k)
    a(f"s_waitcnt lgkmcnt({1 + (oK4 is not None)})")
    a(f"v_smfmac_f32_32x32x32_bf16 {vr(R.OA,16)}, {vr(R.V1,4)}, {vr(S+8,8)}, v{R.IDX}")
    for k in range(24, 28): e(k)
    a(f"v_smfmac_f32_32x32x32_bf16 {vr(R.OB,16)}, {vr(R.V0,4)}, {vr(S+16,8)}, v{R.IDX}")
    vread(R.V0, oV0)
    x()
    for k in range(28, 32): e(k)

def attn_first(a, cz):
    R = AR
    a(f"""ds_read_b128 {vr(R.K16,4)}, v{R.aK16}
ds_read_b64 {vr(R.K4,2)}, v{R.aK4} offset:2048
s_waitcnt lgkmcnt(0)
v_mfma_f32_32x32x16_bf16 {vr(R.S[0],16)}, {vr(R.K16,4)}, {vr(R.QA,4)}, {vr(R.CZ,16) if cz else 0}
v_mfma_f32_32x32x16_bf16 {vr(R.S[0]+16,16)}, {vr(R.K16,4)}, {vr(R.QB,4)}, {vr(R.CZ+16,16) if cz else 0}
ds_read_b128 {vr(R.K16,4)}, v{R.aK16} offset:1024
s_mov_b64 exec, s[{VM}:{VM+1}]
ds_read_b128 {vr(R.V0,4)}, v{R.aV} offset:2560
s_mov_b64 exec, -1
s_nop 7
v_mfma_f32_32x32x4bf16_1k {vr(R.S[0],32)}, {vr(R.K4,2)}, {vr(R.Q4,2)}, {vr(R.S[0],32)} cbsz:1 abid:0
s_nop 15
s_nop 2""")

def attn_body(a, cz, extra=None, prio=True, mid=None):
    R = AR; ST = 2*BLK
    for b in range(4):
        if b == 3 and mid: mid()
        base = b*ST; nxt = base + ST
        if prio is True: a(f"s_setprio {3-b}")
        elif prio and prio[b] is not None: a(f"s_setprio {prio[b]}")
        attn_half(a, 0, 0, nxt, base + 2560 + 1280, base + 2560 + 640, nxt + 2048, cz, extra)
        attn_half(a, 1, 1, nxt + 1024, nxt + 2560, base + 2560 + 1920, None, cz, extra)
    a(f"""v_add_u32 v{R.aK16}, {4*ST}, v{R.aK16}
v_add_u32 v{R.aK4}, {4*ST}, v{R.aK4}
v_add_u32 v{R.aV}, {4*ST}, v{R.aV}""")

def attention(a, cfg):
    a("; ---- attention main loop (4 x 4 blocks of 64 keys per wave)")
    R = AR
    dma = kv_dma_items(a, 40, 5)
    stamp(a, cfg, 12)
    mid0 = lambda: a(f"""s_lshl_b32 s{T0}, s{S_XCD}, 10
s_lshl_b32 s{T1}, s{S_J}, 5
s_add_u32 s{T0}, s{T0}, s{T1}
s_lshl_b32 s{T1}, s{S_W}, 2
s_add_u32 s{T0}, s{T0}, s{T1}
s_add_u32 s{T0}, s{T0}, {W_FY}
v_mov_b32 v2, s{S_NONCE}
v_mov_b32 v3, 0
s_waitcnt vmcnt(0)
s_mov_b64 exec, 1
buffer_store_dword v2, v3, s[{SWS}:{SWS+3}], s{T0} offen sc1
s_mov_b64 exec, -1
s_barrier""")
    attn_body(a, False, lambda: dma.pop(a), mid=mid0, prio=PRI[PSCH][0])
    stamp(a, cfg, 4)
    dma = kv_dma_items(a, 80, 10)
    cb = [0]
    def slotb():
        cb[0] += 1
        if BDM == 1 or cb[0] % 3 != 0: dma.pop(a)
    if BDM == 3: dma.flush(a)
    attn_body(a, False, slotb, mid=lambda: a("s_waitcnt vmcnt(0)\ns_barrier"), prio=PRI[PSCH][1])
    stamp(a, cfg, 16)
    def mid2():
        a(f"""s_cmp_lg_u32 s{S_W}, 7
s_cbranch_scc1 L_attn_nosample
s_lshl_b32 s{T0}, s{S_XCD}, 10
s_add_u32 s{T0}, s{T0}, {W_FY}
v_add_u32 v2, s{T0}, v1
buffer_load_dwordx4 v[4:7], v2, s[{SWS}:{SWS+3}], 0 offen sc1""")
        a.label("L_attn_nosample")
    attn_body(a, False, mid=mid2, prio=PRI[PSCH][2])
    a(f"""s_cmp_lg_u32 s{S_W}, 7
s_cbranch_scc1 L_attn_nopoll
s_waitcnt vmcnt(0)""")
    poll(a, "y", 2, 4, 4, pre=True)
    a.label("L_attn_nopoll")
    stamp(a, cfg, 23)
    a("s_barrier")
    stamp(a, cfg, 30)
    a.label("L_tail_dma")
    tail_dma_body(a, cfg)

def tail_dma_items(a, tag):
    srd(a, SA, P_WO, 640*1280)
    a(f"""s_mul_i32 s{S_DO}, s{S_HG}, 160
s_lshl_b32 s{S_DM}, s{S_W}, 10""")
    n = [0]
    def item():
        n[0] += 1
        return f"""s_cmp_ge_u32 s{S_W}, 5
s_cbranch_scc1 L_tds{tag}_{n[0]}
s_mov_b32 m0, s{S_DM}
s_add_u32 s{S_DM}, s{S_DM}, 5120
buffer_load_dwordx4 v{WT}, s[{SA}:{SA+3}], s{S_DO} offen {WOF} lds
s_add_u32 s{S_DO}, s{S_DO}, 40960
L_tds{tag}_{n[0]}:"""
    return Dma([item() for _ in range(20)])

def y_dma(a):
    a(f"""s_cmp_lt_u32 s{S_W}, 5
s_cbranch_scc1 L_yd_done
s_sub_u32 s{T2}, s{S_W}, 5
s_mul_i32 s{T3}, s{S_XCD}, {80*4096}
s_lshl_b32 s{T4}, s{S_J}, 7
s_add_u32 s{T3}, s{T3}, s{T4}
s_lshl_b32 s{T4}, s{T2}, 15
s_add_u32 s{T3}, s{T3}, s{T4}
s_lshl_b32 s{T4}, s{T2}, 10
s_add_u32 m0, s{T4}, {L_YT}
s_add_u32 s{T3}, s{T3}, {W_YT}""")
    for i in range(4):
        if i == 3: a(f"s_cmp_lg_u32 s{S_W}, 5\ns_cbranch_scc1 L_yd_done")
        a(f"buffer_load_dwordx4 v{A_YD}, s[{SWS}:{SWS+3}], s{T3} offen sc1 lds")
        if i < 3: a(f"s_add_u32 m0, m0, 3072\ns_add_u32 s{T3}, s{T3}, {3*32768}")
    a.label("L_yd_done")

def tail_dma_body(a, cfg):
    R = AR
    if YEARLY: y_dma(a)
    dma = tail_dma_items(a, "m")
    cnt = [0]
    def slot():
        cnt[0] += 1
        if TDM == 0: return
        if TDM == 1 or cnt[0] % 3 != 0: dma.pop(a)
    attn_body(a, False, slot, prio=PRI[PSCH][3])
    dma.flush(a)
    a(f"v_smfmac_f32_32x32x32_bf16 {vr(R.OB,16)}, {vr(R.V1,4)}, {vr(R.S[1]+24,8)}, v{R.IDX}\ns_setprio 0")

def o_finish(a, cfg):
    a("; ---- pair exchange, normalisation, range check of the row sums, publish o")
    R = AR
    X = 8; Y = 24; Z = 32
    a.label("L_ofin")
    stamp(a, cfg, 13)
    a(f"""v_mov_b32 v4, {L_DEC}
v_mov_b32 v5, 0
s_mov_b32 s{T0}, {hx(f2u(2.0**-40))}
s_mov_b32 s{T1}, {hx(f2u(2.0**40))}
s_waitcnt vmcnt(0) lgkmcnt(0)
s_nop 4
s_barrier""")
    stamp(a, cfg, 29)
    a(f"ds_write_b32 v4, v5\ns_cmp_eq_u32 s{S_KH}, 0\ns_cbranch_scc0 L_ox_hi")
    for kh in range(2):
        if kh: a.label("L_ox_hi")
        send, keep = (R.OB, R.OA) if kh == 0 else (R.OA, R.OB)
        for q in range(3): a(f"ds_write_b128 v{A_XW}, {vr(send+4*q,4)} offset:{1024*q}")
        a("s_waitcnt lgkmcnt(0)\ns_barrier")
        for q in (2, 0, 1): a(f"ds_read_b128 {vr(X+4*q,4)}, v{A_XR} offset:{1024*q}")
        a(f"s_waitcnt lgkmcnt(2)\nv_add_f32 v{Y}, v{X+8}, v{keep+8}\nv_add_f32 v{Y+1}, v{X+8}, v{keep+8}")
        for j in range(4): a(f"v_add_f32 v{X+8+j}, v{X+8+j}, v{keep+8+j}")
        a(f"v_permlane32_swap_b32 v{Y}, v{Y+1}\ns_waitcnt lgkmcnt(0)")
        for j in range(8): a(f"v_add_f32 v{X+j}, v{X+j}, v{keep+j}")
        if kh == 0: a("s_branch L_ox_done")
    a.label("L_ox_done")
    a(f"v_rcp_f32 v{Y}, v{Y+1}\ns_nop 0")
    for k in range(12): a(f"v_mul_f32 v{X+k}, v{X+k}, v{Y}")
    for k in range(6): a(f"v_cvt_pk_bf16_f32 v{Y+2+k}, v{X+2*k}, v{X+2*k+1}")
    a(f"""ds_write_b64 v{A_OW}, {vr(Y+2,2)}
ds_write_b64 v{A_OW}, {vr(Y+4,2)} offset:16
s_mov_b32 exec_hi, 0
ds_write_b64 v{A_OW}, {vr(Y+6,2)} offset:32
s_mov_b32 exec_hi, -1
ds_read_b128 {vr(Z,4)}, v{A_OB}
ds_read_b128 {vr(Z+4,4)}, v{A_OB} offset:64
v_mov_b32 v{Y}, 0
s_waitcnt lgkmcnt(1)
buffer_store_dwordx4 {vr(Z,4)}, v{A_OG}, s[{SWS}:{SWS+3}], 0 offen sc1
s_mov_b64 exec, 0xffff
s_waitcnt lgkmcnt(0)
buffer_store_dwordx4 {vr(Z+4,4)}, v{A_OG}, s[{SWS}:{SWS+3}], 0 offen offset:1024 sc1
s_mov_b64 exec, -1""")
    for k in range(12): a(f"v_fma_f32 v{Y + (k & 1)}, v{X+k}, 0, v{Y + (k & 1)}")
    a(f"""v_add_f32 v{Y}, v{Y}, v{Y+1}
v_cmp_le_f32 vcc, s{T0}, v{Y}
v_cmp_ge_f32 s[{T2}:{T3}], s{T1}, v{Y}
s_nop 3
s_and_b64 vcc, vcc, s[{T2}:{T3}]
s_cmp_eq_u64 vcc, -1
s_cbranch_scc1 L_ox_ok
s_cmp_lg_u32 s{S_FB}, 0
s_cbranch_scc1 L_ox_ok
v_mov_b32 v5, 1
ds_write_b32 v4, v5
s_waitcnt lgkmcnt(0)""")
    a.label("L_ox_ok")
    a("s_barrier")
    stamp(a, cfg, 14)
    a(f"ds_read_b32 v5, v4")

def fallback(a, cfg):
    a("; ---- fallback: true row max")
    R = AR
    a.label("L_fallback")
    a(f"s_mov_b32 s{S_FB}, 1\ns_waitcnt vmcnt(0) lgkmcnt(0)\ns_barrier")
    kv_dma_items(a, 0, 20).flush(a)
    a(f"""v_mov_b32 v{R.aK16}, v1
v_lshlrev_b32 v{R.aK4}, 3, v0
v_mov_b32 v2, 0xff7fffff
v_mov_b32 v3, 0xff7fffff
s_mov_b32 s{S_IT}, 0
s_waitcnt vmcnt(0)
s_barrier""")
    a.label("L_fb_loop")
    for par in range(2):
        a(f"""ds_read_b128 {vr(R.K16,4)}, v{R.aK16} offset:{1024*par}
ds_read_b64 {vr(R.K4,2)}, v{R.aK4} offset:2048
s_waitcnt lgkmcnt(0)
v_mfma_f32_32x32x16_bf16 {vr(R.S[0],16)}, {vr(R.K16,4)}, {vr(R.QA,4)}, 0
v_mfma_f32_32x32x16_bf16 {vr(R.S[0]+16,16)}, {vr(R.K16,4)}, {vr(R.QB,4)}, 0
s_nop 9
v_mfma_f32_32x32x4bf16_1k {vr(R.S[0],32)}, {vr(R.K4,2)}, {vr(R.Q4,2)}, {vr(R.S[0],32)} cbsz:1 abid:{par}
s_nop 15
s_nop 3""")
        for k in range(0, 16, 2):
            a(f"v_max3_f32 v2, v2, v{R.S[0]+k}, v{R.S[0]+k+1}\nv_max3_f32 v3, v3, v{R.S[0]+16+k}, v{R.S[0]+17+k}")
    a(f"""v_add_u32 v{R.aK16}, {BLK}, v{R.aK16}
v_add_u32 v{R.aK4}, {BLK}, v{R.aK4}
s_add_u32 s{S_IT}, s{S_IT}, 1
s_cmp_lt_u32 s{S_IT}, 32
s_cbranch_scc1 L_fb_loop
v_mov_b32 v4, v2
v_mov_b32 v5, v3
s_nop 1
v_permlane32_swap_b32 v2, v4
v_permlane32_swap_b32 v3, v5
v_max_f32 v2, v2, v4
v_max_f32 v3, v3, v5""")
    for i in range(16): a(f"v_sub_f32 v{R.CZ+i}, 0, v2\nv_sub_f32 v{R.CZ+16+i}, 0, v3")
    attn_init(a)
    attn_clear(a)
    attn_first(a, True)
    a(f"s_mov_b32 s{S_IT}, 0")
    a.label("L_fb_attn")
    attn_body(a, True, prio=False)
    a(f"""s_add_u32 s{S_IT}, s{S_IT}, 1
s_cmp_lt_u32 s{S_IT}, 4
s_cbranch_scc1 L_fb_attn
v_smfmac_f32_32x32x32_bf16 {vr(R.OB,16)}, {vr(R.V1,4)}, {vr(R.S[1]+24,8)}, v{R.IDX}
s_waitcnt lgkmcnt(0)
s_barrier""")
    y_dma(a.sub("f"))
    tail_dma_items(a, "f").flush(a)
    a("s_branch L_ofin")

def out_proj(a, cfg):
    a("; ---- y tile, gather o, output projection")
    WF = 40; OF = 186; ACC = 8
    NPRE = 7
    def wreads(i, b, cts=range(5)):
        for ct in cts:
            for hf in range(2):
                a(f"ds_read_b64_tr_b16 {vr(b+4*ct+2*hf,2)}, v{A_W} offset:{5120*i + 1280*hf + 32*ct}")
    a(f"""s_lshl_b32 s{T0}, s{S_HG}, 2
s_lshl_b32 s{T1}, s{S_RB}, 8
s_add_u32 s{T0}, s{T0}, s{T1}
s_add_u32 s{T0}, s{T0}, {W_FO}
ds_read_b64_tr_b16 v[8:9], v{A_YR}
ds_read_b64_tr_b16 v[10:11], v{A_YR} offset:512
ds_read_b64_tr_b16 v[12:13], v{A_YR} offset:8192
ds_read_b64_tr_b16 v[14:15], v{A_YR} offset:8704
v_mov_b32 v2, s{S_NONCE}
v_mov_b32 v3, 0
s_waitcnt lgkmcnt(4)
v_readfirstlane_b32 s{T2}, v5
s_waitcnt lgkmcnt(2)
ds_write_b128 v{A_YW}, v[8:11]
s_mov_b64 exec, 0xffff
s_waitcnt lgkmcnt(1)
ds_write_b128 v{A_YW}, v[12:15] offset:128
s_mov_b64 exec, -1
s_cmp_lg_u32 s{T2}, 0
s_cbranch_scc1 L_fallback
ds_read_b128 v[16:19], v{A_YB}
ds_read_b128 v[20:23], v{A_YB} offset:1024""")
    for i in range(WPRE): wreads(i, WF + 20*i)
    a(f"""s_waitcnt vmcnt(0)
s_barrier
s_cmp_lg_u32 s{S_W}, 0
s_cbranch_scc1 L_op_noflag
s_mov_b64 exec, 1
buffer_store_dword v2, v3, s[{SWS}:{SWS+3}], s{T0} offen sc1
s_mov_b64 exec, -1""")
    a.label("L_op_noflag")
    stamp(a, cfg, 15)
    a(f"""s_lshl_b32 s{T0}, s{S_J}, 6
s_lshl_b32 s{T1}, s{S_W}, 3
s_add_u32 s{T0}, s{T0}, s{T1}
s_mul_i32 s{T0}, s{T0}, 2560
s_mul_i32 s{T1}, s{S_XCD}, 160
s_add_u32 s{T0}, s{T0}, s{T1}
s_add_u32 s{T0}, s{T0}, 1280
s_waitcnt lgkmcnt({min(15, 10*WPRE)})
buffer_store_dwordx4 v[16:19], v{A_YG0}, s[{SOUT}:{SOUT+3}], s{T0} offen {YST}
s_mov_b64 exec, 0xffff
buffer_store_dwordx4 v[20:23], v{A_YG1}, s[{SOUT}:{SOUT+3}], s{T0} offen {YST}
s_mov_b64 exec, -1""")
    for i in range(WPRE, NPRE): wreads(i, WF + 20*i)
    a(f"""s_and_b32 s{T2}, s{S_W}, 3
s_lshl_b32 s{T0}, s{S_RB}, 2
s_add_u32 s{T0}, s{T0}, s{T2}
s_mul_i32 s{T3}, s{T0}, {16*2560}
s_mul_i32 s{T0}, s{T0}, 20480
s_mul_i32 s{T1}, s{S_KH}, 10240
s_add_u32 s{T0}, s{T0}, s{T1}
s_add_u32 s{T0}, s{T0}, {W_O}
s_add_u32 s{T1}, s{T0}, 4096
s_add_u32 s{T2}, s{T0}, 8192
s_mul_i32 s{T4}, s{S_HG}, 160
s_add_u32 s{T3}, s{T3}, s{T4}
s_mul_i32 s{T4}, s{S_W}, {OT_SZ}
s_add_u32 s{T4}, s{T4}, {L_OT}
v_add_u32 v7, s{T4}, v1""")
    stamp(a, cfg, 17)
    a(f"s_cmp_lg_u32 s{S_W}, 0\ns_cbranch_scc1 L_op_nopoll")
    if PPOLL:
        a(f"s_mov_b32 exec_lo, 0xff\ns_mov_b32 exec_hi, 0\ns_mov_b32 s{T7}, 0")
        ld = lambda r: f"buffer_load_dword v{r}, v{A_FO}, s[{SWS}:{SWS+3}], 0 offen sc1"
        a(ld(4) + f"\ns_sleep {PPOLL}\n" + ld(5) + f"\ns_sleep {PPOLL}")
        a.label("L_pp_loop")
        for k in range(3):
            a(ld(4 + (k + 2) % 3))
            a(f"""s_waitcnt vmcnt(2)
v_cmp_ne_u32 vcc, s{S_NONCE}, v{4 + k}
s_add_u32 s{T7}, s{T7}, 1
s_nop 2
s_cmp_eq_u64 vcc, 0
s_cbranch_scc1 L_pp_done""")
        a(f"s_cmp_lt_u32 s{T7}, {SPIN_MAX}\ns_cbranch_scc1 L_pp_loop")
        a.label("L_pp_done")
        a("s_mov_b64 exec, -1")
    else:
        poll(a, "o", A_FO, 1, 4, lanes=8)
    a.label("L_op_nopoll")
    a("s_barrier")
    stamp(a, cfg, 18)
    if OPRIO:
        a(f"s_cmp_eq_u32 s{S_KH}, 0\ns_cbranch_scc1 L_op_p0\ns_setprio 2\ns_branch L_op_p1")
        a.label("L_op_p0"); a("s_setprio 3"); a.label("L_op_p1")
    for i in range(10):
        if OPRIO and i == 5:
            a(f"s_cmp_eq_u32 s{S_KH}, 0\ns_cbranch_scc1 L_op_p2\ns_setprio 0\ns_branch L_op_p3")
            a.label("L_op_p2"); a("s_setprio 1"); a.label("L_op_p3")
        a(f"buffer_load_dwordx4 {vr(OF+4*i,4)}, v1, s[{SWS}:{SWS+3}], s{(T0, T1, T2)[i >> 2]} offen offset:{1024*(i & 3)} sc1")
    if OPRIO: a("s_setprio 0")
    a("s_waitcnt lgkmcnt(0)")
    for i in range(10):
        b = WF + 20*(i if i < NPRE else i - NPRE)
        a(f"s_waitcnt vmcnt({9-i})" + (f" lgkmcnt({min(15, 10*(9-i))})" if i >= NPRE else ""))
        for ct in range(5):
            c = "0" if i == 0 else vr(ACC+4*ct, 4)
            a(f"v_mfma_f32_16x16x32_bf16 {vr(ACC+4*ct,4)}, {vr(b+4*ct,4)}, {vr(OF+4*i,4)}, {c}")
        if i < 10 - NPRE: wreads(NPRE + i, b)
    stamp(a, cfg, 19)
    a(f"s_cmp_eq_u32 s{S_KH}, 0\ns_cbranch_scc0 L_px_hi")
    X = 40
    for kh in range(2):
        if kh: a.label("L_px_hi")
        send = [3, 4] if kh == 0 else [0, 1, 2]
        keep = [0, 1, 2] if kh == 0 else [3, 4]
        a("s_nop 5" if kh == 0 else "s_nop 5")
        for n, ct in enumerate(send): a(f"ds_write_b128 v{A_XW}, {vr(ACC+4*ct,4)} offset:{1024*n}")
        a("s_waitcnt lgkmcnt(0)\ns_barrier")
        for n, ct in enumerate(keep): a(f"ds_read_b128 {vr(X+4*n,4)}, v{A_XR} offset:{1024*n}")
        for n, ct in enumerate(keep):
            a(f"s_waitcnt lgkmcnt({len(keep)-1})")
            for j in range(4): a(f"v_add_f32 v{X+4*n+j}, v{X+4*n+j}, v{ACC+4*ct+j}")
            a(f"v_cvt_pk_bf16_f32 v{X+16+2*n}, v{X+4*n}, v{X+4*n+1}\nv_cvt_pk_bf16_f32 v{X+17+2*n}, v{X+4*n+2}, v{X+4*n+3}")
            a(f"ds_write_b64 v{A_PW}, {vr(X+16+2*n,2)} offset:{32*n}")
        a(f"ds_read_b128 {vr(X+24,4)}, v7")
        if kh == 0:
            a(f"""ds_read_b128 {vr(X+28,4)}, v7 offset:1024
s_waitcnt lgkmcnt(1)
buffer_store_dwordx4 {vr(X+24,4)}, v{A_PG0}, s[{SOUT}:{SOUT+3}], s{T3} offen {OST}
s_mov_b32 exec_hi, 0
s_waitcnt lgkmcnt(0)
buffer_store_dwordx4 {vr(X+28,4)}, v{A_PG1}, s[{SOUT}:{SOUT+3}], s{T3} offen {OST}
s_mov_b32 exec_hi, -1
s_branch L_px_done""")
        else:
            a(f"s_waitcnt lgkmcnt(0)\nbuffer_store_dwordx4 {vr(X+24,4)}, v{A_PG0}, s[{SOUT}:{SOUT+3}], s{T3} offen {OST}")
    a.label("L_px_done")
    if cfg.stamps:
        a("s_waitcnt vmcnt(0)")
        stamp(a, cfg, 20)
        stamp_flush(a, cfg)
        stamp_debug(a, cfg)

def build(cfg):
    a = Asm()
    prologue(a, cfg)
    a(f"s_cmp_ge_u32 s{S_W}, 4\ns_cbranch_scc1 L_kside")
    q_side(a, cfg)
    a("s_branch L_join")
    a("; CUT k_early")
    a.label("L_kside")
    k_side(a, cfg)
    join(a, cfg)
    attention(a, cfg)
    o_finish(a, cfg)
    out_proj(a, cfg)
    a.label("L_end")
    a("s_endpgm")
    a("; CUT kaddr")
    k_addrs(a)
    a("; CUT fb")
    a.label("L_code_end")
    fallback(a, cfg)
    linear = list(a.lines)
    if LAYOUT:
        parts = {}; cur = "head"; parts[cur] = []
        for l in a.lines:
            if l.startswith("; CUT "): cur = l[6:]; parts[cur] = []
            else: parts[cur].append(l)
        br = lambda n: [f"s_branch L_cut_{n}"]; lb = lambda n: [f"L_cut_{n}:"]
        a.lines = (parts["head"] + br("q_main") + parts["k_early"] + br("k_gen") + parts["kaddr"] + parts["u_early"] + br("u_main")
                   + lb("k_gen") + parts["k_gen"] + lb("q_main") + parts["q_main"] + lb("u_main") + parts["u_main"] + parts["fb"])
    probs = check([l for l in linear if not l.startswith('; CUT')])
    for p in probs: print("HAZARD", p, file=sys.stderr)
    head = open("cdna_kernels/%s.s.ref" % NAME).read().split("; Override")[0]
    txt = head + DESC + f"""; @launch grid=(256,1,1) block=(512,1,1) lds=163840
.amdgcn_target "amdgcn-amd-amdhsa--gfx950"
.text
.globl {NAME}_kernel
.p2align 8
.type {NAME}_kernel,@function
{NAME}_kernel:
""" + a.text() + f""".section .rodata,"a"
.p2align 6
.amdhsa_kernel {NAME}_kernel
  .amdhsa_next_free_vgpr 256
  .amdhsa_next_free_sgpr 96
  .amdhsa_accum_offset 256
  .amdhsa_group_segment_fixed_size 0
  .amdhsa_kernarg_size 120
  .amdhsa_user_sgpr_count 2
  .amdhsa_user_sgpr_kernarg_segment_ptr 1
  .amdhsa_system_sgpr_workgroup_id_x 1
  .amdhsa_float_denorm_mode_32 3
.end_amdhsa_kernel
"""
    return txt, len(probs)

if __name__ == "__main__":
    cfg = Cfg()
    out = sys.argv[1]
    for o in sys.argv[2:]:
        if o == "stamps": cfg.stamps = True
        if o == "dbg": cfg.dbg = True
        if o.startswith("few="): cfg.stamps = True; cfg.few = [int(x) for x in o[4:].split(",")]
        if "=" in o and o.split("=")[0].isupper(): globals()[o.split("=")[0]] = int(o.split("=")[1]) if o.split("=")[1].isdigit() else o.split("=")[1].replace("_", " ")
        if o.startswith("dbgstamp="): cfg.stamps = True; cfg.dbgstamp = [int(x) for x in o[9:].split(",")]
    txt, n = build(cfg)
    open(out, "w").write(txt)
    print("written", out, len(txt), "bytes; hazards:", n)
```

```python
import sys, struct, math
from asmlib import Asm, vr, sr, check
NAME = "concat_heads__grouped_kv_mqa__ssm_conv_s4d__prompt"
def f2u(x): return struct.unpack("<I", struct.pack("<f", x))[0]
def hx(x): return "0x%08x" % (x & 0xffffffff)

L_WQ = 0; L_X = 0; L_WK = 102400; L_SCR = 128000; SCR_SZ = 4352; L_UST = 141056; NWQA = 4
L_CP = 102400; CP_CH = 16640; CP_C = 4160
L_TBL = 154112; TBL_SZ = 1552; L_QST = 152320
L_UT = 81920; UT_CH = 4608; L_PART = 95744; L_QX = 0
L_YT = 102400; L_XCH = 122880; L_OT = 147456; OT_SZ = 1536; L_DEC = 159744; L_YS = 112640
BLK = 5120
W_NONCE = 0; W_FU = 0x1000; W_FKV = 0x2000; W_FY = 0x4000; W_FO = 0x6000
W_KV = 0x10000; W_UT = 0x40000; W_YT = 0x2C0000; W_O = 0x540000; W_DBG = 0x800000; W_STAMP = 0xF00000; WS_SZ = 0x1000000
P_X, P_WQ, P_WK, P_WV, P_WO, P_U, P_LAR, P_AIM, P_CR, P_CI, P_LDT, P_DSK, P_OUT, P_DBG, P_WS = range(4, 34, 2)
SA, SB, SWS, SOUT = 36, 40, 44, 48
S_W, S_XCD, S_J, S_RB, S_HG, S_NONCE, S_CH0, S_CH2 = 52, 53, 54, 55, 56, 57, 58, 59
VM = 60
T0, T1, T2, T3, T4, T5, T6, T7 = range(62, 70)
S_RT, S_KH, S_FB, S_IT = 70, 71, 72, 73
EX = 74
S_LDT = 76; S_D0 = 77
S_C1, S_C2, S_C3, S_C4 = 80, 81, 82, 83
ST0 = 84
SPIN_MAX = 1000000
SLEEP = 1
USLEEP = 4
PF = 0; W4P = 2; OPRIO = 1; G0DMA = 6; UDMA = 0; EXP128 = 1; PSCH = 0; YEARLY = 1; WOF = ''; TDM = 1; BDM = 1; XNT = ''; UNT = ''; PNT = ''; TOUCH = 0; TAQ = 0; PPOLL = 0; WPRE = 1; PF3 = 0; K0PRIO = 3; KAPRIO = 3; KV1 = 0; KGAP = 5; KGAP0 = 24; PF2 = 0; KVPRIO = 0; CPF = 1024; CPF0 = 1; LAYOUT = 1
UEV = 1; UMASK = 0x0f
YST = 'nt'; OST = 'nt'
QPRIO = 2; KPRIO = 1; CPRIO = 1; Q2PRIO = 3

DESC = """;
"""

class Cfg:
    dbg = False; stamps = False; few = None; dbgstamp = None; stop_after = None; nonce_update = True

N_ = None
PRI = [[[N_, N_, N_, 0], [3, 2, 1, 0], [3, 2, 1, 0], [3, 2, 1, 0]],
       [[N_, N_, N_, 3], [2, 1, 0, 3], [3, 2, 1, 0], [3, 2, 1, 0]],
       [[N_, N_, N_, 0], [N_]*4, [N_]*4, [N_]*4],
       [[N_, N_, N_, 3], [2, 1, 0, 3], [2, 2, 1, 0], [3, 2, 1, 0]]]
def srd(a, base, ptr, size):
    a(f"s_mov_b32 s{base}, s{ptr}\ns_mov_b32 s{base+1}, s{ptr+1}\ns_mov_b32 s{base+2}, {size}\ns_mov_b32 s{base+3}, 0x00020000")

_stamp_n = [0]
def stamp(a, cfg, idx, cyc=False):
    if not cfg.stamps or cyc: return
    if cfg.few and idx not in cfg.few: return
    a(f"""s_memrealtime s[{ST0}:{ST0+1}]
s_memtime s[86:87]
s_waitcnt lgkmcnt(0)
v_writelane_b32 v255, s{ST0}, {idx}
v_writelane_b32 v255, s86, {idx+32}""")
def stamp_flush(a, cfg):
    if not cfg.stamps: return
    a(f"""s_lshl_b32 s86, s2, 3
s_add_u32 s86, s86, s{S_W}
s_lshl_b32 s86, s86, 8
s_add_u32 s86, s86, {W_STAMP}
v_lshlrev_b32 v254, 2, v0
buffer_store_dword v255, v254, s[{SWS}:{SWS+3}], s86 offen""")

SEL = [0, 24, 1, 2, 26, 3, 6, 8, 10, 11, 12, 13, 14, 18, 19, 20]
def stamp_debug(a, cfg):
    if not cfg.dbgstamp: return
    a(f"""s_cmp_lg_u32 s2, {cfg.dbgstamp[0]}
s_cbranch_scc1 L_dbgst_done
s_cmp_lg_u32 s{S_W}, {cfg.dbgstamp[1]}
s_cbranch_scc1 L_dbgst_done
v_readlane_b32 s86, v255, 21
v_mov_b32 v254, 0""")
    for k, i in enumerate(SEL):
        a(f"v_readlane_b32 s87, v255, {i}\ns_nop 3\ns_sub_u32 s87, s87, s86\nv_writelane_b32 v254, s87, {k}")
    srd(a, SA, P_DBG, 256)
    a(f"""v_lshlrev_b32 v253, 2, v0
s_mov_b64 exec, 0xffff
buffer_store_dword v254, v253, s[{SA}:{SA+3}], 0 offen
s_mov_b64 exec, -1""")
    a.label("L_dbgst_done")

def dump_lds(a, cfg, tag, lo, n8):
    if not cfg.dbg: return
    a(f"""s_cmp_ge_u32 s2, 4
s_cbranch_scc1 L_dump_{tag}
s_lshl_b32 s86, s{S_W}, 10
s_mul_i32 s87, s2, {n8*8192}
s_add_u32 s87, s87, {W_DBG}
s_add_u32 s87, s87, s86
s_add_u32 s86, s86, {lo}
v_add_u32 v250, s86, v1
s_mov_b32 s88, 0""")
    a.label(f"L_dumpl_{tag}")
    a(f"""ds_read_b128 v[252:255], v250
s_waitcnt lgkmcnt(0)
buffer_store_dwordx4 v[252:255], v1, s[{SWS}:{SWS+3}], s87 offen
s_waitcnt vmcnt(0)
v_add_u32 v250, 8192, v250
s_add_u32 s87, s87, 8192
s_add_u32 s88, s88, 1
s_cmp_lt_u32 s88, {n8}
s_cbranch_scc1 L_dumpl_{tag}""")
    a.label(f"L_dump_{tag}")

def poll(a, tag, vaddr, nload, vt, lanes=64, sleep=0, pre=False):
    sfx = {1: "dword", 2: "dwordx2", 4: "dwordx4"}[nload]
    if lanes < 64: a(f"s_mov_b32 exec_lo, {hx((1 << lanes) - 1)}\ns_mov_b32 exec_hi, 0")
    a(f"s_mov_b32 s{T7}, 0")
    if pre: a(f"s_branch L_pollc_{tag}")
    a.label(f"L_poll_{tag}")
    a(f"buffer_load_{sfx} {vr(vt, nload)}, v{vaddr}, s[{SWS}:{SWS+3}], 0 offen sc1")
    a("s_waitcnt vmcnt(0)")
    a.label(f"L_pollc_{tag}")
    for i in range(nload): a(f"v_xor_b32 v{vt+i}, s{S_NONCE}, v{vt+i}")
    if nload == 2: a(f"v_or_b32 v{vt}, v{vt}, v{vt+1}")
    if nload == 4: a(f"v_or_b32 v{vt}, v{vt}, v{vt+1}\nv_or3_b32 v{vt}, v{vt}, v{vt+2}, v{vt+3}")
    a(f"""v_cmp_ne_u32 vcc, 0, v{vt}
s_add_u32 s{T7}, s{T7}, 1
s_nop 2
s_cmp_eq_u64 vcc, 0
s_cbranch_scc1 L_polld_{tag}
{f"s_sleep {sleep}" if sleep else ""}
s_cmp_lt_u32 s{T7}, {SPIN_MAX}
s_cbranch_scc1 L_poll_{tag}""")
    a.label(f"L_polld_{tag}")
    if lanes < 64: a("s_mov_b64 exec, -1")

def div10_offsets(a, vdst, cbase_s, cbase_imm, vt, perm):
    if cbase_s is not None: a(f"v_add_u32 v{vt}, s{cbase_s}, v0")
    else: a(f"v_add_u32 v{vt}, {cbase_imm}, v0")
    a(f"""v_mul_u32_u24 v{vt+1}, 6554, v{vt}
v_lshrrev_b32 v{vt+1}, 16, v{vt+1}
v_mul_u32_u24 v{vt+2}, 10, v{vt+1}
v_sub_u32 v{vt}, v{vt}, v{vt+2}""")
    if perm:
        a(f"""v_lshrrev_b32 v{vt+2}, 2, v{vt+1}
v_lshrrev_b32 v{vt+3}, 3, v{vt+1}
v_xor_b32 v{vt+2}, v{vt+2}, v{vt+3}
v_and_b32 v{vt+2}, 1, v{vt+2}
v_mul_u32_u24 v{vt+2}, 12, v{vt+2}
v_xor_b32 v{vt+1}, v{vt+1}, v{vt+2}""")
    a(f"""v_mul_u32_u24 v{vt+1}, 1280, v{vt+1}
v_lshl_add_u32 v{vdst}, v{vt}, 4, v{vt+1}""")

XF = 16
VX = 250
WT = 245
C_A, C_B, C_PW, C_PR, C_UG, C_UL = 242, 243, 244, 251, 252, 253
C_A2, C_B2 = 246, 247
Q_W, A_WQ, V_NON, Q_R, Q_R4 = 13, 14, 15, 224, 225
E_W, E_R = 248, 249
L_EV = 162560
EV_CRIT, EV_X, EV_FR, EV_WQ, EV_TBL, EV_WQA, EV_EXP, EV_QD, EV_C0, EV_C1, EV_C2, EV_US = 0, 1, 2, 3, 7, 8, 9, 10, 5, 6, 11, 12
X_F0, X_F1 = 246, 247
EXI = 186
def ev_signal(a, e, vn=None):
    a(f"s_mov_b64 exec, 1\nds_write_b32 v{E_W}, v{vn or V_NON} offset:{32*e}\ns_mov_b64 exec, -1")
_evn = [0]
def ev_wait(a, e, mask, vn=None):
    _evn[0] += 1; n = _evn[0]
    a(f"s_mov_b32 s{T7}, 0")
    a.label(f"L_ev_{n}")
    a(f"""ds_read_b32 v2, v{E_R} offset:{32*e}
s_add_u32 s{T7}, s{T7}, 1
s_waitcnt lgkmcnt(0)
v_cmp_eq_u32 vcc, v2, v{vn or V_NON}
s_cmp_ge_u32 s{T7}, {SPIN_MAX}
s_cbranch_scc1 L_evd_{n}
s_nop 1
s_and_b32 s{T0}, vcc_lo, {mask}
s_cmp_eq_u32 s{T0}, {mask}
s_cbranch_scc1 L_evd_{n}
s_sleep {SLEEP}
s_branch L_ev_{n}""")
    a.label(f"L_evd_{n}")

def prologue(a, cfg):
    a(f"""s_cmp_ge_u32 s2, 256
s_cbranch_scc1 L_end""")
    stamp(a, cfg, 21)
    a(f"""s_load_dwordx16 s[4:19], s[0:1], 0
s_load_dwordx2 s[32:33], s[0:1], 112
s_load_dwordx8 s[20:27], s[0:1], 64
s_load_dwordx4 s[28:31], s[0:1], 96
v_lshrrev_b32 v1, 6, v0
v_and_b32 v0, 63, v0
s_and_b32 s{S_XCD}, s2, 7
v_readfirstlane_b32 s{S_W}, v1
s_lshr_b32 s{S_J}, s2, 3
s_lshr_b32 s{T0}, s{S_J}, 3
s_lshl_b32 s{S_RB}, s{S_XCD}, 2
s_add_u32 s{S_RB}, s{S_RB}, s{T0}
s_and_b32 s{S_HG}, s{S_J}, 7
v_lshlrev_b32 v1, 4, v0""")
    if CPF:
        a("s_getpc_b64 s[92:93]")
        a.label("L_pc")
        a(f"""s_sub_u32 s92, s92, L_pc - {NAME}_kernel
s_subb_u32 s93, s93, 0
s_lshl_b32 s{T0}, s{S_W}, 10
v_add_u32 v3, s{T0}, v1
v_add_co_u32 v4, vcc, s92, v3
v_mov_b32 v5, s93
s_mul_i32 s{T1}, s{S_J}, {CPF}
v_addc_co_u32 v5, vcc, 0, v5, vcc
s_cmp_lt_u32 s{S_W}, 6
{"global_load_dwordx4 v[200:203], v[4:5], off" if CPF0 else ""}
s_cbranch_scc1 L_nocp
s_add_u32 s{T1}, s{T1}, {8192 - 6*1024 if CPF0 else -6*1024 & 0xffffffff}
v_add_u32 v3, s{T1}, v3
v_min_u32 v3, L_code_end - {NAME}_kernel - 16, v3
v_add_co_u32 v4, vcc, s92, v3
v_mov_b32 v5, s93
s_nop 0
v_addc_co_u32 v5, vcc, 0, v5, vcc
global_load_dwordx4 v[200:203], v[4:5], off""")
        a.label("L_nocp")
    a(f"""v_lshrrev_b32 v2, 3, v0
v_and_b32 v3, 7, v0
v_xor_b32 v3, v3, v2
v_mul_u32_u24 v2, 1280, v2
v_lshl_add_u32 v{VX}, v3, 4, v2
v_mov_b32 v{WT}, 0
s_lshr_b32 s{T0}, s{S_J}, 1
s_mul_i32 s{T0}, s{T0}, 5
s_mul_i32 s{S_CH0}, s{S_XCD}, 80
s_add_u32 s{S_CH0}, s{S_CH0}, s{T0}
s_add_u32 s{S_CH2}, s{S_CH0}, 2
s_and_b32 s{T0}, s{S_J}, 1
s_mul_i32 s{T0}, s{T0}, 3
s_add_u32 s{S_CH0}, s{S_CH0}, s{T0}
s_lshr_b32 s{T0}, s{S_HG}, 1
s_add_u32 s{S_RT}, s{T0}, s{S_W}
s_and_b32 s{S_RT}, s{S_RT}, 3
s_lshr_b32 s{S_KH}, s{S_W}, 2
s_mov_b32 s{S_FB}, 0
s_mov_b32 s{VM}, 0x000fffff
s_mov_b32 s{VM+1}, 0x000fffff
s_mul_i32 s{T5}, s{S_RB}, {64*1280}""")

def x_loop(a, tag, n_s, n_imm):
    a(f"s_mov_b32 s{T2}, {n_imm}" if n_s is None else f"s_mov_b32 s{T2}, s{n_s}")
    a.label(f"L_xl_{tag}")
    a(f"""s_mul_i32 s{T0}, s{T3}, {8*1280}
s_lshl_b32 s{T1}, s{T4}, 7
s_add_u32 s{T0}, s{T0}, s{T1}
s_lshl_b32 s{T1}, s{T4}, 3
s_add_u32 s{T1}, s{T1}, s{T3}
s_lshl_b32 m0, s{T1}, 10
s_add_u32 s{T0}, s{T0}, s{T5}
buffer_load_dwordx4 v{VX}, s[{SA}:{SA+3}], s{T0} offen {XNT} lds
s_add_u32 s{T4}, s{T4}, 1
s_cmp_eq_u32 s{T4}, 10
s_cselect_b32 s{T4}, 0, s{T4}
s_addc_u32 s{T3}, s{T3}, 0
s_and_b32 s{T3}, s{T3}, 7
s_sub_u32 s{T2}, s{T2}, 1
s_cmp_lg_u32 s{T2}, 0
s_cbranch_scc1 L_xl_{tag}""")

def crit_loads(a):
    a(f"""s_and_b32 s{T3}, s{S_HG}, 6
s_and_b32 s{T4}, s{S_W}, 1
s_add_u32 s{T3}, s{T3}, s{T4}
s_lshr_b32 s{T4}, s{S_W}, 1
s_mul_i32 s{T0}, s{T3}, {8*1280}
s_lshl_b32 s{T1}, s{T4}, 7
s_add_u32 s{T0}, s{T0}, s{T1}
s_add_u32 s{T0}, s{T0}, s{T5}
s_lshl_b32 s{T1}, s{T4}, 3
s_add_u32 s{T1}, s{T1}, s{T3}
s_lshl_b32 m0, s{T1}, 10
s_bitcmp1_b32 s{S_HG}, 0""")
    for i in range(5):
        a(f"buffer_load_dwordx4 v{VX}, s[{SA}:{SA+3}], s{T0} offen {XNT} lds")
        if i < 4: a(f"s_add_u32 m0, m0, 16384\ns_add_u32 s{T0}, s{T0}, 256")
    a(f"""s_bitcmp1_b32 s{S_HG}, 0
s_cselect_b32 s{SB}, s{P_WV}, s{P_WK}
s_cselect_b32 s{SB+1}, s{P_WV+1}, s{P_WK+1}
s_mov_b32 s{SB+2}, 25600
s_mov_b32 s{SB+3}, 0x00020000
s_lshl_b32 s{T0}, s{S_W}, 10
s_add_u32 m0, s{T0}, {L_WK}
s_nop 0""")
    for i in range(7):
        if i == 6: a(f"s_cmp_lg_u32 s{S_W}, 0\ns_cbranch_scc1 L_wk_done")
        a(f"buffer_load_dwordx4 v1, s[{SB}:{SB+3}], s{T0} offen lds")
        if i < 6: a(f"s_add_u32 m0, m0, 4096\ns_add_u32 s{T0}, s{T0}, 4096")
    a.label("L_wk_done")

def rest_x(a, tag):
    a(f"""s_mul_i32 s{T4}, s{S_W}, 15
s_mul_i32 s{T3}, s{T4}, 205
s_lshr_b32 s{T3}, s{T3}, 11
s_mul_i32 s{T1}, s{T3}, 10
s_sub_u32 s{T4}, s{T4}, s{T1}
s_and_b32 s{T1}, s{S_HG}, 6
s_add_u32 s{T3}, s{T3}, s{T1}
s_add_u32 s{T3}, s{T3}, 2
s_and_b32 s{T3}, s{T3}, 7""")
    x_loop(a, tag, None, 15)

WT4 = 8
def wq_items(a, first, n, even):
    srd(a, SB, P_WQ, 640*1280)
    a(f"""s_lshl_b32 s{S_DM}, s{S_W}, 10
s_add_u32 s{S_DM}, s{S_DM}, {first*5120}
s_mul_i32 s{S_DO}, s{S_HG}, 160
s_add_u32 s{S_DO}, s{S_DO}, {first*40960}""")
    one = f"s_mov_b32 m0, s{S_DM}\ns_add_u32 s{S_DM}, s{S_DM}, 5120\nbuffer_load_dwordx4 v{WT}, s[{SB}:{SB+3}], s{S_DO} offen lds\ns_add_u32 s{S_DO}, s{S_DO}, 40960"
    if not even: return Dma([one] * n)
    a(f"""s_lshr_b32 s{T2}, s{S_W}, 1
s_add_u32 s{T2}, s{T2}, {first}
s_mul_i32 s92, s{T2}, 5120
s_add_u32 s92, s92, 4096
s_mul_i32 s93, s{T2}, 40960
s_mul_i32 s{T2}, s{S_HG}, 160
s_add_u32 s93, s93, s{T2}""")
    four = f"s_mov_b32 m0, s92\ns_add_u32 s92, s92, 10240\nbuffer_load_dwordx4 v{WT4}, s[{SB}:{SB+3}], s93 offen lds\ns_add_u32 s93, s93, 81920"
    return Dma([x for k in range(n // 2) for x in (one, one, four)])

def typed_offset(a):
    a(f"s_lshl_b32 s{T2}, s{S_W}, 6")
    div10_offsets(a, WT, T2, None, 2, True)

A_YR, A_YW, A_YB, A_YG0, A_YG1, A_W, A_OW, A_OB, A_OG, A_XW, A_XR, A_PW, A_PG0, A_PG1, A_YD, A_FO = range(226, 242)
def w_tr_addr(a, v, t):
    a(f"""v_lshrrev_b32 v{v}, 5, v0
v_lshlrev_b32 v{v}, 4, v{v}
v_bfe_u32 v{t}, v0, 4, 1
v_lshl_add_u32 v{v}, v{t}, 2, v{v}
v_bfe_u32 v{t}, v0, 2, 2
v_add_u32 v{v}, v{v}, v{t}
v_mul_u32_u24 v{v}, 160, v{v}
v_and_b32 v{t}, 3, v0
v_lshl_add_u32 v{v}, v{t}, 3, v{v}
s_mul_i32 s{T0}, s{S_KH}, 51200
v_add_u32 v{v}, s{T0}, v{v}""")

L_P16 = 86528; L_P32 = 102912
UPOS = [1, 2, 0]
def conv_addrs(a, kside):
    a(f"""v_and_b32 v2, 15, v0
v_lshrrev_b32 v3, 4, v0""")
    if kside:
        a(f"""s_sub_u32 s{T0}, s{S_W}, 4
s_lshr_b32 s{T1}, s{T0}, 1
s_and_b32 s{T2}, s{T0}, 1
s_lshl_b32 s{T2}, s{T2}, 8
s_mul_i32 s{T4}, s{T1}, {CP_CH}
s_sub_u32 s{T4}, s{T4}, s{T2}
s_add_u32 s{T4}, s{T4}, {L_CP + 2*2032 - 512*7 - 192}
s_mul_i32 s{T6}, s{T1}, {UT_CH}
s_sub_u32 s{T6}, s{T6}, s{T2}
s_add_u32 s{T6}, s{T6}, {L_UT + UT_CH + 480 - 192}
s_lshl_b32 s{T2}, s{T0}, 7
s_sub_u32 s{T1}, {L_CP + 2*CP_CH + 2*2032 - 512*7 - 192}, s{T2}
s_sub_u32 s{T2}, {L_UT + 480 - 192}, s{T2}
v_sub_u32 v4, 0, v2
v_and_b32 v4, 3, v4
v_add_u32 v5, v2, v4
v_mul_u32_u24 v4, {CP_C}, v4
v_lshlrev_b32 v5, 1, v5
v_sub_u32 v4, v4, v5
v_lshl_add_u32 v4, v3, 4, v4
v_add_u32 v{C_A}, s{T4}, v4
v_add_u32 v{C_A2}, s{T1}, v4
v_lshlrev_b32 v5, 5, v2
v_lshl_add_u32 v5, v3, 4, v5
v_add_u32 v{C_B}, s{T6}, v5
v_add_u32 v{C_B2}, s{T2}, v5
v_lshl_add_u32 v4, v3, 2, v2
v_and_b32 v4, 15, v4
v_lshl_add_u32 v4, v3, 4, v4
v_lshlrev_b32 v{C_PW}, 4, v4""")
    a(f"""v_lshrrev_b32 v4, 2, v0
v_and_b32 v5, 3, v0
v_lshl_add_u32 v4, v5, 2, v4
v_and_b32 v4, 15, v4
v_lshl_add_u32 v4, v5, 4, v4
v_lshlrev_b32 v{C_PR}, 4, v4
s_and_b32 s{T0}, s{S_W}, 3
s_lshl_b32 s{T0}, s{T0}, 10
v_lshl_add_u32 v{C_UG}, v0, 3, s{T0}
s_and_b32 s{T0}, s{S_W}, 3
s_mul_i32 s{T1}, s{T0}, 2560
s_add_u32 s{T1}, s{T1}, {L_QST}
v_mul_u32_u24 v2, 160, v2
v_add_u32 v2, s{T1}, v2
v_and_b32 v3, 1, v3
v_mul_u32_u24 v3, 40, v3
v_add_u32 v2, v2, v3
v_lshrrev_b32 v3, 5, v0
v_lshl_add_u32 v{Q_R}, v3, 4, v2
v_mul_u32_u24 v3, 80, v3
v_add_u32 v{Q_R4}, v2, v3
s_lshl_b32 s{T0}, s{S_W}, 2
s_add_u32 s{T0}, s{T0}, {L_EV}
v_mov_b32 v{E_W}, s{T0}
v_and_b32 v2, 7, v0
v_lshlrev_b32 v2, 2, v2
v_add_u32 v{E_R}, {L_EV}, v2""")

def chan(a, dst, c):
    a(f"s_add_u32 s{dst}, s{S_CH0}, {c}" if c < 2 else f"s_mov_b32 s{dst}, s{S_CH2}")
def chan_w(a, dst):
    a(f"""s_sub_u32 s{dst}, s{S_W}, 5
s_add_u32 s{dst}, s{dst}, s{S_CH0}
s_cmp_eq_u32 s{S_W}, 7
s_cselect_b32 s{dst}, s{S_CH2}, s{dst}""")
def d_loads(a):
    for c in range(3):
        chan(a, T2, c)
        a(f"""s_lshl_b32 s{T2}, s{T2}, 1
s_and_b32 s{T2}, s{T2}, 0xfffffffc
s_load_dword s{S_D0+c}, s[{P_DSK}:{P_DSK+1}], s{T2}""")

def q_addrs(a):
    typed_offset(a)
    div10_offsets(a, WT4, None, 256, 2, True)
    a(f"""v_lshrrev_b32 v2, 5, v0
v_lshlrev_b32 v2, 4, v2
v_bfe_u32 v3, v0, 4, 1
v_lshl_add_u32 v2, v3, 2, v2
v_bfe_u32 v3, v0, 2, 2
v_add_u32 v2, v2, v3
v_mul_u32_u24 v2, 160, v2
v_and_b32 v3, 3, v0
v_lshl_add_u32 v2, v3, 3, v2
s_bitcmp0_b32 s{S_W}, 0
s_cselect_b32 s{T1}, 96, 0
v_add_u32 v{A_WQ}, s{T1}, v2
v_and_b32 v2, 15, v0
v_lshrrev_b32 v3, 4, v0
v_and_b32 v4, 7, v2
v_xor_b32 v4, v3, v4
v_lshlrev_b32 v5, 7, v2
v_lshl_add_u32 v{X_F0}, v4, 4, v5
v_xor_b32 v{X_F1}, 64, v{X_F0}
s_lshr_b32 s{T0}, s{S_W}, 1
s_mul_i32 s{T0}, s{T0}, 5120
s_add_u32 s{T0}, s{T0}, s{T1}
s_add_u32 s{T0}, s{T0}, {L_QST}
v_mul_u32_u24 v2, 160, v2
v_lshl_add_u32 v2, v3, 3, v2
v_add_u32 v{Q_W}, s{T0}, v2""")

ORDER = [16, 17, 18, 19] + list(range(16))
def xf(i, s):
    n = ORDER.index(s)
    if i == 0: return XF + 4*n
    return 144 + 4*n if n < 4 else (96 + 4*(n - 4) if n < 16 else 160 + 4*(n - 16))
def x_frags(a, i, kv=False):
    a(f"s_lshr_b32 s{T0}, s{S_HG}, 1")
    if not kv:
        a(f"""s_and_b32 s{T1}, s{S_W}, 2
s_add_u32 s{T0}, s{T0}, s{T1}
s_add_u32 s{T0}, s{T0}, {i}
s_and_b32 s{T0}, s{T0}, 3""")
    a(f"""s_lshl_b32 s{T0}, s{T0}, 11
s_add_u32 s{T1}, s{T0}, 40960
v_add_u32 v2, s{T0}, v{X_F0}
v_add_u32 v3, s{T0}, v{X_F1}
v_add_u32 v4, s{T1}, v{X_F0}
v_add_u32 v5, s{T1}, v{X_F1}""")
    for s in range(20):
        a(f"ds_read_b128 {vr(xf(i, s),4)}, v{2 + (s & 1) + 2*(s >= 10)} offset:{L_X + 8192*((s % 10) >> 1)}")

def finish_nonce(a, first=True):
    if first:
        a(f"s_waitcnt lgkmcnt(0)\ns_mul_i32 s{S_NONCE}, s{S_NONCE}, 0x9E3779B1\ns_add_u32 s{S_NONCE}, s{S_NONCE}, 0x7F4A7C15\nv_mov_b32 v{V_NON}, s{S_NONCE}")
    else:
        a(f"""s_waitcnt lgkmcnt(0)
s_cmp_eq_u32 s{S_W}, 4
s_cbranch_scc1 L_fn_done
s_mul_i32 s{S_NONCE}, s{S_NONCE}, 0x9E3779B1
s_add_u32 s{S_NONCE}, s{S_NONCE}, 0x7F4A7C15
v_mov_b32 v{V_NON}, s{S_NONCE}""")
        a.label("L_fn_done")

def kv_proj1(a, cfg):
    WR = 176; ACC = 200
    x_frags(a, 0, kv=True)
    def reads(s):
        b = WR + 8*(s % 3)
        for ct in range(2):
            for hf in range(2):
                a(f"ds_read_b64_tr_b16 {vr(b+4*ct+2*hf,2)}, v6 offset:{1280*s + 160*hf + 32*ct}")
    a(f"s_bitcmp1_b32 s{S_HG}, 0\ns_cbranch_scc1 L_kv_v")
    for kind in range(2):
        if kind: a.label("L_kv_v")
        reads(0); reads(1)
        for s in range(20):
            if s + 2 < 20: reads(s + 2)
            a(f"s_waitcnt lgkmcnt({4*min(2, 19 - s)})")
            b = WR + 8*(s % 3)
            for ct in range(2):
                A, B = vr(b+4*ct, 4), vr(xf(0, s), 4)
                if kind: A, B = B, A
                a(f"v_mfma_f32_16x16x32_bf16 {vr(ACC+4*ct,4)}, {A}, {B}, {vr(ACC+4*ct,4) if s else 0}")
        ev_signal(a, EV_TBL)
        a(f"""s_mul_i32 s{T0}, s{S_RB}, {BLK}
s_add_u32 s{T0}, s{T0}, {W_KV}
s_lshr_b32 s{T3}, s{S_HG}, 1
v_and_b32 v3, 15, v0
v_lshrrev_b32 v4, 4, v0""")
        if kind == 0:
            a(f"""s_lshr_b32 s{T1}, s{T3}, 1
s_lshl_b32 s{T1}, s{T1}, 10
s_and_b32 s{T2}, s{T3}, 1
s_lshl_b32 s{T2}, s{T2}, 8
s_add_u32 s{T1}, s{T1}, s{T2}
s_add_u32 s{T1}, s{T1}, s{T0}
v_lshrrev_b32 v5, 1, v4
v_lshlrev_b32 v5, 9, v5
v_lshl_add_u32 v5, v3, 4, v5
v_and_b32 v6, 1, v4
v_lshl_add_u32 v5, v6, 3, v5
s_lshl_b32 s{T2}, s{T3}, 7
s_add_u32 s{T2}, s{T2}, s{T0}
s_add_u32 s{T2}, s{T2}, 2048
v_lshlrev_b32 v6, 3, v3
v_cmp_gt_u32 vcc, 16, v0
s_mov_b32 s{T3}, {hx(f2u(LOG2E/math.sqrt(20.0)))}""")
            for j in range(8): a(f"v_mul_f32 v{ACC+j}, s{T3}, v{ACC+j}")
            a("s_branch L_kv_st")
        else:
            a(f"""s_mul_i32 s{T1}, s{T3}, 640
s_add_u32 s{T1}, s{T1}, s{T0}
s_add_u32 s{T1}, s{T1}, 2560
s_add_u32 s{T2}, s{T1}, 256
v_lshrrev_b32 v5, 1, v4
v_mul_u32_u24 v5, 320, v5
v_lshl_add_u32 v5, v3, 4, v5
v_and_b32 v6, 1, v4
v_lshl_add_u32 v5, v6, 3, v5
v_mov_b32 v6, v5
v_cmp_gt_u32 vcc, 4, v3""")
    a.label("L_kv_st")
    a(f"""v_cvt_pk_bf16_f32 v208, v{ACC}, v{ACC+1}
v_cvt_pk_bf16_f32 v209, v{ACC+2}, v{ACC+3}
v_cvt_pk_bf16_f32 v210, v{ACC+4}, v{ACC+5}
v_cvt_pk_bf16_f32 v211, v{ACC+6}, v{ACC+7}
buffer_store_dwordx2 v[208:209], v5, s[{SWS}:{SWS+3}], s{T1} offen sc1
s_and_saveexec_b64 s[{EX}:{EX+1}], vcc
buffer_store_dwordx2 v[210:211], v6, s[{SWS}:{SWS+3}], s{T2} offen sc1
s_mov_b64 exec, s[{EX}:{EX+1}]""")

def kv_proj(a, cfg):
    a("; ---- k|v projection")
    if KV1: return kv_proj1(a, cfg)
    WR = 176
    ACC = 200
    x_frags(a, 0, kv=True)
    def reads(s):
        b = WR + 4*(s % 4)
        for hf in range(2):
            a(f"ds_read_b64_tr_b16 {vr(b+2*hf,2)}, v6 offset:{1280*s + 160*hf}")
    a(f"s_bitcmp1_b32 s{S_HG}, 0\ns_cbranch_scc1 L_kv_v")
    for kind in range(2):
        if kind: a.label("L_kv_v")
        reads(0); reads(1); reads(2)
        for s in range(20):
            if s + 3 < 20: reads(s + 3)
            a(f"s_waitcnt lgkmcnt({2*min(3, 19 - s)})")
            b = WR + 4*(s % 4)
            A, B = vr(b, 4), vr(xf(0, s), 4)
            if kind: A, B = B, A
            a(f"v_mfma_f32_16x16x32_bf16 {vr(ACC,4)}, {A}, {B}, {vr(ACC,4) if s else 0}")
        ev_signal(a, EV_TBL)
        a(f"""s_mul_i32 s{T0}, s{S_RB}, {BLK}
s_add_u32 s{T0}, s{T0}, {W_KV}
s_lshr_b32 s{T3}, s{S_HG}, 1
v_and_b32 v3, 15, v0
v_lshrrev_b32 v4, 4, v0""")
        if kind == 0:
            a(f"""s_lshr_b32 s{T1}, s{T3}, 1
s_lshl_b32 s{T1}, s{T1}, 10
s_and_b32 s{T2}, s{T3}, 1
s_lshl_b32 s{T2}, s{T2}, 8
s_add_u32 s{T1}, s{T1}, s{T2}
s_add_u32 s{T1}, s{T1}, s{T0}
v_lshrrev_b32 v5, 1, v4
v_lshlrev_b32 v5, 9, v5
v_lshl_add_u32 v5, v3, 4, v5
v_and_b32 v6, 1, v4
v_lshl_add_u32 v5, v6, 3, v5
s_lshl_b32 s{T2}, s{T3}, 7
s_add_u32 s{T2}, s{T2}, s{T0}
s_add_u32 s{T2}, s{T2}, 2048
v_lshlrev_b32 v6, 3, v3
v_cmp_gt_u32 vcc, 16, v0
s_mov_b32 s{T3}, {hx(f2u(LOG2E/math.sqrt(20.0)))}
v_cvt_pk_bf16_f32 v{ACC}, v{ACC}, v{ACC+1}
v_cvt_pk_bf16_f32 v{ACC+2}, v{ACC+2}, v{ACC+3}
v_and_b32 v{ACC+1}, 0xffff0000, v{ACC}
v_lshlrev_b32 v{ACC}, 16, v{ACC}
v_and_b32 v{ACC+3}, 0xffff0000, v{ACC+2}
v_lshlrev_b32 v{ACC+2}, 16, v{ACC+2}
v_mul_f32 v{ACC}, s{T3}, v{ACC}
v_mul_f32 v{ACC+1}, s{T3}, v{ACC+1}
v_mul_f32 v{ACC+2}, s{T3}, v{ACC+2}
v_mul_f32 v{ACC+3}, s{T3}, v{ACC+3}""")
        else:
            a(f"""s_mul_i32 s{T1}, s{T3}, 640
s_add_u32 s{T1}, s{T1}, s{T0}
s_add_u32 s{T1}, s{T1}, 2560
s_add_u32 s{T2}, s{T1}, 256
v_lshrrev_b32 v5, 1, v4
v_mul_u32_u24 v5, 320, v5
v_lshl_add_u32 v5, v3, 4, v5
v_and_b32 v6, 1, v4
v_lshl_add_u32 v5, v6, 3, v5
v_mov_b32 v6, v5
v_cmp_gt_u32 vcc, 4, v3""")
        if kind == 0: a("s_branch L_kv_st")
    a.label("L_kv_st")
    a(f"""v_cvt_pk_bf16_f32 v208, v{ACC}, v{ACC+1}
v_cvt_pk_bf16_f32 v209, v{ACC+2}, v{ACC+3}
s_cmp_lg_u32 s{S_W}, 0
s_cbranch_scc1 L_kv_st1
buffer_store_dwordx2 v[208:209], v5, s[{SWS}:{SWS+3}], s{T1} offen sc1
s_branch L_kv_done""")
    a.label("L_kv_st1")
    a(f"""s_and_saveexec_b64 s[{EX}:{EX+1}], vcc
buffer_store_dwordx2 v[208:209], v6, s[{SWS}:{SWS+3}], s{T2} offen sc1
s_mov_b64 exec, s[{EX}:{EX+1}]""")
    a.label("L_kv_done")

def cmul(a, d, x, y, t):
    a(f"v_pk_mul_f32 {vr(t,2)}, {vr(x,2)}, {vr(y,2)} op_sel:[0,0] op_sel_hi:[0,1]")
    return f"v_pk_fma_f32 {vr(d,2)}, {vr(x,2)}, {vr(y,2)}, {vr(t,2)} op_sel:[1,1,0] op_sel_hi:[1,0,1] neg_lo:[1,0,0]"
def cmul_multi(a, items, tmps):
    for k in range(0, len(items), len(tmps)):
        grp = items[k:k+len(tmps)]
        second = [cmul(a, d, x, y, t) for (d, x, y), t in zip(grp, tmps)]
        for s in second: a(s)

LOG2E = 1.4426950408889634
def acc_exp(a, d, x, t):
    a(f"""v_mul_f32 v{t}, s{S_C1}, {x}
v_fma_f32 v{t+1}, {x}, s{S_C1}, -v{t}
v_fma_f32 v{t+1}, {x}, s{S_C2}, v{t+1}
v_exp_f32 v{t}, v{t}
v_fma_f32 v{t+1}, v{t+1}, s{S_C3}, 1.0
v_mul_f32 v{d}, v{t}, v{t+1}""")

KP = 56
def kgen_loads(a):
    chan_w(a, T2)
    a(f"""s_lshl_b32 s{T3}, s{T2}, 8
v_lshlrev_b32 v2, 2, v0""")
    for i, p in enumerate((P_LAR, P_AIM, P_CR, P_CI)):
        srd(a, SB, p, 640*256)
        a(f"buffer_load_dword v{KP+i}, v2, s[{SB}:{SB+3}], s{T3} offen {PNT}")
    a(f"""s_lshl_b32 s{T3}, s{T2}, 1
s_and_b32 s{T3}, s{T3}, 0xfffffffc
s_load_dword s{S_LDT}, s[{P_LDT}:{P_LDT+1}], s{T3}
s_and_b32 s35, s{T2}, 1
s_lshl_b32 s35, s35, 4""")

K_ACC = 170; K_DT = 182; K_AW = 8; K_AR = 12
def kgen_pre(a):
    hi = f2u(LOG2E); lo = f2u(LOG2E - struct.unpack("<f", struct.pack("<I", hi))[0])
    a(f"""s_mov_b32 s{S_C1}, {hx(hi)}
s_mov_b32 s{S_C2}, {hx(lo)}
s_mov_b32 s{S_C3}, {hx(f2u(math.log(2)))}
s_mov_b32 s{S_C4}, {hx(f2u(1/(2*math.pi)))}
s_sub_u32 s{T2}, s{S_W}, 5
s_mul_i32 s{T3}, s{T2}, {SCR_SZ}
s_add_u32 s{T3}, s{T3}, {L_SCR}
v_lshl_add_u32 v{K_AW}, v0, 2, s{T3}
v_add_u32 v{K_AW+1}, 1088, v{K_AW}
v_add_u32 v{K_AW+2}, 2176, v{K_AW}
v_add_u32 v{K_AW+3}, 3264, v{K_AW}
v_and_b32 v4, 15, v0
v_mul_u32_u24 v4, 272, v4
v_lshrrev_b32 v5, 4, v0
v_lshl_add_u32 v4, v5, 4, v4
v_add_u32 v{K_AR}, s{T3}, v4
s_lshr_b32 s{S_LDT}, s{S_LDT}, s35
s_lshl_b32 s{S_LDT}, s{S_LDT}, 16
v_mov_b32 v6, s{S_LDT}""")
    acc_exp(a, K_DT, "v6", 4)
    a(f"v_cvt_pk_bf16_f32 v{K_DT}, v{K_DT}, v{K_DT}\nv_lshlrev_b32 v{K_DT}, 16, v{K_DT}")

class Spread:
    def __init__(s, a, gap): s.a = a; s.gap = gap; s.q = []; s.n = 0
    def __call__(s, text):
        for l in text.split("\n"):
            if not l.strip(): continue
            s.a(l)
            if l.strip().startswith("ds_"):
                for it in s.q: it[1] += 1
            s.n += 1
            if s.q and s.n >= s.gap: s.one()
    def label(s, n): s.a.label(n)
    def one(s):
        ins, after = s.q.pop(0)
        s.a(f"s_waitcnt lgkmcnt({min(15, after)})\n{ins}"); s.n = 0
    def defer(s, items, first_gap):
        s.q += [[ins, len(items) - 1 - k] for k, ins in enumerate(items)]; s.n = s.gap - first_gap
    def drain(s):
        while s.q: s.one()

def kgen_round(a, rnd, hook=None):
    W1, W2, V8, V2, WW = 60, 62, 64, 66, 68
    G = 70
    FA, FB = 86, 88
    TM = [90, 92, 94, 96]
    PK = 98
    BF = 104; AF = 120; ACC = K_ACC
    DT, ER, TH = K_DT, K_DT+1, K_DT+2
    for i in range(4): a(f"v_lshlrev_b32 v{PK+i}, 16, v{KP+i}" if rnd == 0 else f"v_and_b32 v{PK+i}, 0xffff0000, v{KP+i}")
    acc_exp(a, ER, f"v{PK}", 4)
    a(f"""v_cvt_pk_bf16_f32 v{ER}, v{ER}, v{ER}
v_mul_f32 v{TH}, v{PK+1}, v{DT}
v_lshlrev_b32 v{ER}, 16, v{ER}
v_mul_f32 v{G}, v{PK+2}, v{DT}
v_mul_f32 v{ER}, v{ER}, v{DT}
v_mul_f32 v{G+1}, v{PK+3}, v{DT}
v_mul_f32 v{ER}, s{S_C1}, -v{ER}
v_mul_f32 v{TH}, s{S_C4}, v{TH}
v_add_f32 v{G}, v{G}, v{G}
v_add_f32 v{G+1}, v{G+1}, v{G+1}
v_mul_f32 v{TM[1]}, 0x41000000, v{ER}
v_mul_f32 v{TM[1]+1}, 0x41000000, v{TH}
v_mul_f32 v{TM[2]}, 0x43000000, v{ER}
v_mul_f32 v{TM[2]+1}, 0x43000000, v{TH}
v_fract_f32 v{TM[0]+1}, v{TH}
v_fract_f32 v{TM[1]+1}, v{TM[1]+1}
v_fract_f32 v{TM[2]+1}, v{TM[2]+1}
v_exp_f32 v{TM[0]}, v{ER}
v_exp_f32 v{TM[1]}, v{TM[1]}
v_exp_f32 v{TM[2]}, v{TM[2]}""")
    for k, dst in enumerate((W1, V8, WW)): a(f"v_cos_f32 v{dst}, v{TM[k]+1}\nv_sin_f32 v{dst+1}, v{TM[k]+1}")
    a(f"v_mov_b32 v{PK}, 0x3f80")
    for k, dst in enumerate((W1, V8, WW)): a(f"v_pk_mul_f32 {vr(dst,2)}, {vr(dst,2)}, {vr(TM[k],2)} op_sel_hi:[1,0]")
    pk = [1]; pend = [(0, PK)]
    def flush():
        if pend:
            row, r = pend.pop()
            a(f"ds_write_b32 v{K_AW + (row >> 2)}, v{r} offset:{272*(row & 3)}")
    def put(row, src, neg):
        r = PK + (pk[0] % 6); pk[0] += 1
        a(f"v_cvt_pk_bf16_f32 v{r}, v{src}, {'-' if neg else ''}v{src+1}")
        if pend and pend[0][0] >> 2 == row >> 2:
            row0, r0 = pend.pop()
            a(f"ds_write2_b32 v{K_AW + (row >> 2)}, v{r0}, v{r} offset0:{68*(row0 & 3)} offset1:{68*(row & 3)}")
        else:
            flush(); pend.append((row, r))
    cmul_multi(a, [(W2, W1, W1), (V2, V8, V8), (G+2, G, W1)], TM)
    put(1, V8, True); put(2, V2, True)
    fa, fb = V8, V2
    for k in range(7):
        items = [(FA, fa, V2)]
        if k < 6: items.append((FB, fb, V2))
        if k < 3: items += [(G+4+4*k, G+4*k, W2), (G+6+4*k, G+2+4*k, W2)]
        cmul_multi(a, items, TM)
        put(3+2*k, FA, True)
        if k < 6: put(4+2*k, FB, True)
        fa, fb = FA, FB
    flush()
    a.drain()
    for ks in range(4): a(f"ds_read_b128 {vr(BF+4*ks,4)}, v{K_AR} offset:{64*ks}")
    if hook: hook()
    def tile(T):
        flush()
        a.drain()
        for ks in range(4): a(f"ds_read_b128 {vr(AF+4*ks,4)}, v{K_AR} offset:{64*ks}")
        a.defer([f"v_mfma_f32_16x16x32_bf16 {vr(ACC+4*T,4)}, {vr(AF+4*ks,4)}, {vr(BF+4*ks,4)}, {vr(ACC+4*T,4) if ks or rnd else 0}" for ks in range(4)], KGAP0)
    def mm(T): pass
    for g in range(8): put(g, G+2*g, False)
    cmul_multi(a, [(G+2*g, G+2*g, WW) for g in range(8)], TM)
    for g in range(8): put(8+g, G+2*g, False)
    tile(0)
    ev = [0, 2, 4, 6]
    cmul_multi(a, [(G+2*g, G+2*g, WW) for g in ev], TM)
    mm(0)
    for i, g in enumerate(ev): put(i, G+2*g, False)
    cmul_multi(a, [(G+2*g, G+2*g, WW) for g in ev], TM)
    for i, g in enumerate(ev): put(4+i, G+2*g, False)
    for al in range(4):
        cmul_multi(a, [(G, G, WW), (G+8, G+8, WW)], TM)
        put(8+2*al, G, False); put(9+2*al, G+8, False)
    tile(1)
    cmul_multi(a, [(G, G, WW), (W2, WW, WW)], TM)
    mm(1)
    cmul_multi(a, [(G+2, G, WW)], TM)
    put(0, G, False); put(1, G+2, False)
    for k in range(1, 4):
        cmul_multi(a, [(G, G, W2), (G+2, G+2, W2)], TM)
        put(2*k, G, False); put(2*k+1, G+2, False)
    cmul_multi(a, [(G, G, W2)], TM)
    put(8, G, False)
    tile(2)
    mm(2)

def kgen_table(a):
    a("; ---- tap table")
    PK = 98; ACC = K_ACC
    a(f"""s_sub_u32 s{T2}, s{S_W}, 5
s_mul_i32 s{T3}, s{T2}, {TBL_SZ}
s_add_u32 s{T3}, s{T3}, {L_TBL}
v_and_b32 v4, 15, v0
v_lshrrev_b32 v5, 4, v0
v_lshrrev_b32 v6, 1, v5
v_and_b32 v7, 1, v5
v_lshlrev_b32 v8, 8, v6
v_lshl_add_u32 v8, v7, 3, v8
v_lshl_add_u32 v8, v4, 4, v8
v_add_u32 v8, s{T3}, v8
v_lshlrev_b32 v9, 7, v5
v_lshl_add_u32 v9, v4, 3, v9
v_add_u32 v10, 4, v9
v_lshlrev_b32 v11, 7, v7
v_lshl_add_u32 v11, v4, 2, v11
v_add_u32 v11, 256, v11
v_add_u32 v12, 64, v11
v_cmp_lt_u32 vcc, 1, v5
v_lshlrev_b32 v13, 7, v5
v_lshl_add_u32 v13, v4, 1, v13
v_cndmask_b32 v9, v9, v11, vcc
v_cndmask_b32 v10, v10, v12, vcc
v_add_u32 v13, s{T3}, v13
v_add_u32 v9, s{T3}, v9
v_add_u32 v10, s{T3}, v10
v_mov_b32 v2, 0
v_mov_b32 v3, 0
v_mov_b32 v4, s{T3}""")
    a.drain()
    chan_w(a, T0)
    a(f"""s_and_b32 s{T0}, s{T0}, 1
s_lshl_b32 s{T0}, s{T0}, 4
s_lshr_b32 s{S_D0}, s{S_D0}, s{T0}
s_lshl_b32 s{S_D0}, s{S_D0}, 16
s_mov_b64 exec, 1
v_add_f32 v{ACC}, s{S_D0}, v{ACC}
s_mov_b64 exec, -1""")
    for i in range(6): a(f"v_cvt_pk_bf16_f32 v{PK+i}, v{ACC+2*i}, v{ACC+2*i+1}")
    a(f"""ds_write_b64 v4, v[2:3]
ds_write_b64 v8, v[{PK}:{PK+1}] offset:8
ds_write_b32 v9, v{PK+2} offset:{8+512}
ds_write_b32 v10, v{PK+3} offset:{8+512}
ds_write_b16 v13, v{PK+4} offset:{8+1024}
ds_write_b16_d16_hi v13, v{PK+4} offset:{8+1024+32}
ds_write_b16 v13, v{PK+5} offset:{8+1024+64}
ds_write_b16_d16_hi v13, v{PK+5} offset:{8+1024+96}""")

def expand_index(a):
    AD = EXI; E = 60; LF = 66
    a(f"""s_sub_u32 s{T2}, s{S_W}, 4
s_lshl_b32 s{T3}, s{T2}, 9
s_sub_u32 s{T3}, 2048, s{T3}
v_lshlrev_b32 v4, 3, v0
v_sub_u32 v4, s{T3}, v4
v_cvt_f32_u32 v5, v4
s_mov_b32 s{T4}, {hx(L_TBL + 8 - 2*17024)}
s_mov_b32 s{T5}, {L_TBL + 8 + 256}
v_lshlrev_b32 v6, 1, v4
v_add_u32 v6, {L_TBL + 8}, v6""")
    for e in range(12):
        a(f"v_subrev_f32 v{LF+e}, {hx(f2u(float(e)))}, v5")
        if e >= 9: a(f"v_max_f32 v{LF+e}, 0, v{LF+e}")
    for k in range(6): a(f"v_cvt_pk_bf16_f32 v{E+k}, v{LF+2*k}, v{LF+2*k+1}")
    for e in range(12):
        a(f"v_mad_u32_u16 v{AD+e}, v{E+(e>>1)}, 2, s{T4} op_sel:[{e&1},0,0,0]")
        a(f"v_subrev_u32 v{LF+e}, {2*e}, v6")
    for e in range(12): a(f"v_med3_i32 v{AD+e}, v{AD+e}, v{LF+e}, s{T5}")

def expand(a, cfg):
    a("; ---- four shifted copies of the reversed taps")
    AD = EXI; O = 96
    E = lambda c: 60 + 12*c
    a(f"""s_sub_u32 s{T2}, s{S_W}, 4
s_lshl_b32 s{T3}, s{T2}, 10
s_add_u32 s{T3}, s{T3}, {L_CP}
v_add_u32 v4, s{T3}, v1""")
    for c in range(3):
        for e in range(12):
            a(f"ds_read_u16{'_d16_hi' if e & 1 else ''} v{E(c) + 6*(e & 1) + (e >> 1)}, v{AD+e} offset:{c*TBL_SZ}")
    for c in range(3):
        b = E(c)
        if not EXP128: a(f"v_add_u32 v5, {c*CP_CH + 2*CP_C}, v4\nv_add_u32 v6, {c*CP_CH + 3*CP_C}, v4")
        a(f"s_waitcnt lgkmcnt({min(15, 12*(2-c) + (4 if EXP128 else 6)*c)})")
        if not EXP128:
            for k in range(6): a(f"v_or_b32 v{b+k}, v{b+k}, v{b+6+k}")
            for k in range(5): a(f"v_alignbit_b32 v{O+k}, v{b+k+1}, v{b+k}, 16")
            a(f"""ds_write_b128 v4, {vr(b,4)} offset:{c*CP_CH}
ds_write2_b32 v5, v{b+1}, v{b+2} offset0:0 offset1:1
ds_write2_b32 v5, v{b+3}, v{b+4} offset0:2 offset1:3
ds_write_b128 v4, {vr(O,4)} offset:{c*CP_CH + CP_C}
ds_write2_b32 v6, v{O+1}, v{O+2} offset0:0 offset1:1
ds_write2_b32 v6, v{O+3}, v{O+4} offset0:2 offset1:3""")
        else:
            Y = 136; O1 = 140; O3 = 156
            for k in range(4): a(f"v_or_b32 v{Y+k}, v{b+k+1}, v{b+7+k}")
            for k in range(6): a(f"v_or_b32 v{b+k}, v{b+k}, v{b+6+k}")
            a(f"ds_write_b128 v4, {vr(Y,4)} offset:{c*CP_CH + 2*CP_C}")
            for k in range(4): a(f"v_alignbit_b32 v{O1+k}, v{b+k+1}, v{b+k}, 16")
            a(f"ds_write_b128 v4, {vr(b,4)} offset:{c*CP_CH}")
            for k in range(4): a(f"v_alignbit_b32 v{O3+k}, v{b+k+2}, v{b+k+1}, 16")
            a(f"ds_write_b128 v4, {vr(O1,4)} offset:{c*CP_CH + CP_C}\nds_write_b128 v4, {vr(O3,4)} offset:{c*CP_CH + 3*CP_C}")
    a(f"""s_cmp_lg_u32 s{S_W}, 5
s_cbranch_scc1 L_exp_done
v_lshrrev_b32 v5, 3, v0
v_mul_u32_u24 v6, {CP_CH}, v5
v_bfe_u32 v7, v0, 1, 2
v_mul_u32_u24 v7, {CP_C}, v7
v_and_b32 v8, 1, v0
v_lshl_add_u32 v7, v8, 4, v7
v_add_u32 v6, v6, v7
v_add_u32 v6, {L_CP + 4096}, v6
v_mov_b32 v8, 0
v_mov_b32 v9, 0
v_mov_b32 v10, 0
v_mov_b32 v11, 0
v_mul_u32_u24 v12, {TBL_SZ}, v0
v_add_u32 v12, {L_TBL + 8}, v12
v_mul_u32_u24 v13, {CP_CH}, v0
s_mov_b64 exec, 7
ds_read_u16 v12, v12
s_mov_b64 exec, 0xffffff
ds_write_b128 v6, v[8:11]
s_mov_b64 exec, 7
v_add_u32 v13, {L_CP + 4096}, v13
s_waitcnt lgkmcnt(0)
ds_write_b16 v13, v12
s_mov_b64 exec, -1""")
    a.label("L_exp_done")

def q_side(a, cfg):
    a("; ---- waves 0..3: loads, k|v projection, q projection")
    a(f"""s_setprio 2
s_waitcnt lgkmcnt(0)
s_load_dword s{S_NONCE}, s[{P_WS}:{P_WS+1}], {W_NONCE}""")
    srd(a, SA, P_X, 2048*1280)
    crit_loads(a)
    stamp(a, cfg, 0)
    rest_x(a, "lo")
    srd(a, SWS, P_WS, WS_SZ)
    q_addrs(a)
    a(f"s_bitcmp1_b32 s{S_W}, 0\ns_cbranch_scc1 L_q_wa1")
    wq_items(a, 16, 4, True).flush(a)
    a("s_branch L_q_wa2")
    a.label("L_q_wa1")
    wq_items(a, 16, 4, False).flush(a)
    a.label("L_q_wa2")
    stamp(a, cfg, 22)
    conv_addrs(a, False)
    finish_nonce(a)
    a(f"""v_lshrrev_b32 v6, 4, v0
v_lshlrev_b32 v6, 3, v6
v_bfe_u32 v7, v0, 2, 2
v_add_u32 v6, v6, v7
v_mul_u32_u24 v6, 40, v6
v_and_b32 v7, 3, v0
v_lshl_add_u32 v6, v7, 3, v6
s_lshl_b32 s{T0}, s{S_W}, 4
s_add_u32 s{T0}, s{T0}, {L_WK}
v_add_u32 v6, s{T0}, v6
s_bitcmp1_b32 s{S_W}, 0
s_cbranch_scc1 L_q_wb1
s_waitcnt vmcnt(21)
s_branch L_q_wb2""")
    a.label("L_q_wb1")
    a("s_waitcnt vmcnt(19)")
    a.label("L_q_wb2")
    ev_signal(a, EV_CRIT)
    a(f"s_setprio {KVPRIO}")
    stamp(a, cfg, 24)
    a(f"s_bitcmp1_b32 s{S_W}, 0\ns_cbranch_scc1 L_q_odd")
    if KV1: a(f"s_cmp_eq_u32 s{S_W}, 2\ns_cbranch_scc1 L_q_w2")
    ev_wait(a, EV_CRIT, 0x0f)
    stamp(a, cfg, 1)
    kv_proj(a, cfg)
    a(f"s_waitcnt vmcnt({7 + KV1})")
    ev_signal(a, EV_X)
    a("s_branch L_q_tail")
    if KV1:
        a.label("L_q_w2")
        a("s_waitcnt vmcnt(6)")
        ev_signal(a, EV_X)
        a("s_branch L_q_tail")
    a.label("L_q_odd")
    a("s_waitcnt vmcnt(4)")
    ev_signal(a, EV_X)
    if PF2:
        srd(a, SB, P_WQ, 512*1280)
        a(f"""s_mul_i32 s{T0}, s{S_J}, 20480
s_lshr_b32 s{T1}, s{S_W}, 1
s_mul_i32 s{T1}, s{T1}, 10240
s_add_u32 s{T0}, s{T0}, s{T1}""")
        for i in range(10):
            if i in (4, 8): a(f"s_add_u32 s{T0}, s{T0}, 4096")
            a(f"buffer_load_dwordx4 v[204:207], v1, s[{SB}:{SB+3}], s{T0} offen offset:{1024*(i & 3)}")
    a.label("L_q_tail")
    a("s_setprio 0")
    if not TAQ: tail_addrs(a.sub("q"))
    a("; CUT q_main")
    ev_wait(a, EV_X, 0x0f)
    stamp(a, cfg, 2)
    x_frags(a, 0)
    x_frags(a, 1)
    if PF2:
        a(f"s_bitcmp1_b32 s{S_W}, 0\ns_cbranch_scc1 L_q_fr1\ns_waitcnt vmcnt(0) lgkmcnt(0)\ns_branch L_q_fr2")
        a.label("L_q_fr1")
        a("s_waitcnt vmcnt(10) lgkmcnt(0)")
        a.label("L_q_fr2")
    else:
        a("s_waitcnt vmcnt(0) lgkmcnt(0)")
    ev_signal(a, EV_FR)
    a(f"s_cmp_lg_u32 s{S_W}, 0\ns_cbranch_scc1 L_q_nokv0")
    ev_wait(a, EV_FR, 0x0f)
    a(f"""v_lshlrev_b32 v3, 10, v0
s_lshl_b32 s{T0}, s2, 2
s_add_u32 s{T0}, s{T0}, {W_FKV}
s_mov_b64 exec, 0xff
buffer_store_dword v{V_NON}, v3, s[{SWS}:{SWS+3}], s{T0} offen sc1
s_mov_b64 exec, -1
s_branch L_q_go""")
    a.label("L_q_nokv0")
    ev_wait(a, EV_FR, 0x0f)
    a.label("L_q_go")
    a(f"s_setprio {QPRIO}")
    stamp(a, cfg, 26)
    ACC = 200
    RING = [176, 188, 16, 28]
    a(f"s_bitcmp1_b32 s{S_W}, 0\ns_cbranch_scc1 L_q_three")
    for nct in (2, 3):
        if nct == 3: a.label("L_q_three")
        dma = wq_items(a, 0, 16, nct == 2)
        a(f"v_add_u32 v6, 51200, v{A_WQ}")
        for grp, (n0, n1) in enumerate(((0, 4), (4, 12), (12, 20))):
            depth = 1 if grp == 0 else 2
            ring = RING[:2] if grp == 0 else [RING[0], RING[1], 16 if nct == 3 else 16]
            slot = lambda n: ring[(n - n0) % (depth + 1)]
            def reads(n, ct):
                s = ORDER[n]; b = slot(n) + 4*ct
                base, off = (A_WQ, 5120*s) if s < 10 else (6, 5120*(s - 10))
                return [f"ds_read_b64_tr_b16 {vr(b+2*hf,2)}, v{base} offset:{off + 1280*hf + 32*ct}" for hf in range(2)]
            if grp == 1:
                a("s_waitcnt lgkmcnt(0)")
                ev_signal(a, EV_WQA)
                if UDMA:
                    ev_wait(a, EV_WQA, 0x1f)
                    a(f"s_lshl_b32 s{T3}, s{S_W}, 10")
                    for c in range(3):
                        chan(a, T1, c)
                        a(f"""s_lshl_b32 s{T1}, s{T1}, 12
s_add_u32 s{T1}, s{T1}, s{T3}
s_add_u32 m0, s{T3}, {L_UT + 512 + UT_CH*UPOS[c]}
s_add_u32 s{T1}, s{T1}, {W_UT}
buffer_load_dwordx4 v1, s[{SWS}:{SWS+3}], s{T1} offen sc1 lds""")
                dma.flush(a)
                stamp(a, cfg, 3)
                attn_init(a)
                if TAQ: tail_addrs(a.sub(f"q{nct}"))
            if grp >= 1:
                a(f"s_waitcnt vmcnt({(12 if nct == 2 else 8)*(2-grp)})")
                if grp == 2 and nct == 2:
                    a(f"s_cmp_lg_u32 s{S_W}, 2\ns_cbranch_scc1 L_q_kvok")
                    poll(a, "kv", 7, 4, 208 + 12, pre=True)
                    a.label("L_q_kvok")
                ev_signal(a, EV_WQ + grp - 1)
                ev_wait(a, EV_WQ + grp - 1, 0x0f if grp == 1 else 0xff)
                if grp == 1 and nct == 2:
                    a(f"""s_cmp_lg_u32 s{S_W}, 2
s_cbranch_scc1 L_q_nopoll
s_lshl_b32 s{T0}, s{S_XCD}, 10
s_add_u32 s{T0}, s{T0}, {W_FKV}
v_add_u32 v7, s{T0}, v1
buffer_load_dwordx4 v[220:223], v7, s[{SWS}:{SWS+3}], 0 offen sc1""")
                    a.label("L_q_nopoll")
                if grp == 2:
                    a(f"""s_lshl_b32 s{S_DM}, s{S_W}, 10
s_add_u32 s{S_DO}, s{S_DM}, {W_KV}""")
                    dma = Dma([f"s_mov_b32 m0, s{S_DM}\ns_add_u32 s{S_DM}, s{S_DM}, 4096\nbuffer_load_dwordx4 v1, s[{SWS}:{SWS+3}], s{S_DO} offen sc1 lds\ns_add_u32 s{S_DO}, s{S_DO}, 4096"] * 10)
            if grp == 2: stamp(a, cfg, 25)
            for d in range(depth):
                for ct in range(nct):
                    for r in reads(n0 + d, ct): a(r)
            for n in range(n0, n1):
                s = ORDER[n]; b = slot(n)
                for ct in range(nct):
                    after = 2*(nct - 1 - ct)
                    for m in range(n + 1, n + depth):
                        if m < n1: after += 2*nct
                    if n + depth < n1: after += 2*ct
                    a(f"s_waitcnt lgkmcnt({after})")
                    for i in range(2):
                        acc = ACC + 12*i + 4*ct
                        a(f"v_mfma_f32_16x16x32_bf16 {vr(acc,4)}, {vr(b+4*ct,4)}, {vr(xf(i, s),4)}, {vr(acc,4) if n else 0}")
                        if grp == 0 and i == 0 and (n*nct + ct) < G0DMA: dma.pop(a)
                        if grp == 2 and i == 0 and ct < 2: dma.pop(a)
                    if n + depth < n1:
                        for r in reads(n + depth, ct): a(r)
        stamp(a, cfg, 6)
        a(f"s_setprio {Q2PRIO}")
        a("s_nop 7")
        for i in range(2):
            for ct in range(nct):
                acc = ACC + 12*i + 4*ct
                a(f"v_cvt_pk_bf16_f32 v{acc}, v{acc}, v{acc+1}\nv_cvt_pk_bf16_f32 v{acc+1}, v{acc+2}, v{acc+3}")
                a(f"ds_write_b64 v{Q_W}, {vr(acc,2)} offset:{2560*i + 32*ct}")
        if nct == 2: a("s_branch L_q_kv")
    a.label("L_q_kv")
    stamp(a, cfg, 7)
    a("s_waitcnt vmcnt(0) lgkmcnt(0)")
    ev_signal(a, EV_QD)
    if cfg.nonce_update:
        a(f"""s_or_b32 s{T2}, s2, s{S_W}
s_cmp_lg_u32 s{T2}, 0
s_cbranch_scc1 L_q_nn
v_mov_b32 v2, {W_NONCE}
s_mov_b64 exec, 1
buffer_store_dword v{V_NON}, v2, s[{SWS}:{SWS+3}], 0 offen
s_mov_b64 exec, -1""")
        a.label("L_q_nn")
    a("s_setprio 0")
    ev_wait(a, EV_QD, 0x0f)
    q_reads(a)
    attn_first(a, False)

def k_side(a, cfg):
    a("; ---- waves 4..7: taps, u tile, convolution")
    UT2 = [104, 120, 198]
    a(f"""s_setprio {K0PRIO}
s_cmp_eq_u32 s{S_W}, 4
s_cbranch_scc1 L_k_u
s_waitcnt lgkmcnt(0)
s_load_dword s{S_NONCE}, s[{P_WS}:{P_WS+1}], {W_NONCE}""")
    kgen_loads(a)
    a(f"s_load_dword s{S_D0}, s[{P_DSK}:{P_DSK+1}], s{T3}\ns_setprio {KAPRIO}")
    if PF3:
        a(f"s_cmp_lg_u32 s{S_W}, {PF3}\ns_cbranch_scc1 L_k_nopf3")
        srd(a, SB, P_WQ, 512*1280)
        a(f"s_mul_i32 s{T0}, s2, 2560")
        for i in range(3):
            if i == 2: a("s_mov_b32 exec_hi, 0")
            a(f"buffer_load_dwordx4 v[204:207], v1, s[{SB}:{SB+3}], s{T0} offen offset:{1024*i}")
        a("s_mov_b32 exec_hi, -1")
        a.label("L_k_nopf3")
    if PF:
        srd(a, SB, P_WQ, 512*1280)
        a(f"""s_mul_i32 s{T0}, s{S_J}, 20480
s_sub_u32 s{T1}, s{S_W}, 5
s_mul_i32 s{T1}, s{T1}, 7168
s_add_u32 s{T0}, s{T0}, s{T1}
s_add_u32 s{T1}, s{T0}, 4096""")
        for i in range(7):
            a(f"buffer_load_dwordx4 v[200:203], v1, s[{SB}:{SB+3}], s{T0 if i < 4 else T1} offen offset:{1024*(i & 3)}")
    a.label("L_k_nopf")
    srd(a, SWS, P_WS, WS_SZ)
    a("s_call_b64 s[92:93], L_sub_kaddr")
    stamp(a, cfg, 22)
    kgen_pre(a)
    a("; CUT k_gen")
    a(f"s_setprio {KPRIO}\ns_waitcnt vmcnt({7 if PF else 0})")
    stamp(a, cfg, 24)
    sp = Spread(a, KGAP)
    kgen_round(sp, 0)
    if not cfg.few: stamp(a, cfg, 1)
    kgen_round(sp, 1)
    kgen_table(sp)
    a("s_branch L_k_done")
    a("; CUT u_early")
    a.label("L_k_u")
    for i in range(5): div10_offsets(a, 8+i, None, 64*i, 2, False)
    a(f"s_waitcnt lgkmcnt(0)\ns_load_dword s{S_NONCE}, s[{P_WS}:{P_WS+1}], {W_NONCE}")
    srd(a, SB, P_U, 2048*1280)
    a(f"""s_mul_i32 s{T2}, s{S_J}, {64*1280}
s_mul_i32 s{T3}, s{S_XCD}, 160
s_add_u32 s{T2}, s{T2}, s{T3}
s_add_u32 s{T3}, s{T2}, 40960
s_mov_b32 m0, {L_UST}
s_nop 0""")
    for i in range(10):
        a(f"buffer_load_dwordx4 v{8+i%5}, s[{SB}:{SB+3}], s{T2 if i < 5 else T3} offen {UNT} lds")
        if i < 9: a(f"s_add_u32 m0, m0, 1024\ns_nop 0")
    srd(a, SWS, P_WS, WS_SZ)
    stamp(a, cfg, 22)
    a(f"""s_lshl_b32 s{T0}, s{S_W}, 2
s_add_u32 s{T0}, s{T0}, {L_EV}
v_mov_b32 v{E_W}, s{T0}
v_and_b32 v2, 3, v0
v_lshrrev_b32 v3, 4, v0
v_lshl_add_u32 v2, v3, 2, v2
v_and_b32 v3, 7, v2
v_lshrrev_b32 v4, 3, v2
v_bfe_u32 v5, v0, 2, 2
v_lshl_add_u32 v5, v3, 3, v5
v_mul_u32_u24 v5, 160, v5
v_lshl_add_u32 v5, v4, 3, v5
v_add_u32 v5, {L_UST}, v5
v_and_b32 v2, 3, v0
v_lshl_add_u32 v6, v4, 2, v2
v_bfe_u32 v3, v0, 2, 3
v_xor_b32 v7, v3, v6
v_lshlrev_b32 v6, 7, v6
v_lshl_add_u32 v6, v7, 4, v6
v_add_u32 v6, {L_UST}, v6
v_lshrrev_b32 v7, 3, v0
v_and_b32 v3, 7, v0
v_xor_b32 v3, v3, v7
v_lshlrev_b32 v7, 12, v7
v_lshl_add_u32 v7, v3, 4, v7
v_add_u32 v8, {L_UST}, v1
s_mul_i32 s{T2}, s{S_XCD}, {80*4096}
s_lshl_b32 s{T3}, s{S_J}, 7
s_add_u32 s{T2}, s{T2}, s{T3}
s_add_u32 s{T2}, s{T2}, {W_UT}""")
    finish_nonce(a)
    a("s_waitcnt vmcnt(0)")
    stamp(a, cfg, 24)
    UR = 60
    for i in range(10):
        for hf in range(2):
            a(f"ds_read_b64_tr_b16 {vr(UR+4*i+2*hf,2)}, v5 offset:{16*i + 640*hf}")
    a("s_waitcnt lgkmcnt(0)")
    for i in range(10): a(f"ds_write_b128 v6, {vr(UR+4*i,4)} offset:{1024*i}")
    for i in range(10): a(f"ds_read_b128 {vr(UR+40+4*i,4)}, v8 offset:{1024*i}")
    for k in range(10):
        a(f"s_waitcnt lgkmcnt({9-k})\nbuffer_store_dwordx4 {vr(UR+40+4*k,4)}, v7, s[{SWS}:{SWS+3}], s{T2} offen sc1\ns_add_u32 s{T2}, s{T2}, 32768")
    ev_signal(a, EV_TBL)
    stamp(a, cfg, 1)
    a(f"""s_lshl_b32 s{T0}, s{S_XCD}, 8
s_lshl_b32 s{T2}, s{S_J}, 2
s_add_u32 s{T0}, s{T0}, s{T2}
s_add_u32 s{T0}, s{T0}, {W_FU}
v_mov_b32 v7, 0
s_waitcnt vmcnt(0)
s_mov_b64 exec, 1
buffer_store_dword v{V_NON}, v7, s[{SWS}:{SWS+3}], s{T0} offen sc1
s_mov_b64 exec, -1
s_setprio 0""")
    a("; CUT u_main")
    a("s_call_b64 s[92:93], L_sub_kaddr")
    ev_wait(a, UEV, UMASK)
    a(f"""s_lshl_b32 s{T0}, s{S_XCD}, 8
s_add_u32 s{T0}, s{T0}, {W_FU}
v_lshl_add_u32 v3, v0, 2, s{T0}""")
    poll(a, "u", 3, 1, 4, lanes=32, sleep=USLEEP)
    stamp(a, cfg, 5)
    if UDMA: ev_signal(a, EV_WQA)
    for c in range(0 if UDMA else 3):
        chan(a, T0, c)
        a(f"s_lshl_b32 s{T0}, s{T0}, 12\ns_add_u32 s{T0}, s{T0}, {W_UT}")
        for i in range(4):
            a(f"buffer_load_dwordx4 {vr(UT2[c]+4*i,4)}, v1, s[{SWS}:{SWS+3}], s{T0} offen offset:{1024*i} sc1")
    a(f"s_setprio {KPRIO}\ns_branch L_k_exp")
    a.label("L_k_done")
    a("s_waitcnt lgkmcnt(0)")
    ev_signal(a, EV_TBL)
    stamp(a, cfg, 2)
    a.label("L_k_exp")
    ev_wait(a, EV_TBL, 0xf1 if KV1 else 0xf5)
    stamp(a, cfg, 26)
    expand(a, cfg)
    a("s_waitcnt lgkmcnt(0)")
    ev_signal(a, EV_WQ + 1)
    stamp(a, cfg, 3)
    a(f"s_cmp_eq_u32 s{S_W}, 5\ns_cbranch_scc1 L_k_c0\ns_cmp_eq_u32 s{S_W}, 6\ns_cbranch_scc1 L_k_c0")
    ev_wait(a, EV_WQA, 0x0f)
    a(f"s_cmp_eq_u32 s{S_W}, 4\ns_cbranch_scc1 {'L_k_c0' if UDMA else 'L_k_ut'}")
    a(f"""v_lshlrev_b32 v2, 3, v0
v_add_u32 v2, {L_UT}, v2
v_mov_b32 v4, 0
v_mov_b32 v5, 0""")
    for c in range(3): a(f"ds_write_b64 v2, v[4:5] offset:{UT_CH*c}")
    a("s_branch L_k_c0")
    a.label("L_k_ut")
    if not UDMA: a(f"v_add_u32 v2, {L_UT + 512}, v1\ns_waitcnt vmcnt(0)")
    for c in range(0 if UDMA else 3):
        for i in range(4): a(f"ds_write_b128 v2, {vr(UT2[c]+4*i,4)} offset:{UT_CH*UPOS[c] + 1024*i}")
    a.label("L_k_c0")
    a("s_waitcnt lgkmcnt(0)")
    ev_signal(a, EV_C0)
    if UDMA: ev_wait(a, EV_WQ, 0x0f)
    ev_wait(a, EV_C0, 0xf0)
    stamp(a, cfg, 9)
    a(f"s_setprio {CPRIO}")
    conv(a, cfg)
    ev_wait(a, EV_QD, 0x0f, 5)
    ev_signal(a, EV_C2, 5)
    q_reads(a)
    attn_first(a, False)
    ev_wait(a, EV_C2, 0xf0, 5)
    stamp(a, cfg, 28)
    y_epilogue(a, cfg)
    a("s_setprio 3")

def k_addrs(a):
    a("; ---- lane addresses of waves 4..7")
    a.label("L_sub_kaddr")
    expand_index(a)
    typed_offset(a)
    conv_addrs(a, True)
    tail_addrs(a.sub("k"))
    attn_init(a)
    finish_nonce(a.sub("k"), False)
    a("s_setpc_b64 s[92:93]")

def q_reads(a):
    a(f"""ds_read2_b64 {vr(AR.QA,4)}, v{Q_R} offset0:0 offset1:1
ds_read2_b64 {vr(AR.QB,4)}, v{Q_R} offset0:10 offset1:11
ds_read_b64 {vr(AR.Q4,2)}, v{Q_R4} offset:32""")
    attn_clear(a)

def join(a, cfg):
    a.label("L_join")
    srd(a, SOUT, P_OUT, 2048*1280*2)
    stamp(a, cfg, 11)

class AR: pass
AR.S = [8, 40]; AR.CZ = 72; AR.OA = 104; AR.OB = 120
AR.K16 = 136; AR.K4 = 140; AR.V0 = 144; AR.V1 = 148
AR.IDX = 152; AR.aK16 = 153; AR.aK4 = 154; AR.aV = 155
AR.QA = 156; AR.QB = 160; AR.Q4 = 164

def attn_init(a):
    R = AR
    a(f"""s_mul_i32 s{T0}, s{S_KH}, {BLK}
v_add_u32 v{R.aK16}, s{T0}, v1
v_lshl_add_u32 v{R.aK4}, v0, 3, s{T0}
v_and_b32 v2, 31, v0
v_lshrrev_b32 v3, 5, v0
v_mul_u32_u24 v3, 320, v3
v_lshl_add_u32 v2, v2, 4, v3
v_add_u32 v{R.aV}, s{T0}, v2
v_mov_b32 v{R.IDX}, 0xdddd""")
    for i in range(8): a(f"v_mov_b32 v{R.V0+i}, 0")
    a(f"s_mov_b32 exec_lo, 0x00100000\ns_mov_b32 exec_hi, 0x00100000")
    for i in range(8): a(f"v_mov_b32 v{R.V0+i}, 0x3f803f80")
    a("s_mov_b64 exec, -1")

def attn_clear(a):
    R = AR
    for i in range(8): a(f"v_mov_b32 v{R.S[1]+24+i}, 0")
    a(f"""s_nop 0
v_mfma_f32_32x32x16_bf16 {vr(R.OA,16)}, {vr(R.S[1]+24,4)}, {vr(R.S[1]+24,4)}, 0
v_mfma_f32_32x32x16_bf16 {vr(R.OB,16)}, {vr(R.S[1]+24,4)}, {vr(R.S[1]+24,4)}, 0""")

class Dma:
    def __init__(s, items): s.items = list(items)
    def pop(s, a, n=1):
        for _ in range(n):
            if s.items: a(s.items.pop(0))
    def flush(s, a): s.pop(a, len(s.items))

S_DM = 90; S_DO = 91
def kv_dma_items(a, first, n):
    a(f"""s_lshl_b32 s{S_DM}, s{S_W}, 10
s_add_u32 s{S_DM}, s{S_DM}, {first*1024}
s_add_u32 s{S_DO}, s{S_DM}, {W_KV}""")
    return Dma([f"s_mov_b32 m0, s{S_DM}\ns_add_u32 s{S_DM}, s{S_DM}, 8192\nbuffer_load_dwordx4 v1, s[{SWS}:{SWS+3}], s{S_DO} offen sc1 lds\ns_add_u32 s{S_DO}, s{S_DO}, 8192"] * n)

TILES = ([0, 2, 5, 7], [1, 3, 4, 6])
def conv(a, cfg):
    a("; ---- Toeplitz convolution: residue tasks")
    ACC = [8, 40]; FA = [72, 160]; FB = [104, 192]
    def reads(task, i):
        st = task & 1
        va, vb, d = (C_A, C_B, 192 - 64*task) if task < 4 else (C_A2, C_B2, 192 - 64*(task - 4))
        return [f"ds_read_b128 {vr(FB[st]+4*i,4)}, v{vb} offset:{512*i + d}",
                f"ds_read_b64 {vr(FA[st]+4*i,2)}, v{va} offset:{512*(7-i) + d}",
                f"ds_read_b64 {vr(FA[st]+4*i+2,2)}, v{va} offset:{512*(7-i) + 8 + d}"]
    def run(task, pend, tiles, nxt, extra=None):
        st = task & 1; acc = ACC[task >= 4]
        queue = [(r, task) for r in pend] + ([(r, task+1) for i in range(8) for r in reads(task+1, i)] if nxt else [])
        issued_own = 24 - len(pend); issued_next = 0
        total = sum(i + 1 for i in tiles); nm = 0
        for i in tiles:
            while issued_own < 3*(i+1):
                a(queue.pop(0)[0]); issued_own += 1
            if extra is None: a(f"s_waitcnt lgkmcnt({min(15, issued_own - 3*(i+1) + issued_next)})")
            for j in range(i + 1):
                c = "0" if task in (0, 4) and j == 0 else vr(acc+4*i, 4)
                a(f"v_mfma_f32_16x16x32_bf16 {vr(acc+4*i,4)}, {vr(FA[st]+4*j,4)}, {vr(FB[st]+4*(i-j),4)}, {c}")
                nm += 1
                if extra and nm % 2 == 0: extra.pop(a)
                for rep in range(1 if total > 30 else 2):
                    if queue and (queue[0][1] == task or total - nm < 30):
                        if issued_own + issued_next - 3*(i+1) < 14 or queue[0][1] != task:
                            r, t = queue.pop(0); a(r)
                            if t == task: issued_own += 1
                            else: issued_next += 1
        return [r for r, t in queue]
    allr = [r for i in range(8) for r in reads(0, i)]
    for r in allr[:15]: a(r)
    pend = allr[15:]
    for task in range(4): pend = run(task, pend, range(8), True)
    assert not pend
    a(f"""s_sub_u32 s{T0}, s{S_W}, 4
s_lshl_b32 s{T1}, s{T0}, 13
s_add_u32 s{T1}, s{T1}, {L_P32}
s_lshl_b32 s{T0}, s{T0}, 12
s_add_u32 s{T0}, s{T0}, {L_P16}
v_add_u32 v3, s{T1}, v{C_PW}
v_add_u32 v4, s{T0}, v{C_PW}
v_mov_b32 v5, s{S_NONCE}""")
    ev_signal(a, EV_C1, 5)
    a(f"s_bitcmp1_b32 s{S_J}, 0\ns_cbranch_scc1 L_conv_odd")
    for par in range(2):
        if par: a.label("L_conv_odd")
        p = run(4, [], TILES[par], True)
        assert not p
        ev_wait(a, EV_C1, 0xf0, 5)
        wr = Dma([f"ds_write_b128 v3, {vr(ACC[0]+4*i,4)} offset:{1024*i}" for i in range(8)])
        run(5, [], TILES[par], False, wr)
        wr.flush(a)
        if par == 0: stamp(a, cfg, 10)
        a("s_nop 7")
        for n, i in enumerate(TILES[par]): a(f"ds_write_b128 v4, {vr(ACC[1]+4*i,4)} offset:{1024*n}")
        if par == 0: a("s_branch L_conv_done")
    a.label("L_conv_done")

def y_epilogue(a, cfg):
    a("; ---- convolution epilogue")
    hi = [sum((TILES[p][k] & 1) << k for k in range(4)) for p in range(2)]
    a(f"""s_sub_u32 s{T3}, s{S_W}, 4
s_lshl_b32 s{T0}, s{T3}, 11
s_add_u32 s{T0}, s{T0}, {L_P32}
v_add_u32 v2, s{T0}, v{C_PR}
s_lshl_b32 s{T0}, s{T3}, 10
s_add_u32 s{T0}, s{T0}, {L_P16}
v_add_u32 v3, s{T0}, v{C_PR}""")
    B = lambda t, c: [[72, 80], [88, 96]][t][c]
    for t in range(2):
        for c in range(2):
            for n in range(2): a(f"ds_read_b128 {vr(B(t, c)+4*n,4)}, v2 offset:{8192*(2*c+n) + 1024*t}")
    b2 = 166
    for n in range(4): a(f"ds_read_b128 {vr(b2+4*n,4)}, v3 offset:{4096*n}")
    a(f"""s_lshl_b32 s{T1}, s{S_CH0}, 12
s_add_u32 s{T1}, s{T1}, {W_YT}
s_add_u32 s{T2}, s{T1}, 4096
s_mov_b32 s{T5}, {hi[0]}
s_bitcmp1_b32 s{S_J}, 0
s_cselect_b32 s{T5}, {hi[1]}, s{T5}
s_lshr_b32 s{T5}, s{T5}, s{T3}
s_and_b32 s{T5}, s{T5}, 1
s_lshl_b32 s{T5}, s{T5}, 9
s_lshl_b32 s{T4}, s{S_CH2}, 12
s_add_u32 s{T4}, s{T4}, s{T5}
s_add_u32 s{T4}, s{T4}, {W_YT}""")
    left = 12
    for t in range(2):
        for c in range(2):
            b = B(t, c); left -= 2
            a(f"s_waitcnt lgkmcnt({left})")
            for j in range(4): a(f"v_add_f32 v{b+j}, v{b+j}, v{b+4+j}")
            a(f"""v_cvt_pk_bf16_f32 v{b+4}, v{b}, v{b+1}
v_cvt_pk_bf16_f32 v{b+5}, v{b+2}, v{b+3}
buffer_store_dwordx2 {vr(b+4,2)}, v{C_UG}, s[{SWS}:{SWS+3}], s{(T1, T2)[c]} offen offset:{512*t} sc1""")
    b = b2
    a("s_waitcnt lgkmcnt(0)")
    for j in range(4): a(f"v_add_f32 v{b+j}, v{b+j}, v{b+4+j}\nv_add_f32 v{b+8+j}, v{b+8+j}, v{b+12+j}")
    for j in range(4): a(f"v_add_f32 v{b+j}, v{b+j}, v{b+8+j}")
    a(f"""v_cvt_pk_bf16_f32 v{b+4}, v{b}, v{b+1}
v_cvt_pk_bf16_f32 v{b+5}, v{b+2}, v{b+3}
buffer_store_dwordx2 {vr(b+4,2)}, v{C_UG}, s[{SWS}:{SWS+3}], s{T4} offen sc1""")

def tail_addrs(a):
    w_tr_addr(a, A_W, 4)
    a(f"""v_and_b32 v4, 3, v0
v_lshrrev_b32 v5, 4, v0
v_lshl_add_u32 v4, v5, 2, v4
v_lshrrev_b32 v5, 1, v4
v_lshlrev_b32 v5, 3, v5
v_bfe_u32 v{A_YR}, v0, 2, 2
v_add_u32 v5, v5, v{A_YR}
v_lshlrev_b32 v5, 7, v5
v_and_b32 v4, 1, v4
v_lshl_add_u32 v5, v4, 3, v5
s_lshl_b32 s{T0}, s{S_W}, 4
s_add_u32 s{T0}, s{T0}, {L_YT}
v_add_u32 v{A_YR}, s{T0}, v5
v_lshrrev_b32 v4, 2, v0
v_and_b32 v5, 1, v4
v_and_b32 v{A_YW}, 3, v0
v_lshl_add_u32 v5, v5, 2, v{A_YW}
v_mul_u32_u24 v5, 160, v5
v_lshrrev_b32 v4, 1, v4
v_lshl_add_u32 v5, v4, 4, v5
s_mul_i32 s{T0}, s{S_W}, 1280
s_add_u32 s{T0}, s{T0}, {L_YS}
v_add_u32 v{A_YW}, s{T0}, v5
v_add_u32 v{A_YB}, s{T0}, v1""")
    for d, add in ((A_YG0, 0), (A_YG1, 64)):
        a(f"""v_add_u32 v4, {add}, v0
v_mul_u32_u24 v5, 6554, v4
v_lshrrev_b32 v5, 16, v5
v_mul_u32_u24 v{d}, 10, v5
v_sub_u32 v4, v4, v{d}
v_mul_u32_u24 v5, 2560, v5
v_lshl_add_u32 v{d}, v4, 4, v5""")
    a(f"""s_mul_i32 s{T0}, s{S_W}, {OT_SZ}
s_add_u32 s{T0}, s{T0}, {L_OT}
v_and_b32 v4, 15, v0
v_mul_u32_u24 v4, 80, v4
v_bfe_u32 v5, v0, 4, 1
v_mul_u32_u24 v5, 40, v5
v_add3_u32 v5, v4, v5, s{T0}
v_lshrrev_b32 v{A_OW}, 5, v0
v_lshl_add_u32 v{A_OW}, v{A_OW}, 3, v5
v_lshrrev_b32 v5, 4, v0
v_lshl_add_u32 v4, v5, 4, v4
v_add_u32 v{A_OB}, s{T0}, v4
s_lshl_b32 s{T0}, s{S_HG}, 1
s_add_u32 s{T0}, s{T0}, s{S_KH}
s_mul_i32 s{T0}, s{T0}, 1280
s_lshl_b32 s{T2}, s{S_RB}, 2
s_add_u32 s{T2}, s{T2}, s{S_RT}
s_mul_i32 s{T2}, s{T2}, 20480
s_add_u32 s{T0}, s{T0}, s{T2}
s_add_u32 s{T0}, s{T0}, {W_O}
v_add_u32 v{A_OG}, s{T0}, v1
s_mul_i32 s{T0}, s{S_W}, 3072
s_add_u32 s{T0}, s{T0}, {L_XCH}
v_add_u32 v{A_XW}, s{T0}, v1
s_xor_b32 s{T0}, s{S_W}, 4
s_mul_i32 s{T0}, s{T0}, 3072
s_add_u32 s{T0}, s{T0}, {L_XCH}
v_add_u32 v{A_XR}, s{T0}, v1
v_lshrrev_b32 v4, 3, v0
v_lshlrev_b32 v4, 12, v4
v_and_b32 v5, 7, v0
v_lshl_add_u32 v{A_YD}, v5, 4, v4
s_lshl_b32 s{T0}, s{S_RB}, 8
s_add_u32 s{T0}, s{T0}, {W_FO}
v_lshl_add_u32 v{A_FO}, v0, 2, s{T0}
s_mul_i32 s{T0}, s{S_W}, {OT_SZ}
s_add_u32 s{T0}, s{T0}, {L_OT}
v_and_b32 v4, 15, v0
s_mul_i32 s{T3}, s{S_KH}, 32
s_sub_u32 s{T3}, 96, s{T3}
v_mul_u32_u24 v4, s{T3}, v4
v_lshrrev_b32 v5, 4, v0
v_lshl_add_u32 v4, v5, 3, v4
v_add_u32 v{A_PW}, s{T0}, v4
s_cmp_eq_u32 s{S_KH}, 0
s_cbranch_scc0 L_ta_hi
v_mul_u32_u24 v4, 10923, v0
v_lshrrev_b32 v4, 16, v4
v_mul_u32_u24 v5, 6, v4
v_sub_u32 v5, v0, v5
v_mul_u32_u24 v4, 2560, v4
v_lshl_add_u32 v{A_PG0}, v5, 4, v4
v_add_u32 v5, 64, v0
v_mul_u32_u24 v4, 10923, v5
v_lshrrev_b32 v4, 16, v4
v_mul_u32_u24 v{A_PG1}, 6, v4
v_sub_u32 v5, v5, v{A_PG1}
v_mul_u32_u24 v4, 2560, v4
v_lshl_add_u32 v{A_PG1}, v5, 4, v4
s_branch L_ta_done""")
    a.label("L_ta_hi")
    a(f"""v_lshrrev_b32 v4, 2, v0
v_mul_u32_u24 v4, 2560, v4
v_and_b32 v5, 3, v0
v_lshl_add_u32 v4, v5, 4, v4
v_add_u32 v{A_PG0}, 96, v4
v_mov_b32 v{A_PG1}, 0""")
    a.label("L_ta_done")

def attn_half(a, cur, par, oK16, oV0, oV1, oK4, cz, extra=None):
    R = AR; S = R.S[cur]; N = R.S[1-cur]
    e = lambda k: a(f"v_exp_f32 v{S+k}, v{S+k} ; PHYS")
    x = extra if extra else (lambda: None)
    def vread(dst, off):
        a(f"s_mov_b64 exec, s[{VM}:{VM+1}]\nds_read_b128 {vr(dst,4)}, v{R.aV} offset:{off}\ns_mov_b64 exec, -1")
    a("s_waitcnt lgkmcnt(1)")
    a(f"v_mfma_f32_32x32x16_bf16 {vr(N,16)}, {vr(R.K16,4)}, {vr(R.QA,4)}, {vr(R.CZ,16) if cz else 0}")
    for k in range(0, 4): e(k)
    a(f"v_smfmac_f32_32x32x32_bf16 {vr(R.OB,16)}, {vr(R.V1,4)}, {vr(N+24,8)}, v{R.IDX}")
    vread(R.V1, oV1)
    for k in range(4, 8): e(k)
    a(f"v_mfma_f32_32x32x16_bf16 {vr(N+16,16)}, {vr(R.K16,4)}, {vr(R.QB,4)}, {vr(R.CZ+16,16) if cz else 0}")
    a(f"ds_read_b128 {vr(R.K16,4)}, v{R.aK16} offset:{oK16}")
    for k in range(8, 12): e(k)
    a("s_waitcnt lgkmcnt(2)")
    a(f"v_smfmac_f32_32x32x32_bf16 {vr(R.OA,16)}, {vr(R.V0,4)}, {vr(S,8)}, v{R.IDX}")
    x()
    for k in range(12, 16): e(k)
    a(f"v_mfma_f32_32x32x4bf16_1k {vr(N,32)}, {vr(R.K4,2)}, {vr(R.Q4,2)}, {vr(N,32)} cbsz:1 abid:{1-par} ; PHYS")
    if oK4 is not None: a(f"ds_read_b64 {vr(R.K4,2)}, v{R.aK4} offset:{oK4}")
    for k in range(16, 20): e(k)
    x()
    for k in range(20, 24): e(k)
    a(f"s_waitcnt lgkmcnt({1 + (oK4 is not None)})")
    a(f"v_smfmac_f32_32x32x32_bf16 {vr(R.OA,16)}, {vr(R.V1,4)}, {vr(S+8,8)}, v{R.IDX}")
    for k in range(24, 28): e(k)
    a(f"v_smfmac_f32_32x32x32_bf16 {vr(R.OB,16)}, {vr(R.V0,4)}, {vr(S+16,8)}, v{R.IDX}")
    vread(R.V0, oV0)
    x()
    for k in range(28, 32): e(k)

def attn_first(a, cz):
    R = AR
    a(f"""ds_read_b128 {vr(R.K16,4)}, v{R.aK16}
ds_read_b64 {vr(R.K4,2)}, v{R.aK4} offset:2048
s_waitcnt lgkmcnt(0)
v_mfma_f32_32x32x16_bf16 {vr(R.S[0],16)}, {vr(R.K16,4)}, {vr(R.QA,4)}, {vr(R.CZ,16) if cz else 0}
v_mfma_f32_32x32x16_bf16 {vr(R.S[0]+16,16)}, {vr(R.K16,4)}, {vr(R.QB,4)}, {vr(R.CZ+16,16) if cz else 0}
ds_read_b128 {vr(R.K16,4)}, v{R.aK16} offset:1024
s_mov_b64 exec, s[{VM}:{VM+1}]
ds_read_b128 {vr(R.V0,4)}, v{R.aV} offset:2560
s_mov_b64 exec, -1
s_nop 7
v_mfma_f32_32x32x4bf16_1k {vr(R.S[0],32)}, {vr(R.K4,2)}, {vr(R.Q4,2)}, {vr(R.S[0],32)} cbsz:1 abid:0
s_nop 15
s_nop 2""")

def attn_body(a, cz, extra=None, prio=True, mid=None):
    R = AR; ST = 2*BLK
    for b in range(4):
        if b == 3 and mid: mid()
        base = b*ST; nxt = base + ST
        if prio is True: a(f"s_setprio {3-b}")
        elif prio and prio[b] is not None: a(f"s_setprio {prio[b]}")
        attn_half(a, 0, 0, nxt, base + 2560 + 1280, base + 2560 + 640, nxt + 2048, cz, extra)
        attn_half(a, 1, 1, nxt + 1024, nxt + 2560, base + 2560 + 1920, None, cz, extra)
    a(f"""v_add_u32 v{R.aK16}, {4*ST}, v{R.aK16}
v_add_u32 v{R.aK4}, {4*ST}, v{R.aK4}
v_add_u32 v{R.aV}, {4*ST}, v{R.aV}""")

def attention(a, cfg):
    a("; ---- attention main loop (4 x 4 blocks of 64 keys per wave)")
    R = AR
    dma = kv_dma_items(a, 40, 5)
    stamp(a, cfg, 12)
    mid0 = lambda: a(f"""s_lshl_b32 s{T0}, s{S_XCD}, 10
s_lshl_b32 s{T1}, s{S_J}, 5
s_add_u32 s{T0}, s{T0}, s{T1}
s_lshl_b32 s{T1}, s{S_W}, 2
s_add_u32 s{T0}, s{T0}, s{T1}
s_add_u32 s{T0}, s{T0}, {W_FY}
v_mov_b32 v2, s{S_NONCE}
v_mov_b32 v3, 0
s_waitcnt vmcnt(0)
s_mov_b64 exec, 1
buffer_store_dword v2, v3, s[{SWS}:{SWS+3}], s{T0} offen sc1
s_mov_b64 exec, -1
s_barrier""")
    attn_body(a, False, lambda: dma.pop(a), mid=mid0, prio=PRI[PSCH][0])
    stamp(a, cfg, 4)
    dma = kv_dma_items(a, 80, 10)
    cb = [0]
    def slotb():
        cb[0] += 1
        if BDM == 1 or cb[0] % 3 != 0: dma.pop(a)
    if BDM == 3: dma.flush(a)
    attn_body(a, False, slotb, mid=lambda: a("s_waitcnt vmcnt(0)\ns_barrier"), prio=PRI[PSCH][1])
    stamp(a, cfg, 16)
    def mid2():
        a(f"""s_cmp_lg_u32 s{S_W}, 7
s_cbranch_scc1 L_attn_nosample
s_lshl_b32 s{T0}, s{S_XCD}, 10
s_add_u32 s{T0}, s{T0}, {W_FY}
v_add_u32 v2, s{T0}, v1
buffer_load_dwordx4 v[4:7], v2, s[{SWS}:{SWS+3}], 0 offen sc1""")
        a.label("L_attn_nosample")
        if TOUCH:
            a(f"""s_cmp_lg_u32 s{S_W}, 6
s_cbranch_scc1 L_attn_notouch
v_lshlrev_b32 v2, 14, v0
s_mov_b32 s{T0}, 0x7F0000
s_mul_i32 s{T1}, s{S_RB}, {64*2560}
s_mul_i32 s{T2}, s{S_J}, {64*2560}
s_mov_b64 exec, 1
buffer_load_dword v3, v2, s[{SWS}:{SWS+3}], s{T0} offen
s_mov_b64 exec, 0x3ff
buffer_load_dword v3, v2, s[{SOUT}:{SOUT+3}], s{T1} offen
buffer_load_dword v3, v2, s[{SOUT}:{SOUT+3}], s{T2} offen
s_mov_b64 exec, -1""")
            a.label("L_attn_notouch")
    attn_body(a, False, mid=mid2, prio=PRI[PSCH][2])
    a(f"""s_cmp_lg_u32 s{S_W}, 7
s_cbranch_scc1 L_attn_nopoll
s_waitcnt vmcnt(0)""")
    poll(a, "y", 2, 4, 4, pre=True)
    a.label("L_attn_nopoll")
    stamp(a, cfg, 23)
    a("s_barrier")
    stamp(a, cfg, 30)
    a.label("L_tail_dma")
    tail_dma_body(a, cfg)

def tail_dma_items(a, tag):
    srd(a, SA, P_WO, 640*1280)
    a(f"""s_mul_i32 s{S_DO}, s{S_HG}, 160
s_lshl_b32 s{S_DM}, s{S_W}, 10""")
    n = [0]
    def item():
        n[0] += 1
        return f"""s_cmp_ge_u32 s{S_W}, 5
s_cbranch_scc1 L_tds{tag}_{n[0]}
s_mov_b32 m0, s{S_DM}
s_add_u32 s{S_DM}, s{S_DM}, 5120
buffer_load_dwordx4 v{WT}, s[{SA}:{SA+3}], s{S_DO} offen {WOF} lds
s_add_u32 s{S_DO}, s{S_DO}, 40960
L_tds{tag}_{n[0]}:"""
    return Dma([item() for _ in range(20)])

def y_dma(a):
    a(f"""s_cmp_lt_u32 s{S_W}, 5
s_cbranch_scc1 L_yd_done
s_sub_u32 s{T2}, s{S_W}, 5
s_mul_i32 s{T3}, s{S_XCD}, {80*4096}
s_lshl_b32 s{T4}, s{S_J}, 7
s_add_u32 s{T3}, s{T3}, s{T4}
s_lshl_b32 s{T4}, s{T2}, 15
s_add_u32 s{T3}, s{T3}, s{T4}
s_lshl_b32 s{T4}, s{T2}, 10
s_add_u32 m0, s{T4}, {L_YT}
s_add_u32 s{T3}, s{T3}, {W_YT}""")
    for i in range(4):
        if i == 3: a(f"s_cmp_lg_u32 s{S_W}, 5\ns_cbranch_scc1 L_yd_done")
        a(f"buffer_load_dwordx4 v{A_YD}, s[{SWS}:{SWS+3}], s{T3} offen sc1 lds")
        if i < 3: a(f"s_add_u32 m0, m0, 3072\ns_add_u32 s{T3}, s{T3}, {3*32768}")
    a.label("L_yd_done")

def tail_dma_body(a, cfg):
    R = AR
    if YEARLY: y_dma(a)
    dma = tail_dma_items(a, "m")
    cnt = [0]
    def slot():
        cnt[0] += 1
        if TDM == 0: return
        if TDM == 1 or cnt[0] % 3 != 0: dma.pop(a)
    attn_body(a, False, slot, prio=PRI[PSCH][3])
    dma.flush(a)
    a(f"v_smfmac_f32_32x32x32_bf16 {vr(R.OB,16)}, {vr(R.V1,4)}, {vr(R.S[1]+24,8)}, v{R.IDX}\ns_setprio 0")

def o_finish(a, cfg):
    a("; ---- pair exchange, normalisation, range check of the row sums, publish o")
    R = AR
    X = 8; Y = 24; Z = 32
    a.label("L_ofin")
    stamp(a, cfg, 13)
    a(f"""v_mov_b32 v4, {L_DEC}
v_mov_b32 v5, 0
s_mov_b32 s{T0}, {hx(f2u(2.0**-40))}
s_mov_b32 s{T1}, {hx(f2u(2.0**40))}
s_waitcnt vmcnt(0) lgkmcnt(0)
s_nop 4
s_barrier""")
    stamp(a, cfg, 29)
    a(f"ds_write_b32 v4, v5\ns_cmp_eq_u32 s{S_KH}, 0\ns_cbranch_scc0 L_ox_hi")
    for kh in range(2):
        if kh: a.label("L_ox_hi")
        send, keep = (R.OB, R.OA) if kh == 0 else (R.OA, R.OB)
        for q in range(3): a(f"ds_write_b128 v{A_XW}, {vr(send+4*q,4)} offset:{1024*q}")
        a("s_waitcnt lgkmcnt(0)\ns_barrier")
        for q in (2, 0, 1): a(f"ds_read_b128 {vr(X+4*q,4)}, v{A_XR} offset:{1024*q}")
        a(f"s_waitcnt lgkmcnt(2)\nv_add_f32 v{Y}, v{X+8}, v{keep+8}\nv_add_f32 v{Y+1}, v{X+8}, v{keep+8}")
        for j in range(4): a(f"v_add_f32 v{X+8+j}, v{X+8+j}, v{keep+8+j}")
        a(f"v_permlane32_swap_b32 v{Y}, v{Y+1}\ns_waitcnt lgkmcnt(0)")
        for j in range(8): a(f"v_add_f32 v{X+j}, v{X+j}, v{keep+j}")
        if kh == 0: a("s_branch L_ox_done")
    a.label("L_ox_done")
    a(f"v_rcp_f32 v{Y}, v{Y+1}\ns_nop 0")
    for k in range(12): a(f"v_mul_f32 v{X+k}, v{X+k}, v{Y}")
    for k in range(6): a(f"v_cvt_pk_bf16_f32 v{Y+2+k}, v{X+2*k}, v{X+2*k+1}")
    a(f"""ds_write_b64 v{A_OW}, {vr(Y+2,2)}
ds_write_b64 v{A_OW}, {vr(Y+4,2)} offset:16
s_mov_b32 exec_hi, 0
ds_write_b64 v{A_OW}, {vr(Y+6,2)} offset:32
s_mov_b32 exec_hi, -1
ds_read_b128 {vr(Z,4)}, v{A_OB}
ds_read_b128 {vr(Z+4,4)}, v{A_OB} offset:64
v_mov_b32 v{Y}, 0
s_waitcnt lgkmcnt(1)
buffer_store_dwordx4 {vr(Z,4)}, v{A_OG}, s[{SWS}:{SWS+3}], 0 offen sc1
s_mov_b64 exec, 0xffff
s_waitcnt lgkmcnt(0)
buffer_store_dwordx4 {vr(Z+4,4)}, v{A_OG}, s[{SWS}:{SWS+3}], 0 offen offset:1024 sc1
s_mov_b64 exec, -1""")
    for k in range(12): a(f"v_fma_f32 v{Y + (k & 1)}, v{X+k}, 0, v{Y + (k & 1)}")
    a(f"""v_add_f32 v{Y}, v{Y}, v{Y+1}
v_cmp_le_f32 vcc, s{T0}, v{Y}
v_cmp_ge_f32 s[{T2}:{T3}], s{T1}, v{Y}
s_nop 3
s_and_b64 vcc, vcc, s[{T2}:{T3}]
s_cmp_eq_u64 vcc, -1
s_cbranch_scc1 L_ox_ok
s_cmp_lg_u32 s{S_FB}, 0
s_cbranch_scc1 L_ox_ok
v_mov_b32 v5, 1
ds_write_b32 v4, v5
s_waitcnt lgkmcnt(0)""")
    a.label("L_ox_ok")
    a("s_barrier")
    stamp(a, cfg, 14)
    a(f"ds_read_b32 v5, v4")

def fallback(a, cfg):
    a("; ---- fallback: true row max")
    R = AR
    a.label("L_fallback")
    a(f"s_mov_b32 s{S_FB}, 1\ns_waitcnt vmcnt(0) lgkmcnt(0)\ns_barrier")
    kv_dma_items(a, 0, 20).flush(a)
    a(f"""v_mov_b32 v{R.aK16}, v1
v_lshlrev_b32 v{R.aK4}, 3, v0
v_mov_b32 v2, 0xff7fffff
v_mov_b32 v3, 0xff7fffff
s_mov_b32 s{S_IT}, 0
s_waitcnt vmcnt(0)
s_barrier""")
    a.label("L_fb_loop")
    for par in range(2):
        a(f"""ds_read_b128 {vr(R.K16,4)}, v{R.aK16} offset:{1024*par}
ds_read_b64 {vr(R.K4,2)}, v{R.aK4} offset:2048
s_waitcnt lgkmcnt(0)
v_mfma_f32_32x32x16_bf16 {vr(R.S[0],16)}, {vr(R.K16,4)}, {vr(R.QA,4)}, 0
v_mfma_f32_32x32x16_bf16 {vr(R.S[0]+16,16)}, {vr(R.K16,4)}, {vr(R.QB,4)}, 0
s_nop 9
v_mfma_f32_32x32x4bf16_1k {vr(R.S[0],32)}, {vr(R.K4,2)}, {vr(R.Q4,2)}, {vr(R.S[0],32)} cbsz:1 abid:{par}
s_nop 15
s_nop 3""")
        for k in range(0, 16, 2):
            a(f"v_max3_f32 v2, v2, v{R.S[0]+k}, v{R.S[0]+k+1}\nv_max3_f32 v3, v3, v{R.S[0]+16+k}, v{R.S[0]+17+k}")
    a(f"""v_add_u32 v{R.aK16}, {BLK}, v{R.aK16}
v_add_u32 v{R.aK4}, {BLK}, v{R.aK4}
s_add_u32 s{S_IT}, s{S_IT}, 1
s_cmp_lt_u32 s{S_IT}, 32
s_cbranch_scc1 L_fb_loop
v_mov_b32 v4, v2
v_mov_b32 v5, v3
s_nop 1
v_permlane32_swap_b32 v2, v4
v_permlane32_swap_b32 v3, v5
v_max_f32 v2, v2, v4
v_max_f32 v3, v3, v5""")
    for i in range(16): a(f"v_sub_f32 v{R.CZ+i}, 0, v2\nv_sub_f32 v{R.CZ+16+i}, 0, v3")
    attn_init(a)
    attn_clear(a)
    attn_first(a, True)
    a(f"s_mov_b32 s{S_IT}, 0")
    a.label("L_fb_attn")
    attn_body(a, True, prio=False)
    a(f"""s_add_u32 s{S_IT}, s{S_IT}, 1
s_cmp_lt_u32 s{S_IT}, 4
s_cbranch_scc1 L_fb_attn
v_smfmac_f32_32x32x32_bf16 {vr(R.OB,16)}, {vr(R.V1,4)}, {vr(R.S[1]+24,8)}, v{R.IDX}
s_waitcnt lgkmcnt(0)
s_barrier""")
    y_dma(a.sub("f"))
    tail_dma_items(a, "f").flush(a)
    a("s_branch L_ofin")

def out_proj(a, cfg):
    a("; ---- y tile, gather o, output projection")
    WF = 40; OF = 186; ACC = 8
    NPRE = 7
    def wreads(i, b, cts=range(5)):
        for ct in cts:
            for hf in range(2):
                a(f"ds_read_b64_tr_b16 {vr(b+4*ct+2*hf,2)}, v{A_W} offset:{5120*i + 1280*hf + 32*ct}")
    a(f"""s_lshl_b32 s{T0}, s{S_HG}, 2
s_lshl_b32 s{T1}, s{S_RB}, 8
s_add_u32 s{T0}, s{T0}, s{T1}
s_add_u32 s{T0}, s{T0}, {W_FO}
ds_read_b64_tr_b16 v[8:9], v{A_YR}
ds_read_b64_tr_b16 v[10:11], v{A_YR} offset:512
ds_read_b64_tr_b16 v[12:13], v{A_YR} offset:8192
ds_read_b64_tr_b16 v[14:15], v{A_YR} offset:8704
v_mov_b32 v2, s{S_NONCE}
v_mov_b32 v3, 0
s_waitcnt lgkmcnt(4)
v_readfirstlane_b32 s{T2}, v5
s_waitcnt lgkmcnt(2)
ds_write_b128 v{A_YW}, v[8:11]
s_mov_b64 exec, 0xffff
s_waitcnt lgkmcnt(1)
ds_write_b128 v{A_YW}, v[12:15] offset:128
s_mov_b64 exec, -1
s_cmp_lg_u32 s{T2}, 0
s_cbranch_scc1 L_fallback
ds_read_b128 v[16:19], v{A_YB}
ds_read_b128 v[20:23], v{A_YB} offset:1024""")
    for i in range(WPRE): wreads(i, WF + 20*i)
    a(f"""s_waitcnt vmcnt(0)
s_barrier
s_cmp_lg_u32 s{S_W}, 0
s_cbranch_scc1 L_op_noflag
s_mov_b64 exec, 1
buffer_store_dword v2, v3, s[{SWS}:{SWS+3}], s{T0} offen sc1
s_mov_b64 exec, -1""")
    a.label("L_op_noflag")
    stamp(a, cfg, 15)
    a(f"""s_lshl_b32 s{T0}, s{S_J}, 6
s_lshl_b32 s{T1}, s{S_W}, 3
s_add_u32 s{T0}, s{T0}, s{T1}
s_mul_i32 s{T0}, s{T0}, 2560
s_mul_i32 s{T1}, s{S_XCD}, 160
s_add_u32 s{T0}, s{T0}, s{T1}
s_add_u32 s{T0}, s{T0}, 1280
s_waitcnt lgkmcnt({min(15, 10*WPRE)})
buffer_store_dwordx4 v[16:19], v{A_YG0}, s[{SOUT}:{SOUT+3}], s{T0} offen {YST}
s_mov_b64 exec, 0xffff
buffer_store_dwordx4 v[20:23], v{A_YG1}, s[{SOUT}:{SOUT+3}], s{T0} offen {YST}
s_mov_b64 exec, -1""")
    for i in range(WPRE, NPRE): wreads(i, WF + 20*i)
    a(f"""s_and_b32 s{T2}, s{S_W}, 3
s_lshl_b32 s{T0}, s{S_RB}, 2
s_add_u32 s{T0}, s{T0}, s{T2}
s_mul_i32 s{T3}, s{T0}, {16*2560}
s_mul_i32 s{T0}, s{T0}, 20480
s_mul_i32 s{T1}, s{S_KH}, 10240
s_add_u32 s{T0}, s{T0}, s{T1}
s_add_u32 s{T0}, s{T0}, {W_O}
s_add_u32 s{T1}, s{T0}, 4096
s_add_u32 s{T2}, s{T0}, 8192
s_mul_i32 s{T4}, s{S_HG}, 160
s_add_u32 s{T3}, s{T3}, s{T4}
s_mul_i32 s{T4}, s{S_W}, {OT_SZ}
s_add_u32 s{T4}, s{T4}, {L_OT}
v_add_u32 v7, s{T4}, v1""")
    stamp(a, cfg, 17)
    a(f"s_cmp_lg_u32 s{S_W}, 0\ns_cbranch_scc1 L_op_nopoll")
    if PPOLL:
        a(f"s_mov_b32 exec_lo, 0xff\ns_mov_b32 exec_hi, 0\ns_mov_b32 s{T7}, 0")
        ld = lambda r: f"buffer_load_dword v{r}, v{A_FO}, s[{SWS}:{SWS+3}], 0 offen sc1"
        a(ld(4) + f"\ns_sleep {PPOLL}\n" + ld(5) + f"\ns_sleep {PPOLL}")
        a.label("L_pp_loop")
        for k in range(3):
            a(ld(4 + (k + 2) % 3))
            a(f"""s_waitcnt vmcnt(2)
v_cmp_ne_u32 vcc, s{S_NONCE}, v{4 + k}
s_add_u32 s{T7}, s{T7}, 1
s_nop 2
s_cmp_eq_u64 vcc, 0
s_cbranch_scc1 L_pp_done""")
        a(f"s_cmp_lt_u32 s{T7}, {SPIN_MAX}\ns_cbranch_scc1 L_pp_loop")
        a.label("L_pp_done")
        a("s_mov_b64 exec, -1")
    else:
        poll(a, "o", A_FO, 1, 4, lanes=8)
    a.label("L_op_nopoll")
    a("s_barrier")
    stamp(a, cfg, 18)
    if OPRIO:
        a(f"s_cmp_eq_u32 s{S_KH}, 0\ns_cbranch_scc1 L_op_p0\ns_setprio 2\ns_branch L_op_p1")
        a.label("L_op_p0"); a("s_setprio 3"); a.label("L_op_p1")
    for i in range(10):
        if OPRIO and i == 5:
            a(f"s_cmp_eq_u32 s{S_KH}, 0\ns_cbranch_scc1 L_op_p2\ns_setprio 0\ns_branch L_op_p3")
            a.label("L_op_p2"); a("s_setprio 1"); a.label("L_op_p3")
        a(f"buffer_load_dwordx4 {vr(OF+4*i,4)}, v1, s[{SWS}:{SWS+3}], s{(T0, T1, T2)[i >> 2]} offen offset:{1024*(i & 3)} sc1")
    if OPRIO: a("s_setprio 0")
    a("s_waitcnt lgkmcnt(0)")
    for i in range(10):
        b = WF + 20*(i if i < NPRE else i - NPRE)
        a(f"s_waitcnt vmcnt({9-i})" + (f" lgkmcnt({min(15, 10*(9-i))})" if i >= NPRE else ""))
        for ct in range(5):
            c = "0" if i == 0 else vr(ACC+4*ct, 4)
            a(f"v_mfma_f32_16x16x32_bf16 {vr(ACC+4*ct,4)}, {vr(b+4*ct,4)}, {vr(OF+4*i,4)}, {c}")
        if i < 10 - NPRE: wreads(NPRE + i, b)
    stamp(a, cfg, 19)
    a(f"s_cmp_eq_u32 s{S_KH}, 0\ns_cbranch_scc0 L_px_hi")
    X = 40
    for kh in range(2):
        if kh: a.label("L_px_hi")
        send = [3, 4] if kh == 0 else [0, 1, 2]
        keep = [0, 1, 2] if kh == 0 else [3, 4]
        a("s_nop 5" if kh == 0 else "s_nop 5")
        for n, ct in enumerate(send): a(f"ds_write_b128 v{A_XW}, {vr(ACC+4*ct,4)} offset:{1024*n}")
        a("s_waitcnt lgkmcnt(0)\ns_barrier")
        for n, ct in enumerate(keep): a(f"ds_read_b128 {vr(X+4*n,4)}, v{A_XR} offset:{1024*n}")
        for n, ct in enumerate(keep):
            a(f"s_waitcnt lgkmcnt({len(keep)-1})")
            for j in range(4): a(f"v_add_f32 v{X+4*n+j}, v{X+4*n+j}, v{ACC+4*ct+j}")
            a(f"v_cvt_pk_bf16_f32 v{X+16+2*n}, v{X+4*n}, v{X+4*n+1}\nv_cvt_pk_bf16_f32 v{X+17+2*n}, v{X+4*n+2}, v{X+4*n+3}")
            a(f"ds_write_b64 v{A_PW}, {vr(X+16+2*n,2)} offset:{32*n}")
        a(f"ds_read_b128 {vr(X+24,4)}, v7")
        if kh == 0:
            a(f"""ds_read_b128 {vr(X+28,4)}, v7 offset:1024
s_waitcnt lgkmcnt(1)
buffer_store_dwordx4 {vr(X+24,4)}, v{A_PG0}, s[{SOUT}:{SOUT+3}], s{T3} offen {OST}
s_mov_b32 exec_hi, 0
s_waitcnt lgkmcnt(0)
buffer_store_dwordx4 {vr(X+28,4)}, v{A_PG1}, s[{SOUT}:{SOUT+3}], s{T3} offen {OST}
s_mov_b32 exec_hi, -1
s_branch L_px_done""")
        else:
            a(f"s_waitcnt lgkmcnt(0)\nbuffer_store_dwordx4 {vr(X+24,4)}, v{A_PG0}, s[{SOUT}:{SOUT+3}], s{T3} offen {OST}")
    a.label("L_px_done")
    if cfg.stamps:
        a("s_waitcnt vmcnt(0)")
        stamp(a, cfg, 20)
        stamp_flush(a, cfg)
        stamp_debug(a, cfg)

def build(cfg):
    a = Asm()
    prologue(a, cfg)
    a(f"s_cmp_ge_u32 s{S_W}, 4\ns_cbranch_scc1 L_kside")
    q_side(a, cfg)
    a("s_branch L_join")
    a("; CUT k_early")
    a.label("L_kside")
    k_side(a, cfg)
    join(a, cfg)
    attention(a, cfg)
    o_finish(a, cfg)
    out_proj(a, cfg)
    a.label("L_end")
    a("s_endpgm")
    a("; CUT kaddr")
    k_addrs(a)
    a("; CUT fb")
    a.label("L_code_end")
    fallback(a, cfg)
    linear = list(a.lines)
    if LAYOUT:
        parts = {}; cur = "head"; parts[cur] = []
        for l in a.lines:
            if l.startswith("; CUT "): cur = l[6:]; parts[cur] = []
            else: parts[cur].append(l)
        br = lambda n: [f"s_branch L_cut_{n}"]; lb = lambda n: [f"L_cut_{n}:"]
        a.lines = (parts["head"] + br("q_main") + parts["k_early"] + br("k_gen") + parts["kaddr"] + parts["u_early"] + br("u_main")
                   + lb("k_gen") + parts["k_gen"] + lb("q_main") + parts["q_main"] + lb("u_main") + parts["u_main"] + parts["fb"])
    probs = check([l for l in linear if not l.startswith('; CUT')])
    for p in probs: print("HAZARD", p, file=sys.stderr)
    head = open("cdna_kernels/%s.s.ref" % NAME).read().split("; Override")[0]
    txt = head + DESC + f"""; @launch grid=(256,1,1) block=(512,1,1) lds=163840
.amdgcn_target "amdgcn-amd-amdhsa--gfx950"
.text
.globl {NAME}_kernel
.p2align 8
.type {NAME}_kernel,@function
{NAME}_kernel:
""" + a.text() + f""".section .rodata,"a"
.p2align 6
.amdhsa_kernel {NAME}_kernel
  .amdhsa_next_free_vgpr 256
  .amdhsa_next_free_sgpr 96
  .amdhsa_accum_offset 256
  .amdhsa_group_segment_fixed_size 0
  .amdhsa_kernarg_size 120
  .amdhsa_user_sgpr_count 2
  .amdhsa_user_sgpr_kernarg_segment_ptr 1
  .amdhsa_system_sgpr_workgroup_id_x 1
  .amdhsa_float_denorm_mode_32 3
.end_amdhsa_kernel
"""
    return txt, len(probs)

if __name__ == "__main__":
    cfg = Cfg()
    out = sys.argv[1]
    for o in sys.argv[2:]:
        if o == "stamps": cfg.stamps = True
        if o == "dbg": cfg.dbg = True
        if o.startswith("few="): cfg.stamps = True; cfg.few = [int(x) for x in o[4:].split(",")]
        if "=" in o and o.split("=")[0].isupper(): globals()[o.split("=")[0]] = int(o.split("=")[1]) if o.split("=")[1].isdigit() else o.split("=")[1].replace("_", " ")
        if o.startswith("dbgstamp="): cfg.stamps = True; cfg.dbgstamp = [int(x) for x in o[9:].split(",")]
    txt, n = build(cfg)
    open(out, "w").write(txt)
    print("written", out, len(txt), "bytes; hazards:", n)
```
